```python
import torch

def _softmax(x, axis=-1):
    return torch.softmax(x, dim=axis)
def _gelu(x):
    return torch.nn.functional.gelu(x, approximate="tanh")
def _silu(x):
    return torch.nn.functional.silu(x)
def _sigmoid(x):
    return torch.sigmoid(x)
def _layernorm(x, axis=-1, eps=1e-5):
    m = x.mean(dim=axis, keepdim=True)
    v = x.var(dim=axis, keepdim=True, unbiased=False)
    return (x - m) / torch.sqrt(v + eps)
def _scatter_add(tgt, idx, src, axis=0):
    return tgt.clone().index_add_(axis, idx, src)
def _segment_sum(src, seg, n):
    out = torch.zeros((n,) + src.shape[1:], dtype=src.dtype)
    return out.index_add_(0, seg, src)
def _pad(x, pw):
    flat = tuple(v for pair in reversed(pw) for v in pair)
    return torch.nn.functional.pad(x, flat)

kernel_name = 'standalone__mixer_token_mlp__prompt'

def setup_inputs():

    _w = (lambda a: (lambda t: t.to(torch.bfloat16) if t.is_floating_point() else t)(torch.as_tensor(a)))
    B, S, D, F = 1, 2048, 640, 1728
    return {
        "x": _w((lambda *s: torch.randn(*s, dtype=torch.bfloat16) * 0.05)(B, S, D)),
        "w1": _w((lambda *s: torch.randn(*s, dtype=torch.bfloat16) * 0.2)(S, F) * (S ** -0.5)),
        "b1": _w((lambda *s: torch.randn(*s, dtype=torch.bfloat16) * 1.6)(F) * 0.02),
        "w2": _w((lambda *s: torch.randn(*s, dtype=torch.bfloat16) * 0.05)(F, S) * (F ** -0.5)),
        "b2": _w((lambda *s: torch.randn(*s, dtype=torch.bfloat16) * 0.1)(S) * 0.02),
    }

def reference(x, w1, b1, w2, b2):
    B, S, D = x.shape
    h = _layernorm(x, axis=-1)
    u = torch.einsum("bsd,sf->bdf", h, w1) + b1
    u = _gelu(u)
    y = torch.einsum("bdf,fs->bds", u, w2) + b2
    return (lambda x, *d: x.permute(*d))(y, 0, 2, 1)
```

```python
HEADER = """; Kernarg layout for this problem (64 bytes, ptrs only, base s[0:1]):
"""
MAIN = "standalone__mixer_token_mlp__prompt_kernel"

class Asm:
    def __init__(self):
        self.lines = []
    def __call__(self, s=""):
        for l in s.split("\n"):
            self.lines.append(l)
    def text(self):
        return "\n".join(self.lines) + "\n"

def kernel_begin(a, name):
    a(".text")
    a(f".globl {name}")
    a(".p2align 8")
    a(f".type {name},@function")
    a(f"{name}:")

def kernel_desc(a, name, vgpr, sgpr, accum):
    a('.section .rodata,"a"')
    a(".p2align 6")
    a(f".amdhsa_kernel {name}")
    a(f"  .amdhsa_next_free_vgpr {vgpr}")
    a(f"  .amdhsa_next_free_sgpr {sgpr}")
    a(f"  .amdhsa_accum_offset {accum}")
    a("  .amdhsa_group_segment_fixed_size 0")
    a("  .amdhsa_kernarg_size 64")
    a("  .amdhsa_user_sgpr_count 2")
    a("  .amdhsa_user_sgpr_kernarg_segment_ptr 1")
    a("  .amdhsa_system_sgpr_workgroup_id_x 1")
    a(".end_amdhsa_kernel")

def file_begin(a, launches):
    a.lines.extend(HEADER.rstrip("\n").split("\n"))
    if len(launches) == 1 and launches[0][0] == MAIN:
        n, g, b, l = launches[0]
        a(f"; @launch grid=({g},1,1) block=({b},1,1) lds={l}")
    else:
        for n, g, b, l in launches:
            a(f"; @launch kernel={n} grid=({g},1,1) block=({b},1,1) lds={l}")
    a('.amdgcn_target "amdgcn-amd-amdhsa--gfx950"')

def srd(a, d, lo, hi, nbytes):
    a(f"s_mov_b32 s{d}, s{lo}")
    a(f"s_and_b32 s{d+1}, s{hi}, 0xffff")
    a(f"s_mov_b32 s{d+2}, {nbytes}")
    a(f"s_mov_b32 s{d+3}, 0x00020000")
```

```python
import sys, argparse, struct
sys.path.insert(0, "tools")
from asmlib import *

ap = argparse.ArgumentParser()
ap.add_argument("--stamps", type=int, default=0)
ap.add_argument("--npre", type=int, default=9)
ap.add_argument("--codepf", type=int, default=1)
ap.add_argument("--w2pf", type=int, default=1)
ap.add_argument("--exact", type=int, default=1)
ap.add_argument("--n2pre", type=int, default=6)
ap.add_argument("--sleep", type=int, default=1)
args = ap.parse_args()

def f32hex(x): return "0x%08x" % struct.unpack("<I", struct.pack("<f", x))[0]

S, D, F = 2048, 640, 1728
H_OFF   = 0
G_OFF   = 0x280000
FL_LN   = 0x500000
FL_G    = 0x508000
STAMP   = 0x8000000
W1_ROW, W2_ROW = 3456, 4096
W1_KS, W2_KS = 32 * W1_ROW, 32 * W2_ROW
RING = 36864
NSLOT = 9
T_OFF = 147456
LDS_BYTES = 163840
SPIN_MAX = 200000
SC = " sc1"

sB, sWV = 2, 3
sDT, sFT, sST, sROLE = 4, 5, 6, 7
srdX, srdW1, srdW2, srdB1, srdB2, srdOUT, srdDBG, srdWS = 8, 12, 16, 20, 24, 28, 32, 36
sNON = 40
sT0, sT1, sT2, sT3 = 42, 43, 44, 45
sRING = 46
sOFF = 47
sKARG = 48
sSTAMP = 64
sWOFF = 96
sAOFF = 97
sSPIN = 98
sJ = 99
sEXEC = 100

vTID, vLANE = 0, 1
vA, vA2 = 2, 3
vD = 4
vT = 8
vBIAS = 14
ABUF = 16
NA = 8
ACC = 176
def acc(c, mi): return ACC + (c * 5 + mi) * 4
def abuf(slot, mi): return ABUF + slot * 20 + mi * 4
P = lambda r: f"v[{r}:{r+1}]"

a = Asm()
nstamp = [0]
NSTAMPS = 16
def stamp(name):
    if not args.stamps: return
    i = nstamp[0]; nstamp[0] += 1
    a(f"s_memrealtime s[{sSTAMP+2*i}:{sSTAMP+2*i+1}]")
    a("s_waitcnt lgkmcnt(0)")

def write_stamps(label, base):
    if not args.stamps: return
    a(f"s_cmp_lg_u32 s{sWV}, {args.stamps - 1}")
    a(f"s_cbranch_scc1 {label}_nostamp")
    a(f"s_mul_i32 s{sT0}, s{sB}, {NSTAMPS*8}")
    a(f"s_add_u32 s{sT0}, s{sT0}, {base}")
    a("v_mov_b32 v12, 0")
    a("s_mov_b64 exec, 1")
    for i in range(0, NSTAMPS, 2):
        for k in range(4):
            if i + k // 2 < nstamp[0]: a(f"v_mov_b32 v{16+k}, s{sSTAMP + 2*i + k}")
            else:                      a(f"v_mov_b32 v{16+k}, 0")
        a(f"buffer_store_dwordx4 v[16:19], v12, s[{srdWS}:{srdWS+3}], s{sT0} offen offset:{i*8}")
        a("s_nop 2")
    a(f"{label}_nostamp:")

def mk_srd(d, p, nbytes):
    a(f"s_mov_b32 s{d}, s{p}")
    a(f"s_and_b32 s{d+1}, s{p+1}, 0xffff")
    a(f"s_mov_b32 s{d+2}, {nbytes}")
    a(f"s_mov_b32 s{d+3}, 0x00020000")

def prologue(name, endlabel):
    kernel_begin(a, name)
    if args.stamps:
        a(f"s_memrealtime s[{sSTAMP}:{sSTAMP+1}]"); nstamp[0] = 1
    a(f"s_cmp_ge_u32 s{sB}, 256")
    a(f"s_cbranch_scc1 {endlabel}")
    a(f"s_load_dwordx16 s[{sKARG}:{sKARG+15}], s[0:1], 0")
    a(f"v_and_b32 v{vLANE}, 63, v{vTID}")
    a(f"v_lshrrev_b32 v12, 6, v{vTID}")
    a(f"v_lshlrev_b32 v{vA}, 4, v{vLANE}")
    a(f"v_readfirstlane_b32 s{sWV}, v12")
    a(f"v_add_u32 v{vA2}, 0x1000, v{vA}")
    a(f"s_and_b32 s{sT0}, s{sB}, 1")
    a(f"s_lshl_b32 s{sT0}, s{sT0}, 2")
    a(f"s_lshr_b32 s{sT1}, s{sB}, 3")
    a(f"s_and_b32 s{sT2}, s{sT1}, 3")
    a(f"s_add_u32 s{sDT}, s{sT0}, s{sT2}")
    a(f"s_lshr_b32 s{sT1}, s{sT1}, 2")
    a(f"s_bfe_u32 s{sJ}, s{sB}, 0x20001")
    a(f"s_lshl_b32 s{sT2}, s{sJ}, 3")
    a(f"s_add_u32 s{sST}, s{sT2}, s{sT1}")
    a(f"s_mul_i32 s{sT2}, s{sJ}, 7")
    a(f"s_add_u32 s{sFT}, s{sT2}, s{sT1}")
    a(f"s_cmp_eq_u32 s{sJ}, 3")
    a(f"s_cselect_b32 s{sT2}, 6, 7")
    a(f"s_cmp_lt_u32 s{sT1}, s{sT2}")
    a(f"s_cselect_b32 s{sROLE}, 1, 0")
    a(f"s_mul_i32 s{sRING}, s{sWV}, {RING}")
    a("s_waitcnt lgkmcnt(0)")
    mk_srd(srdX,   sKARG+0,  S*D*2)
    mk_srd(srdW1,  sKARG+2,  S*F*2)
    mk_srd(srdB1,  sKARG+4,  F*2)
    mk_srd(srdW2,  sKARG+6,  F*S*2)
    mk_srd(srdB2,  sKARG+8,  S*2)
    mk_srd(srdOUT, sKARG+10, S*D*2)
    mk_srd(srdDBG, sKARG+12, 256)
    mk_srd(srdWS,  sKARG+14, 268435456)

def code_prefetch():
    a(f"s_getpc_b64 s[{sT0}:{sT0+1}]")
    a("L_pf_base:")
    a(f"s_lshr_b32 s{sT2}, s{sB}, 3")
    a(f"s_and_b32 s{sT2}, s{sT2}, 7")
    a(f"s_lshl_b32 s{sT2}, s{sT2}, 2")
    a(f"s_add_u32 s{sT2}, s{sT2}, s{sWV}")
    a(f"s_min_u32 s{sT2}, s{sT2}, (L_code_end - L_pf_base) / 1024 - 1")
    a(f"s_lshl_b32 s{sT2}, s{sT2}, 10")
    a(f"s_add_u32 s{sT0}, s{sT0}, s{sT2}")
    a(f"s_addc_u32 s{sT1}, s{sT1}, 0")
    a(f"global_load_dwordx4 v[96:99], v{vA}, s[{sT0}:{sT0+1}]")

def dma_offsets(row):
    a(f"v_lshrrev_b32 v12, 3, v{vLANE}")
    a(f"v_and_b32 v13, 2, v12")
    a(f"v_mul_u32_u24 v12, {row}, v12")
    a(f"v_and_b32 v{vD+2}, 7, v{vLANE}")
    a(f"v_xor_b32 v13, v13, v{vD+2}")
    a(f"v_lshl_add_u32 v{vD}, v13, 4, v12")
    a(f"v_xor_b32 v13, 4, v13")
    a(f"v_lshl_add_u32 v{vD+1}, v13, 4, v12")
    a(f"v_add_u32 v{vD+1}, {8*row}, v{vD+1}")
    a(f"v_add_u32 v{vD+2}, {16*row}, v{vD}")
    a(f"v_add_u32 v{vD+3}, {16*row}, v{vD+1}")

def tr_addresses():
    a(f"v_lshrrev_b32 v12, 4, v{vLANE}")
    a(f"v_bfe_u32 v13, v{vLANE}, 2, 2")
    a(f"v_lshl_add_u32 v14, v12, 3, v13")
    a(f"v_lshlrev_b32 v14, 7, v14")
    a(f"v_and_b32 v15, 1, v{vLANE}")
    a(f"v_lshl_add_u32 v14, v15, 3, v14")
    a(f"v_add_u32 v14, s{sRING}, v14")
    a(f"v_and_b32 v12, 1, v12")
    a(f"v_lshlrev_b32 v12, 2, v12")
    a(f"v_and_b32 v13, 2, v13")
    a(f"v_or_b32 v12, v12, v13")
    a(f"v_bfe_u32 v13, v{vLANE}, 1, 1")
    a(f"v_xor_b32 v12, v12, v13")
    for c in range(4):
        a(f"s_add_u32 s{sT0}, s{sWV}, {c}")
        a(f"s_and_b32 s{sT0}, s{sT0}, 3")
        a(f"s_lshl_b32 s{sT0}, s{sT0}, 1")
        a(f"v_xor_b32 v13, s{sT0}, v12")
        a(f"v_lshl_add_u32 v{vT+c}, v13, 4, v14")

def dma_step(srd, ks, slot, kstride):
    for q in range(4):
        a(f"s_add_u32 m0, s{sRING}, {slot*4096 + q*1024}")
        if q == 0: a(f"s_add_u32 s{sOFF}, s{sWOFF}, {ks*kstride}")
        else:      a("s_nop 0")
        a(f"buffer_load_dwordx4 v{vD+q}, s[{srd}:{srd+3}], s{sOFF} offen lds")

def tr_step(ks, slot):
    for c in range(4):
        for t in range(2):
            r = 16*ks + 4*c + 2*t
            a(f"ds_read_b64_tr_b16 a[{r}:{r+1}], v{vT+c} offset:{slot*4096 + t*512}")

def a_load(slot, mi, ks):
    r = abuf(slot, mi)
    if mi == 0:
        a(f"s_add_u32 s{sOFF}, s{sAOFF}, {ks*5120}")
    if mi < 4:
        a(f"buffer_load_dwordx4 v[{r}:{r+3}], v{vA}, s[{srdWS}:{srdWS+3}], s{sOFF} offen offset:{mi*1024}{SC}")
    else:
        a(f"buffer_load_dwordx4 v[{r}:{r+3}], v{vA2}, s[{srdWS}:{srdWS+3}], s{sOFF} offen{SC}")

def mfma(first, ks, slot, c, mi, gemm):
    d = acc(c, mi); wr = 16*ks + 4*c; ar = abuf(slot, mi)
    cin = "0" if first else f"v[{d}:{d+3}]"
    if gemm == 1:
        a(f"v_mfma_f32_16x16x32_bf16 v[{d}:{d+3}], a[{wr}:{wr+3}], v[{ar}:{ar+3}], {cin}")
    else:
        a(f"v_mfma_f32_16x16x32_bf16 v[{d}:{d+3}], v[{ar}:{ar+3}], a[{wr}:{wr+3}], {cin}")

XR = 16
FV = 28
DV = 48
HP = 68
WA = 80
GA = 92
TV = 100
def ln_issue():
    a(f"s_lshl_b32 s{sT0}, s{sB}, 3")
    a(f"s_lshl_b32 s{sT1}, s{sWV}, 1")
    a(f"s_add_u32 s{sT0}, s{sT0}, s{sT1}")
    a(f"s_mul_i32 s{sT0}, s{sT0}, 1280")
    a(f"v_lshrrev_b32 v12, 5, v{vLANE}")
    a(f"v_mul_u32_u24 v12, 1280, v12")
    a(f"v_and_b32 v13, 31, v{vLANE}")
    a(f"v_lshl_add_u32 v14, v13, 4, v12")
    a(f"v_lshl_add_u32 v15, v13, 3, v12")
    a(f"buffer_load_dwordx4 v[{XR}:{XR+3}], v14, s[{srdX}:{srdX+3}], s{sT0} offen")
    a(f"buffer_load_dwordx4 v[{XR+4}:{XR+7}], v14, s[{srdX}:{srdX+3}], s{sT0} offen offset:512")
    a(f"buffer_load_dwordx2 v[{XR+8}:{XR+9}], v15, s[{srdX}:{srdX+3}], s{sT0} offen offset:1024")

def ln_addresses():
    a(f"v_and_b32 v{TV}, 31, v{vLANE}")
    a(f"v_lshrrev_b32 v{TV+1}, 5, v{vLANE}")
    a(f"v_lshlrev_b32 v{TV+1}, 1, v{TV+1}")
    a(f"s_lshl_b32 s{sT0}, s{sWV}, 2")
    a(f"s_add_u32 s{sT0}, s{sT0}, {T_OFF}")
    a(f"v_and_b32 v{TV+2}, 7, v{TV}")
    a(f"v_xor_b32 v{TV+2}, v{TV+2}, v{TV+1}")
    a(f"v_lshlrev_b32 v{TV+3}, 7, v{TV}")
    a(f"v_add_u32 v{TV+3}, s{sT0}, v{TV+3}")
    for k in range(4):
        base = 4096 if k >= 2 else 0
        e = 4 if (k & 1) else 0
        for o in range(2):
            a(f"v_xor_b32 v{TV+4}, {e + o}, v{TV+2}")
            a(f"v_lshl_add_u32 v{WA + 2*k + o}, v{TV+4}, 4, v{TV+3}")
            if base: a(f"v_add_u32 v{WA + 2*k + o}, {base}, v{WA + 2*k + o}")
    a(f"v_lshrrev_b32 v{TV+4}, 1, v{TV}")
    a(f"v_and_b32 v{TV+5}, 1, v{TV}")
    a(f"v_lshl_add_u32 v{TV+5}, v{TV+5}, 2, v{TV+1}")
    a(f"v_and_b32 v{TV+6}, 7, v{TV+4}")
    a(f"v_xor_b32 v{TV+5}, v{TV+5}, v{TV+6}")
    a(f"v_lshlrev_b32 v{TV+4}, 7, v{TV+4}")
    a(f"v_add_u32 v{TV+4}, s{sT0}, v{TV+4}")
    a(f"v_add_u32 v{TV+4}, 8192, v{TV+4}")
    a(f"v_lshl_add_u32 v{WA+8}, v{TV+5}, 4, v{TV+4}")
    a(f"v_xor_b32 v{TV+5}, 1, v{TV+5}")
    a(f"v_lshl_add_u32 v{WA+9}, v{TV+5}, 4, v{TV+4}")
    for i in range(3):
        a(f"v_add_u32 v{TV}, {256*i}, v{vTID}")
        a(f"v_lshrrev_b32 v{TV+1}, 3, v{TV}")
        a(f"v_xor_b32 v{TV+1}, v{TV+1}, v{TV}")
        a(f"v_and_b32 v{TV+1}, 7, v{TV+1}")
        a(f"v_and_b32 v{TV+2}, 0x3f8, v{TV}")
        a(f"v_or_b32 v{TV+1}, v{TV+1}, v{TV+2}")
        a(f"v_lshrrev_b32 v{TV+2}, 4, v{TV+1}")
        a(f"v_mul_u32_u24 v{TV+3}, 205, v{TV+2}")
        a(f"v_lshrrev_b32 v{TV+3}, 10, v{TV+3}")
        a(f"v_mul_u32_u24 v{TV+3}, 315, v{TV+3}")
        a(f"v_add_u32 v{TV+3}, v{TV+3}, v{TV+2}")
        a(f"v_lshlrev_b32 v{TV+3}, 10, v{TV+3}")
        a(f"v_and_b32 v{TV+1}, 15, v{TV+1}")
        a(f"v_lshl_add_u32 v{GA+i}, v{TV+1}, 4, v{TV+3}")

def reduce32(r, t):
    for dpp in ("quad_perm:[1,0,3,2]", "quad_perm:[2,3,0,1]", "row_half_mirror", "row_mirror"):
        a("s_nop 1")
        a(f"v_add_f32_dpp v{r}, v{r}, v{r} {dpp} row_mask:0xf bank_mask:0xf")
    a(f"v_mov_b32 v{t}, v{r}")
    a("s_nop 1")
    a(f"v_permlane16_swap_b32 v{r}, v{t}")
    a("s_nop 1")
    a(f"v_add_f32 v{r}, v{r}, v{t}")

def rne_bf16(dst, src):
    a(f"v_cvt_pk_bf16_f32 v{dst}, v{src}, v{src}")
    a(f"v_and_b32 v{dst}, 0xffff0000, v{dst}")

def ln_compute():
    for m in range(10):
        a(f"v_lshlrev_b32 v{FV+2*m}, 16, v{XR+m}")
        a(f"v_and_b32 v{FV+2*m+1}, 0xffff0000, v{XR+m}")
    s0, s1 = TV, TV+2
    a(f"v_pk_add_f32 {P(s0)}, {P(FV)}, {P(FV+2)}")
    a(f"v_pk_add_f32 {P(s1)}, {P(FV+4)}, {P(FV+6)}")
    for m in range(4, 10):
        s = s0 if m % 2 == 0 else s1
        a(f"v_pk_add_f32 {P(s)}, {P(s)}, {P(FV+2*m)}")
    a(f"v_pk_add_f32 {P(s0)}, {P(s0)}, {P(s1)}")
    mean = TV+4
    a(f"v_add_f32 v{mean}, v{s0}, v{s0+1}")
    reduce32(mean, TV+6)
    a(f"v_mul_f32 v{mean}, {f32hex(1.0/640)}, v{mean}")
    a(f"v_mov_b32 v{mean+1}, v{mean}")
    for m in range(10):
        a(f"v_pk_add_f32 {P(DV+2*m)}, {P(FV+2*m)}, {P(mean)} neg_lo:[0,1] neg_hi:[0,1]")
    a(f"v_pk_mul_f32 {P(s0)}, {P(DV)}, {P(DV)}")
    a(f"v_pk_mul_f32 {P(s1)}, {P(DV+2)}, {P(DV+2)}")
    for m in range(2, 10):
        s = s0 if m % 2 == 0 else s1
        a(f"v_pk_fma_f32 {P(s)}, {P(DV+2*m)}, {P(DV+2*m)}, {P(s)}")
    a(f"v_pk_add_f32 {P(s0)}, {P(s0)}, {P(s1)}")
    var = TV+8
    a(f"v_add_f32 v{var}, v{s0}, v{s0+1}")
    reduce32(var, TV+6)
    a(f"v_mul_f32 v{var}, {f32hex(1.0/640)}, v{var}")
    rs = TV+10
    if args.exact:
        rne_bf16(var, var)
        a(f"v_add_f32 v{var}, {f32hex(1e-5)}, v{var}")
        rne_bf16(var, var)
        a(f"v_sqrt_f32 v{var}, v{var}")
        a("s_nop 0")
        rne_bf16(var, var)
        a(f"v_rcp_f32 v{rs}, v{var}")
        rne_bf16(mean, mean)
        a(f"v_mov_b32 v{mean+1}, v{mean}")
        a(f"v_mov_b32 v{rs+1}, v{rs}")
        for m in range(10):
            a(f"v_pk_add_f32 {P(DV+2*m)}, {P(FV+2*m)}, {P(mean)} neg_lo:[0,1] neg_hi:[0,1]")
        for m in range(10):
            a(f"v_cvt_pk_bf16_f32 v{HP+m}, v{DV+2*m}, v{DV+2*m+1}")
        for m in range(10):
            a(f"v_lshlrev_b32 v{DV+2*m}, 16, v{HP+m}")
            a(f"v_and_b32 v{DV+2*m+1}, 0xffff0000, v{HP+m}")
    else:
        a(f"v_add_f32 v{var}, {f32hex(1e-5)}, v{var}")
        a(f"v_rsq_f32 v{rs}, v{var}")
        a("s_nop 0")
        a(f"v_mov_b32 v{rs+1}, v{rs}")
    for m in range(10):
        a(f"v_pk_mul_f32 {P(DV+2*m)}, {P(DV+2*m)}, {P(rs)}")
    for m in range(10):
        a(f"v_cvt_pk_bf16_f32 v{HP+m}, v{DV+2*m}, v{DV+2*m+1}")
    a(f"s_mov_b32 s{sT0}, 0x05040100")
    a(f"s_mov_b32 s{sT1}, 0x07060302")
    for k in range(5):
        a(f"v_permlane32_swap_b32 v{HP+2*k}, v{HP+2*k+1}")
    a("s_nop 1")
    for k in range(5):
        a(f"v_perm_b32 v{DV+2*k}, v{HP+2*k+1}, v{HP+2*k}, s{sT0}")
        a(f"v_perm_b32 v{DV+2*k+1}, v{HP+2*k+1}, v{HP+2*k}, s{sT1}")
    for k in range(10):
        a(f"ds_write_b32 v{WA+k}, v{DV+k}")
    a(f"v_lshlrev_b32 v{TV}, 4, v{vTID}")
    a(f"v_add_u32 v{TV}, {T_OFF}, v{TV}")
    a(f"s_lshr_b32 s{sT0}, s{sB}, 2")
    a(f"s_mul_i32 s{sT0}, s{sT0}, 5120")
    a(f"s_and_b32 s{sT1}, s{sB}, 3")
    a(f"s_lshl_b32 s{sT1}, s{sT1}, 8")
    a(f"s_add_u32 s{sT0}, s{sT0}, s{sT1}")
    if H_OFF: a(f"s_add_u32 s{sT0}, s{sT0}, {H_OFF}")
    a("s_waitcnt lgkmcnt(0)")
    a("s_barrier")
    a(f"ds_read_b128 v[{FV}:{FV+3}], v{TV}")
    a(f"ds_read_b128 v[{FV+4}:{FV+7}], v{TV} offset:4096")
    a(f"s_cmp_ge_u32 s{sWV}, 2")
    a("s_cbranch_scc1 L_ln_two")
    a(f"ds_read_b128 v[{FV+8}:{FV+11}], v{TV} offset:8192")
    a("s_waitcnt lgkmcnt(0)")
    a(f"buffer_store_dwordx4 v[{FV+8}:{FV+11}], v{GA+2}, s[{srdWS}:{srdWS+3}], s{sT0} offen{SC}")
    a("L_ln_two:")
    a("s_waitcnt lgkmcnt(0)")
    a(f"buffer_store_dwordx4 v[{FV}:{FV+3}], v{GA}, s[{srdWS}:{srdWS+3}], s{sT0} offen{SC}")
    a(f"buffer_store_dwordx4 v[{FV+4}:{FV+7}], v{GA+1}, s[{srdWS}:{srdWS+3}], s{sT0} offen{SC}")

def publish_nonce():
    a(f"s_or_b32 s{sT0}, s{sB}, s{sWV}")
    a(f"s_cmp_lg_u32 s{sT0}, 0")
    a("s_cbranch_scc1 L_no_nonce")
    a(f"s_memrealtime s[{sT0}:{sT0+1}]")
    a("s_waitcnt lgkmcnt(0)")
    a(f"s_or_b32 s{sT1}, s{sT1}, 0x40000000")
    a(f"v_mov_b32 v12, s{sT0}")
    a(f"v_mov_b32 v13, s{sT1}")
    a("v_mov_b32 v14, 0")
    a(f"buffer_store_dwordx2 v[12:13], v14, s[{srdDBG}:{srdDBG+3}], 0 offen sc1")
    a("L_no_nonce:")

def fetch_nonce(label):
    a(f"s_mov_b32 s{sSPIN}, {SPIN_MAX}")
    a("v_mov_b32 v18, 0")
    a(f"{label}:")
    a(f"buffer_load_dwordx2 v[16:17], v18, s[{srdDBG}:{srdDBG+3}], 0 offen sc1")
    a("s_waitcnt vmcnt(0)")
    a(f"v_readfirstlane_b32 s{sNON}, v16")
    a(f"v_readfirstlane_b32 s{sNON+1}, v17")
    a("s_nop 3")
    a(f"s_sub_u32 s{sSPIN}, s{sSPIN}, 1")
    a(f"s_cselect_b32 s{sT0}, 1, s{sNON+1}")
    a(f"s_cmp_eq_u32 s{sT0}, 0")
    a(f"s_cbranch_scc1 {label}")

def store_flag(label, off_sreg):
    a(f"s_cmp_lg_u32 s{sWV}, 0")
    a(f"s_cbranch_scc1 {label}")
    a(f"v_mov_b32 v16, s{sNON}")
    a(f"v_mov_b32 v17, s{sNON+1}")
    a("v_mov_b32 v18, 0")
    a(f"s_mov_b64 s[{sEXEC}:{sEXEC+1}], exec")
    a("s_mov_b64 exec, 1")
    a(f"buffer_store_dwordx2 v[16:17], v18, s[{srdWS}:{srdWS+3}], s{off_sreg} offen sc1")
    a(f"s_mov_b64 exec, s[{sEXEC}:{sEXEC+1}]")
    a("s_nop 1")
    a(f"{label}:")

def poll_flags(label, voff, off_sreg):
    a(f"s_mov_b32 s{sSPIN}, {SPIN_MAX}")
    a(f"{label}:")
    a(f"buffer_load_dwordx2 v[16:17], v{voff}, s[{srdWS}:{srdWS+3}], s{off_sreg} offen sc1")
    a("s_waitcnt vmcnt(0)")
    a(f"v_cmp_ne_u32 vcc, s{sNON}, v16")
    a(f"v_cmp_ne_u32 s[{sT0}:{sT0+1}], s{sNON+1}, v17")
    a("s_nop 3")
    a(f"s_or_b64 vcc, vcc, s[{sT0}:{sT0+1}]")
    a(f"s_cbranch_vccz {label}_ok")
    if args.sleep: a(f"s_sleep {args.sleep}")
    a(f"s_sub_u32 s{sSPIN}, s{sSPIN}, 1")
    a(f"s_cbranch_scc0 {label}")
    a(f"{label}_ok:")

def guarded(label, fn):
    a(f"s_cmp_ge_u32 s{sWV}, 2")
    a(f"s_cbranch_scc1 {label}")
    fn()
    a(f"{label}:")

def main_loop(gemm, nks, optional_last, tail_hook=None):
    depth = min(NA, nks)
    nreal = nks - 1 if optional_last else nks
    def loads(ks):
        for mi in range(5): a_load(ks % NA, mi, ks)
    for ks in range(depth): loads(ks)
    extra = 0
    for ks in range(nks):
        issued_after = max(min(ks + depth - 1, nreal - 1) - ks, 0)
        n = issued_after * 5 + extra
        assert n <= 63
        def body():
            a(f"s_waitcnt vmcnt({n})")
            nxt = ks + depth
            for mi in range(5):
                for c in range(4): mfma(ks == 0, ks, ks % NA, c, mi, gemm)
                if nxt < nreal: a_load(nxt % NA, mi, nxt)
        if optional_last and ks == nks - 1: guarded(f"L_g{gemm}_mm", body)
        else: body()
        nxt = ks + depth
        if optional_last and nxt == nks - 1:
            guarded(f"L_g{gemm}_ld", lambda: loads(nxt))
        if tail_hook is not None and nxt == nks - 1:
            extra += tail_hook()

RT = 16
def reduce_waves():
    a("s_nop 7")
    for c in range(1, 4):
        a(f"s_add_u32 s{sT0}, s{sWV}, {c}")
        a(f"s_and_b32 s{sT0}, s{sT0}, 3")
        a(f"s_mul_i32 s{sT1}, s{sT0}, {RING}")
        a(f"s_add_u32 s{sT1}, s{sT1}, {6*4096}")
        a(f"v_add_u32 v12, s{sT1}, v{vA}")
        if c == 3:
            a(f"s_mul_i32 s{sT1}, s{sT0}, 3072")
            a(f"s_add_u32 s{sT1}, s{sT1}, {T_OFF}")
            a(f"v_add_u32 v13, s{sT1}, v{vA}")
        for mi in range(5):
            blk = (c-1)*5 + mi
            r = acc(c, mi)
            if blk < 12: a(f"ds_write_b128 v12, v[{r}:{r+3}] offset:{blk*1024}")
            else:        a(f"ds_write_b128 v13, v[{r}:{r+3}] offset:{(blk-12)*1024}")
    a(f"s_add_u32 s{sT1}, s{sRING}, {6*4096}")
    a(f"v_add_u32 v76, s{sT1}, v{vA}")
    a(f"s_mul_i32 s{sT1}, s{sWV}, 3072")
    a(f"s_add_u32 s{sT1}, s{sT1}, {T_OFF}")
    a(f"v_add_u32 v77, s{sT1}, v{vA}")
    a("s_waitcnt lgkmcnt(0)")
    a("s_barrier")
    for blk in range(15):
        r = RT + 4*blk
        if blk < 12: a(f"ds_read_b128 v[{r}:{r+3}], v76 offset:{blk*1024}")
        else:        a(f"ds_read_b128 v[{r}:{r+3}], v77 offset:{(blk-12)*1024}")
    for c in range(1, 4):
        a(f"s_waitcnt lgkmcnt({15 - 5*c})")
        for mi in range(5):
            for h in range(2):
                d = acc(0, mi) + 2*h; s = RT + 4*((c-1)*5 + mi) + 2*h
                a(f"v_pk_add_f32 {P(d)}, {P(d)}, {P(s)}")

PK = 80
def pack_swap():
    for mi in range(5):
        d = acc(0, mi); r = PK + 2*mi
        a(f"v_cvt_pk_bf16_f32 v{r}, v{d}, v{d+1}")
        a(f"v_cvt_pk_bf16_f32 v{r+1}, v{d+2}, v{d+3}")
    a(f"v_mov_b32 v{PK+10}, v{PK+8}")
    a(f"v_mov_b32 v{PK+11}, v{PK+9}")
    a("s_nop 1")
    for p in range(3):
        b = PK + 4*p
        a(f"v_permlane16_swap_b32 v{b}, v{b+2}")
        a(f"v_permlane16_swap_b32 v{b+1}, v{b+3}")

def epilogue1():
    reduce_waves()
    a(f"v_lshlrev_b32 v96, 16, v{vBIAS}");   a(f"v_and_b32 v97, 0xffff0000, v{vBIAS}")
    a(f"v_lshlrev_b32 v98, 16, v{vBIAS+1}"); a(f"v_and_b32 v99, 0xffff0000, v{vBIAS+1}")
    c1 = -2.0 * 0.7978845608028654 * 1.4426950408889634
    a(f"v_mov_b32 v100, {f32hex(c1)}"); a(f"v_mov_b32 v101, {f32hex(c1)}")
    a(f"v_mov_b32 v102, {f32hex(c1*0.044715)}"); a(f"v_mov_b32 v103, {f32hex(c1*0.044715)}")
    a("v_mov_b32 v104, 1.0"); a("v_mov_b32 v105, 1.0")
    for mi in range(5):
        d = acc(0, mi)
        for h in range(2):
            a(f"v_pk_add_f32 {P(d+2*h)}, {P(d+2*h)}, {P(96+2*h)}")
    T = 16
    for mi in range(5):
        d = acc(0, mi)
        for h in range(2):
            u = d + 2*h; t = T + 4*mi + 2*h
            a(f"v_pk_mul_f32 {P(t)}, {P(u)}, {P(u)}")
            a(f"v_pk_fma_f32 {P(t)}, {P(t)}, {P(102)}, {P(100)}")
            a(f"v_pk_mul_f32 {P(t)}, {P(t)}, {P(u)}")
        t = T + 4*mi
        for k in range(4): a(f"v_exp_f32 v{t+k}, v{t+k}")
        for h in range(2): a(f"v_pk_add_f32 {P(t+2*h)}, {P(t+2*h)}, {P(104)}")
        for k in range(4): a(f"v_rcp_f32 v{t+k}, v{t+k}")
        a("s_nop 0")
        for h in range(2): a(f"v_pk_mul_f32 {P(d+2*h)}, {P(d+2*h)}, {P(t+2*h)}")
    pack_swap()
    a(f"v_lshrrev_b32 v12, 4, v{vLANE}")
    a("v_and_b32 v13, 1, v12")
    a("v_lshlrev_b32 v13, 10, v13")
    a("v_lshrrev_b32 v12, 1, v12")
    a("v_lshl_add_u32 v13, v12, 8, v13")
    a(f"v_and_b32 v12, 15, v{vLANE}")
    a("v_lshl_add_u32 v13, v12, 4, v13")
    a(f"v_and_b32 v12, 0xfffffbff, v13")
    a(f"s_mul_i32 s{sT0}, s{sDT}, 54")
    a(f"s_lshl_b32 s{sT1}, s{sFT}, 1")
    a(f"s_add_u32 s{sT0}, s{sT0}, s{sT1}")
    a(f"s_lshr_b32 s{sT1}, s{sWV}, 1")
    a(f"s_add_u32 s{sT0}, s{sT0}, s{sT1}")
    a(f"s_mul_i32 s{sT0}, s{sT0}, 5120")
    a(f"s_and_b32 s{sT1}, s{sWV}, 1")
    a(f"s_lshl_b32 s{sT1}, s{sT1}, 9")
    a(f"s_add_u32 s{sT0}, s{sT0}, s{sT1}")
    a(f"s_add_u32 s{sT0}, s{sT0}, {G_OFF}")
    a(f"s_add_u32 s{sT1}, s{sT0}, 4096")
    a(f"buffer_store_dwordx4 v[{PK}:{PK+3}], v13, s[{srdWS}:{srdWS+3}], s{sT0} offen{SC}")
    a(f"buffer_store_dwordx4 v[{PK+4}:{PK+7}], v13, s[{srdWS}:{srdWS+3}], s{sT0} offen offset:2048{SC}")
    a(f"buffer_store_dwordx4 v[{PK+8}:{PK+11}], v12, s[{srdWS}:{srdWS+3}], s{sT1} offen{SC}")

def epilogue2():
    reduce_waves()
    a(f"v_lshlrev_b32 v96, 16, v{vBIAS}")
    a("v_mov_b32 v97, v96")
    for mi in range(5):
        d = acc(0, mi)
        for h in range(2):
            a(f"v_pk_add_f32 {P(d+2*h)}, {P(d+2*h)}, {P(96)}")
    pack_swap()
    a(f"v_lshrrev_b32 v12, 4, v{vLANE}")
    a("v_and_b32 v13, 1, v12")
    a("v_lshlrev_b32 v13, 5, v13")
    a("v_lshrrev_b32 v12, 1, v12")
    a("v_lshl_add_u32 v13, v12, 4, v13")
    a(f"v_and_b32 v12, 15, v{vLANE}")
    a("v_mul_u32_u24 v12, 1280, v12")
    a("v_add_u32 v13, v13, v12")
    a(f"v_and_b32 v12, 16, v{vLANE}")
    a("v_lshlrev_b32 v12, 1, v12")
    a("v_sub_u32 v12, v13, v12")
    a(f"s_lshl_b32 s{sT0}, s{sST}, 2")
    a(f"s_add_u32 s{sT0}, s{sT0}, s{sWV}")
    a(f"s_mul_i32 s{sT0}, s{sT0}, {16*1280}")
    a(f"s_mul_i32 s{sT1}, s{sDT}, 160")
    a(f"s_add_u32 s{sT0}, s{sT0}, s{sT1}")
    a(f"buffer_store_dwordx4 v[{PK}:{PK+3}], v13, s[{srdOUT}:{srdOUT+3}], s{sT0} offen")
    a(f"buffer_store_dwordx4 v[{PK+4}:{PK+7}], v13, s[{srdOUT}:{srdOUT+3}], s{sT0} offen offset:64")
    a(f"buffer_store_dwordx4 v[{PK+8}:{PK+11}], v12, s[{srdOUT}:{srdOUT+3}], s{sT0} offen offset:128")

def set_w1_base():
    a(f"s_lshl_b32 s{sT0}, s{sWV}, 4")
    a(f"s_mul_i32 s{sWOFF}, s{sT0}, {W1_KS}")
    a(f"s_lshl_b32 s{sT0}, s{sFT}, 7")
    a(f"s_add_u32 s{sWOFF}, s{sWOFF}, s{sT0}")
def set_h_base():
    a(f"s_lshl_b32 s{sT0}, s{sDT}, 6")
    a(f"s_lshl_b32 s{sT1}, s{sWV}, 4")
    a(f"s_add_u32 s{sT0}, s{sT0}, s{sT1}")
    a(f"s_mul_i32 s{sAOFF}, s{sT0}, 5120")
    if H_OFF: a(f"s_add_u32 s{sAOFF}, s{sAOFF}, {H_OFF}")
def k2_start(dst):
    a(f"s_mul_i32 s{dst}, s{sWV}, 14")
    a(f"s_cmp_eq_u32 s{sWV}, 3")
    a(f"s_cselect_b32 s{sT3}, 1, 0")
    a(f"s_sub_u32 s{dst}, s{dst}, s{sT3}")
def set_w2_base():
    k2_start(sT0)
    a(f"s_mul_i32 s{sWOFF}, s{sT0}, {W2_KS}")
    a(f"s_lshl_b32 s{sT0}, s{sST}, 7")
    a(f"s_add_u32 s{sWOFF}, s{sWOFF}, s{sT0}")
def set_g_base():
    k2_start(sT0)
    a(f"s_mul_i32 s{sT1}, s{sDT}, 54")
    a(f"s_add_u32 s{sT0}, s{sT0}, s{sT1}")
    a(f"s_mul_i32 s{sAOFF}, s{sT0}, 5120")
    a(f"s_add_u32 s{sAOFF}, s{sAOFF}, {G_OFF}")

def stage_weights(srd, kstride, nks, landed, optional_last, tag):
    nreal = nks - 1 if optional_last else nks
    st = {"nxt": landed}
    def issue():
        n = st["nxt"]
        fn = lambda: dma_step(srd, n, n % NSLOT, kstride)
        if optional_last and n == nks - 1: guarded(f"L_{tag}_d{n}", fn)
        else: fn()
        st["nxt"] += 1
    while st["nxt"] < min(NSLOT, nks): issue()
    for ks in range(nks):
        def body():
            if ks >= landed:
                n = max(min(st["nxt"], nreal) - 1 - ks, 0) * 4
                a(f"s_waitcnt vmcnt({n})")
            tr_step(ks, ks % NSLOT)
        if optional_last and ks == nks - 1: guarded(f"L_{tag}_tr", body)
        else: body()
        if ks >= 1 and st["nxt"] < nks:
            a("s_waitcnt lgkmcnt(8)")
            issue()
    a("s_waitcnt lgkmcnt(0)")

file_begin(a, [(MAIN, 256, 256, LDS_BYTES)])
prologue(MAIN, "L_end")
stamp("kernarg")
publish_nonce()
ln_issue()
if args.codepf: code_prefetch()
npf = 1 if args.codepf else 0
dma_offsets(W1_ROW)
set_w1_base()
a(f"s_cmp_eq_u32 s{sROLE}, 0")
a("s_cbranch_scc1 L_nopre")
for ks in range(args.npre): dma_step(srdW1, ks, ks, W1_KS)
a("L_nopre:")
ln_addresses()
tr_addresses()
a(f"s_cmp_eq_u32 s{sROLE}, 0")
a("s_cbranch_scc1 L_xw_idle")
a(f"s_waitcnt vmcnt({args.npre*4 + npf})")
a("s_branch L_xw_done")
a("L_xw_idle:")
a(f"s_waitcnt vmcnt({npf})")
a("L_xw_done:")
stamp("x landed")
ln_compute()
stamp("h stores issued")
fetch_nonce("L_nonce")
a("s_barrier")
a(f"s_lshl_b32 s{sT2}, s{sB}, 6")
a(f"s_add_u32 s{sT2}, s{sT2}, {FL_LN}")
store_flag("L_flag_ln", sT2)
stamp("LN flag stored")
a(f"s_cmp_eq_u32 s{sROLE}, 0")
a("s_cbranch_scc1 L_idle")
i_branch = nstamp[0]
a(f"s_lshl_b32 s{sT0}, s{sFT}, 7")
a(f"s_lshl_b32 s{sT1}, s{sWV}, 5")
a(f"s_add_u32 s{sT0}, s{sT0}, s{sT1}")
a(f"v_lshrrev_b32 v12, 4, v{vLANE}")
a("v_lshlrev_b32 v12, 3, v12")
a(f"buffer_load_dwordx2 v[{vBIAS}:{vBIAS+1}], v12, s[{srdB1}:{srdB1+3}], s{sT0} offen")
stage_weights(srdW1, W1_KS, 16, args.npre, False, "w1")
a("s_barrier")
stamp("w1 in regs")
set_h_base()
a(f"s_lshl_b32 s{sT2}, s{sWV}, 12")
a(f"s_add_u32 s{sT2}, s{sT2}, {FL_LN}")
a(f"v_lshlrev_b32 v18, 6, v{vLANE}")
poll_flags("L_poll_ln", 18, sT2)
stamp("LN flags seen")
def w2_early():
    dma_offsets(W2_ROW)
    set_w2_base()
    for ks in range(args.n2pre): dma_step(srdW2, ks, ks, W2_KS)
    return args.n2pre * 4
main_loop(1, 16, False, w2_early)
stamp("main1 done")
epilogue1()
stamp("G stores issued")
a("s_waitcnt vmcnt(0)")
a("s_barrier")
a(f"s_lshl_b32 s{sT2}, s{sDT}, 5")
a(f"s_add_u32 s{sT2}, s{sT2}, s{sFT}")
a(f"s_lshl_b32 s{sT2}, s{sT2}, 6")
a(f"s_add_u32 s{sT2}, s{sT2}, {FL_G}")
store_flag("L_flag_g", sT2)
stamp("G flag stored")
i_join = nstamp[0]
a("s_branch L_gemm2")
a("L_idle:")
nstamp[0] = i_branch
if args.w2pf:
    a(f"s_lshr_b32 s{sT0}, s{sB}, 3")
    a(f"s_lshr_b32 s{sT1}, s{sT0}, 2")
    a(f"s_cmp_lg_u32 s{sT1}, 7")
    a("s_cbranch_scc1 L_idle_done")
    a(f"s_and_b32 s{sT0}, s{sT0}, 3")
    a(f"s_lshl_b32 s{sT0}, s{sT0}, 2")
    a(f"s_add_u32 s{sT0}, s{sT0}, s{sWV}")
    a(f"s_mul_i32 s{sT0}, s{sT0}, {108*W2_ROW}")
    a(f"s_lshl_b32 s{sT1}, s{sJ}, 10")
    a(f"s_add_u32 s{sT0}, s{sT0}, s{sT1}")
    a(f"s_mov_b32 s{sT1}, 108")
    a("L_pf_loop:")
    a(f"buffer_load_dwordx4 v[16:19], v{vA}, s[{srdW2}:{srdW2+3}], s{sT0} offen")
    a("s_waitcnt vmcnt(48)")
    a(f"s_add_u32 s{sT0}, s{sT0}, {W2_ROW}")
    a(f"s_sub_u32 s{sT1}, s{sT1}, 1")
    a(f"s_cmp_lg_u32 s{sT1}, 0")
    a("s_cbranch_scc1 L_pf_loop")
    a("s_waitcnt vmcnt(0)")
a("L_idle_done:")
while nstamp[0] < i_join and args.stamps: stamp("idle")
dma_offsets(W2_ROW)
set_w2_base()
for ks in range(args.n2pre): dma_step(srdW2, ks, ks, W2_KS)
a("s_waitcnt vmcnt(0)")
a("L_gemm2:")
a(f"s_lshl_b32 s{sT0}, s{sST}, 7")
a(f"s_lshl_b32 s{sT1}, s{sWV}, 5")
a(f"s_add_u32 s{sT0}, s{sT0}, s{sT1}")
a(f"v_and_b32 v12, 15, v{vLANE}")
a("v_lshlrev_b32 v12, 1, v12")
a(f"buffer_load_ushort v{vBIAS}, v12, s[{srdB2}:{srdB2+3}], s{sT0} offen")
stage_weights(srdW2, W2_KS, 14, args.n2pre, True, "w2")
a("s_barrier")
stamp("w2 in regs")
set_g_base()
a(f"s_mul_i32 s{sT2}, s{sWV}, 7")
a(f"s_cmp_eq_u32 s{sWV}, 3")
a(f"s_cselect_b32 s{sT3}, 1, 0")
a(f"s_sub_u32 s{sT2}, s{sT2}, s{sT3}")
a(f"s_lshl_b32 s{sT3}, s{sDT}, 5")
a(f"s_add_u32 s{sT2}, s{sT2}, s{sT3}")
a(f"s_lshl_b32 s{sT2}, s{sT2}, 6")
a(f"s_add_u32 s{sT2}, s{sT2}, {FL_G}")
a(f"v_min_u32 v18, 6, v{vLANE}")
a("v_lshlrev_b32 v18, 6, v18")
poll_flags("L_poll_g", 18, sT2)
stamp("G flags seen")
main_loop(2, 14, True)
stamp("main2 done")
epilogue2()
stamp("end")
write_stamps("L_st", STAMP)
a("L_end:")
a("s_endpgm")
a("L_code_end:")
kernel_desc(a, MAIN, 512, 102, 256)
print(a.text())
```

```python
import sys, argparse, struct
sys.path.insert(0, "tools")
from asmlib import *

ap = argparse.ArgumentParser()
ap.add_argument("--stamps", type=int, default=0)
ap.add_argument("--npre", type=int, default=3)
ap.add_argument("--codepf", type=int, default=1)
ap.add_argument("--w2pf", type=int, default=1)
ap.add_argument("--exact", type=int, default=1)
ap.add_argument("--n2pre", type=int, default=4)
ap.add_argument("--sleep", type=int, default=1)
ap.add_argument("--asc", default="sc1")
ap.add_argument("--ssc", default="sc1")
ap.add_argument("--nomfma", type=int, default=0)
ap.add_argument("--na", type=int, default=8)
ap.add_argument("--rot", type=int, default=1)
ap.add_argument("--n1", type=int, default=2)
ap.add_argument("--n2", type=int, default=3)
ap.add_argument("--groups", type=int, default=8)
ap.add_argument("--xfl", default="nt")
ap.add_argument("--w1fl", default="none")
ap.add_argument("--w2fl", default="none")
ap.add_argument("--pffl", default="none")
ap.add_argument("--ofl", default="none")
ap.add_argument("--pfwait", type=int, default=1)
ap.add_argument("--rotmode", default="qd")
ap.add_argument("--rotmode2", default="qd")
ap.add_argument("--groups2", type=int, default=8)
ap.add_argument("--hookat", type=int, default=15)
ap.add_argument("--map1", default="2d")
ap.add_argument("--mstamps", type=int, default=0)
args = ap.parse_args()

def fl(s): return "" if s == "none" else " " + s.replace("+", " ")
def f32hex(x): return "0x%08x" % struct.unpack("<I", struct.pack("<f", x))[0]

S, D, F = 2048, 640, 1728
H_OFF   = 0
G_OFF   = 0x280000
FL_LN   = 0x500000
FL_G    = 0x508000
STAMP   = 0x8000000
W1_ROW, W2_ROW = 3456, 4096
W1_KS, W2_KS = 32 * W1_ROW, 32 * W2_ROW
RING = 36864
NSLOT = 9
T_OFF = 147456
LDS_BYTES = 163840
SPIN_MAX = 200000
SC = (" " + args.ssc.replace("+", " ")) if args.ssc != "none" else ""
ASC = (" " + args.asc.replace("+", " ")) if args.asc != "none" else ""

sB, sWV = 2, 3
sDT, sFT, sST, sROLE = 4, 5, 6, 7
srdX, srdW1, srdW2, srdB1, srdB2, srdOUT, srdDBG, srdWS = 8, 12, 16, 20, 24, 28, 32, 36
sNON = 40
sT0, sT1, sT2, sT3 = 42, 43, 44, 45
sRING = 46
sOFF = 47
sKARG = 48
sSTAMP = 64
sWOFF = 96
sAOFF = 97
sSPIN = 98
sJ = 99
sEXEC = 100
sWBASE, sWEND, sABASE, sAEND, sROT = 48, 49, 50, 51, 52
sDT1, sIDLE = 94, 95

vTID, vLANE = 0, 1
vA, vA2 = 2, 3
vD = 4
vT = 8
vBIAS = 14
ABUF = 16
NA = args.na
ACC = 176
def acc(c, mi): return ACC + (c * 5 + mi) * 4
def abuf(slot, mi): return ABUF + slot * 20 + mi * 4
P = lambda r: f"v[{r}:{r+1}]"

a = Asm()
class VM:
    def __init__(self): self.ops = []
    def issue(self, tag, optional=False): self.ops.append((tag, optional))
    def count_after(self, tag):
        idx = max(i for i, (t, o) in enumerate(self.ops) if t == tag)
        return sum(1 for t, o in self.ops[idx+1:] if not o)
    def wait(self, tag):
        n = self.count_after(tag)
        assert n <= 63, (tag, n)
        a(f"s_waitcnt vmcnt({n})")
    def drained(self): self.ops = [(t, o) for t, o in self.ops[-1:]] and [("_", True)]
    def copy(self):
        v = VM(); v.ops = list(self.ops); return v
vm = VM()
nstamp = [0]
NSTAMPS = 28
stamp_names = {}
def stamp(name):
    if not args.stamps: return
    i = nstamp[0]; nstamp[0] += 1
    assert i < NSTAMPS
    stamp_names.setdefault(i, name)
    a("s_memrealtime s[92:93]")
    a("s_waitcnt lgkmcnt(0)")
    a(f"s_mov_b32 s{sSTAMP+i}, s92")

def write_stamps(label, base):
    if not args.stamps: return
    a(f"s_cmp_lg_u32 s{sWV}, {args.stamps - 1}")
    a(f"s_cbranch_scc1 {label}_nostamp")
    a(f"s_mul_i32 s{sT0}, s{sB}, 128")
    a(f"s_add_u32 s{sT0}, s{sT0}, {base}")
    a("v_mov_b32 v12, 0")
    a("s_mov_b64 exec, 1")
    for i in range(0, NSTAMPS, 4):
        for k in range(4):
            if i + k < nstamp[0]: a(f"v_mov_b32 v{16+k}, s{sSTAMP + i + k}")
            else:                 a(f"v_mov_b32 v{16+k}, 0")
        a(f"buffer_store_dwordx4 v[16:19], v12, s[{srdWS}:{srdWS+3}], s{sT0} offen offset:{i*4}")
        a("s_nop 2")
    a(f"{label}_nostamp:")
    for i in sorted(stamp_names): a(f"; STAMPNAME {i} {stamp_names[i]}")

def mk_srd(d, p, nbytes):
    a(f"s_mov_b32 s{d}, s{p}")
    a(f"s_and_b32 s{d+1}, s{p+1}, 0xffff")
    a(f"s_mov_b32 s{d+2}, {nbytes}")
    a(f"s_mov_b32 s{d+3}, 0x00020000")

def prologue(name, endlabel):
    kernel_begin(a, name)
    stamp("start")
    a(f"s_cmp_ge_u32 s{sB}, 256")
    a(f"s_cbranch_scc1 {endlabel}")
    a(f"s_load_dwordx16 s[{sKARG}:{sKARG+15}], s[0:1], 0")
    a(f"v_and_b32 v{vLANE}, 63, v{vTID}")
    a(f"v_lshrrev_b32 v12, 6, v{vTID}")
    a(f"v_lshlrev_b32 v{vA}, 4, v{vLANE}")
    a(f"v_readfirstlane_b32 s{sWV}, v12")
    a(f"v_add_u32 v{vA2}, 0x1000, v{vA}")
    if args.codepf: code_prefetch()
    a(f"s_and_b32 s{sT0}, s{sB}, 1")
    a(f"s_lshl_b32 s{sT0}, s{sT0}, 2")
    a(f"s_lshr_b32 s{sT1}, s{sB}, 3")
    a(f"s_and_b32 s{sT2}, s{sT1}, 3")
    a(f"s_add_u32 s{sDT}, s{sT0}, s{sT2}")
    a(f"s_lshr_b32 s{sT1}, s{sT1}, 2")
    a(f"s_bfe_u32 s{sJ}, s{sB}, 0x20001")
    a(f"s_lshl_b32 s{sT2}, s{sJ}, 3")
    a(f"s_add_u32 s{sST}, s{sT2}, s{sT1}")
    if args.map1 == "2d":
        a(f"s_mov_b32 s{sDT1}, s{sDT}")
        a(f"s_mul_i32 s{sT2}, s{sJ}, 7")
        a(f"s_add_u32 s{sFT}, s{sT2}, s{sT1}")
        a(f"s_cmp_eq_u32 s{sJ}, 3")
        a(f"s_cselect_b32 s{sT2}, 6, 7")
        a(f"s_cmp_lt_u32 s{sT1}, s{sT2}")
        a(f"s_cselect_b32 s{sROLE}, 1, 0")
        a(f"s_and_b32 s{sT0}, s{sB}, 7")
        a(f"s_and_b32 s{sT2}, s{sB}, 1")
        a(f"s_add_u32 s{sT2}, s{sT2}, 8")
        a(f"s_cmp_eq_u32 s{sT1}, 7")
        a(f"s_cselect_b32 s{sT0}, s{sT0}, s{sT2}")
        a(f"s_lshl_b32 s{sT0}, s{sT0}, 2")
        a(f"s_bfe_u32 s{sT2}, s{sB}, 0x20003")
        a(f"s_add_u32 s{sIDLE}, s{sT0}, s{sT2}")
    else:
        a(f"s_bfe_u32 s{sDT1}, s{sB}, 0x30003")
        a(f"s_lshr_b32 s{sT0}, s{sB}, 6")
        a(f"s_lshl_b32 s{sT0}, s{sT0}, 3")
        a(f"s_and_b32 s{sT2}, s{sB}, 7")
        a(f"s_add_u32 s{sFT}, s{sT0}, s{sT2}")
        a(f"s_cmp_lt_u32 s{sFT}, 27")
        a(f"s_cselect_b32 s{sROLE}, 1, 0")
        a(f"s_sub_u32 s{sT0}, s{sFT}, 27")
        a(f"s_lshl_b32 s{sT0}, s{sT0}, 3")
        a(f"s_add_u32 s{sIDLE}, s{sT0}, s{sDT1}")
    a(f"s_mul_i32 s{sRING}, s{sWV}, {RING}")
    a("s_waitcnt lgkmcnt(0)")
    mk_srd(srdX,   sKARG+0,  S*D*2)
    mk_srd(srdW1,  sKARG+2,  S*F*2)
    mk_srd(srdB1,  sKARG+4,  F*2)
    mk_srd(srdW2,  sKARG+6,  F*S*2)
    mk_srd(srdB2,  sKARG+8,  S*2)
    mk_srd(srdOUT, sKARG+10, S*D*2)
    mk_srd(srdDBG, sKARG+12, 256)
    mk_srd(srdWS,  sKARG+14, 268435456)

def code_prefetch():
    a(f"s_getpc_b64 s[{sT0}:{sT0+1}]")
    a("L_pf_base:")
    a("s_nop 2")
    a(f"s_lshr_b32 s{sT2}, s{sB}, 3")
    a(f"s_and_b32 s{sT2}, s{sT2}, 7")
    a(f"s_lshl_b32 s{sT2}, s{sT2}, 2")
    a(f"s_add_u32 s{sT2}, s{sT2}, s{sWV}")
    a(f"s_min_u32 s{sT2}, s{sT2}, (L_code_end - L_pf_base) / 1024 - 1")
    a(f"s_lshl_b32 s{sT2}, s{sT2}, 10")
    a(f"s_add_u32 s{sT0}, s{sT0}, s{sT2}")
    a(f"s_addc_u32 s{sT1}, s{sT1}, 0")
    a(f"global_load_dwordx4 v[96:99], v{vA}, s[{sT0}:{sT0+1}]")

def dma_offsets(row):
    a(f"v_lshrrev_b32 v12, 3, v{vLANE}")
    a(f"v_and_b32 v13, 2, v12")
    a(f"v_mul_u32_u24 v12, {row}, v12")
    a(f"v_and_b32 v{vD+2}, 7, v{vLANE}")
    a(f"v_xor_b32 v13, v13, v{vD+2}")
    a(f"v_lshl_add_u32 v{vD}, v13, 4, v12")
    a(f"v_xor_b32 v13, 4, v13")
    a(f"v_lshl_add_u32 v{vD+1}, v13, 4, v12")
    a(f"v_add_u32 v{vD+1}, {8*row}, v{vD+1}")
    a(f"v_add_u32 v{vD+2}, {16*row}, v{vD}")
    a(f"v_add_u32 v{vD+3}, {16*row}, v{vD+1}")

def tr_addresses():
    a(f"v_lshrrev_b32 v12, 4, v{vLANE}")
    a(f"v_bfe_u32 v13, v{vLANE}, 2, 2")
    a(f"v_lshl_add_u32 v14, v12, 3, v13")
    a(f"v_lshlrev_b32 v14, 7, v14")
    a(f"v_and_b32 v15, 1, v{vLANE}")
    a(f"v_lshl_add_u32 v14, v15, 3, v14")
    a(f"v_add_u32 v14, s{sRING}, v14")
    a(f"v_and_b32 v12, 1, v12")
    a(f"v_lshlrev_b32 v12, 2, v12")
    a(f"v_and_b32 v13, 2, v13")
    a(f"v_or_b32 v12, v12, v13")
    a(f"v_bfe_u32 v13, v{vLANE}, 1, 1")
    a(f"v_xor_b32 v12, v12, v13")
    for c in range(4):
        a(f"s_add_u32 s{sT0}, s{sWV}, {c}")
        a(f"s_and_b32 s{sT0}, s{sT0}, 3")
        a(f"s_lshl_b32 s{sT0}, s{sT0}, 1")
        a(f"v_xor_b32 v13, s{sT0}, v12")
        a(f"v_lshl_add_u32 v{vT+c}, v13, 4, v14")

def advance(run, base, end, stride):
    a(f"s_add_u32 s{run}, s{run}, {stride}")
    a(f"s_cmp_eq_u32 s{run}, s{end}")
    a(f"s_cselect_b32 s{run}, s{base}, s{run}")

def dma_step(srd, ks, slot, kstride, fixed=False, optional=False):
    off = sWOFF
    if fixed:
        a(f"s_add_u32 s{sOFF}, s{sWBASE}, {ks*kstride}"); off = sOFF
    for q in range(4):
        a(f"s_add_u32 m0, s{sRING}, {slot*4096 + q*1024}")
        a("s_nop 0")
        a(f"buffer_load_dwordx4 v{vD+q}, s[{srd}:{srd+3}], s{off} offen{fl(args.w1fl if srd == srdW1 else args.w2fl)} lds")
        vm.issue((srd, ks), optional)
    if not fixed: advance(sWOFF, sWBASE, sWEND, kstride)

def tr_step(ks, slot):
    for c in range(4):
        for t in range(2):
            r = 16*ks + 4*c + 2*t
            a(f"ds_read_b64_tr_b16 a[{r}:{r+1}], v{vT+c} offset:{slot*4096 + t*512}")

def a_load(slot, mi, ks, fixed=False):
    r = abuf(slot, mi)
    off = sAOFF
    if fixed:
        off = sOFF
        if mi == 0: a(f"s_add_u32 s{sOFF}, s{sABASE}, {ks*5120}")
    if mi < 4:
        a(f"buffer_load_dwordx4 v[{r}:{r+3}], v{vA}, s[{srdWS}:{srdWS+3}], s{off} offen offset:{mi*1024}{ASC}")
    else:
        a(f"buffer_load_dwordx4 v[{r}:{r+3}], v{vA2}, s[{srdWS}:{srdWS+3}], s{off} offen{ASC}")
        if not fixed: advance(sAOFF, sABASE, sAEND, 5120)
    vm.issue(("A", ks), fixed)

def mfma(first, ks, slot, c, mi, gemm):
    if args.nomfma and not first: return
    d = acc(c, mi); wr = 16*ks + 4*c; ar = abuf(slot, mi)
    cin = "0" if first else f"v[{d}:{d+3}]"
    if gemm == 1:
        a(f"v_mfma_f32_16x16x32_bf16 v[{d}:{d+3}], a[{wr}:{wr+3}], v[{ar}:{ar+3}], {cin}")
    else:
        a(f"v_mfma_f32_16x16x32_bf16 v[{d}:{d+3}], v[{ar}:{ar+3}], a[{wr}:{wr+3}], {cin}")

XR = 16
FV = 28
DV = 48
HP = 68
WA = 80
GA = 92
TV = 100
def ln_issue():
    a(f"s_lshl_b32 s{sT0}, s{sB}, 3")
    a(f"s_lshl_b32 s{sT1}, s{sWV}, 1")
    a(f"s_add_u32 s{sT0}, s{sT0}, s{sT1}")
    a(f"s_mul_i32 s{sT0}, s{sT0}, 1280")
    a(f"v_lshrrev_b32 v12, 5, v{vLANE}")
    a(f"v_mul_u32_u24 v12, 1280, v12")
    a(f"v_and_b32 v13, 31, v{vLANE}")
    a(f"v_lshl_add_u32 v14, v13, 4, v12")
    a(f"v_lshl_add_u32 v15, v13, 3, v12")
    a(f"buffer_load_dwordx4 v[{XR}:{XR+3}], v14, s[{srdX}:{srdX+3}], s{sT0} offen{fl(args.xfl)}")
    a(f"buffer_load_dwordx4 v[{XR+4}:{XR+7}], v14, s[{srdX}:{srdX+3}], s{sT0} offen offset:512{fl(args.xfl)}")
    a(f"buffer_load_dwordx2 v[{XR+8}:{XR+9}], v15, s[{srdX}:{srdX+3}], s{sT0} offen offset:1024{fl(args.xfl)}")
    for _ in range(3): vm.issue("x")

def ln_addresses():
    a(f"v_and_b32 v{TV}, 31, v{vLANE}")
    a(f"v_lshrrev_b32 v{TV+1}, 5, v{vLANE}")
    a(f"v_lshlrev_b32 v{TV+1}, 1, v{TV+1}")
    a(f"s_lshl_b32 s{sT0}, s{sWV}, 2")
    a(f"s_add_u32 s{sT0}, s{sT0}, {T_OFF}")
    a(f"v_and_b32 v{TV+2}, 7, v{TV}")
    a(f"v_xor_b32 v{TV+2}, v{TV+2}, v{TV+1}")
    a(f"v_lshlrev_b32 v{TV+3}, 7, v{TV}")
    a(f"v_add_u32 v{TV+3}, s{sT0}, v{TV+3}")
    for k in range(4):
        base = 4096 if k >= 2 else 0
        e = 4 if (k & 1) else 0
        for o in range(2):
            a(f"v_xor_b32 v{TV+4}, {e + o}, v{TV+2}")
            a(f"v_lshl_add_u32 v{WA + 2*k + o}, v{TV+4}, 4, v{TV+3}")
            if base: a(f"v_add_u32 v{WA + 2*k + o}, {base}, v{WA + 2*k + o}")
    a(f"v_lshrrev_b32 v{TV+4}, 1, v{TV}")
    a(f"v_and_b32 v{TV+5}, 1, v{TV}")
    a(f"v_lshl_add_u32 v{TV+5}, v{TV+5}, 2, v{TV+1}")
    a(f"v_and_b32 v{TV+6}, 7, v{TV+4}")
    a(f"v_xor_b32 v{TV+5}, v{TV+5}, v{TV+6}")
    a(f"v_lshlrev_b32 v{TV+4}, 7, v{TV+4}")
    a(f"v_add_u32 v{TV+4}, s{sT0}, v{TV+4}")
    a(f"v_add_u32 v{TV+4}, 8192, v{TV+4}")
    a(f"v_lshl_add_u32 v{WA+8}, v{TV+5}, 4, v{TV+4}")
    a(f"v_xor_b32 v{TV+5}, 1, v{TV+5}")
    a(f"v_lshl_add_u32 v{WA+9}, v{TV+5}, 4, v{TV+4}")
    for i in range(3):
        a(f"v_add_u32 v{TV}, {256*i}, v{vTID}")
        a(f"v_lshrrev_b32 v{TV+1}, 3, v{TV}")
        a(f"v_xor_b32 v{TV+1}, v{TV+1}, v{TV}")
        a(f"v_and_b32 v{TV+1}, 7, v{TV+1}")
        a(f"v_and_b32 v{TV+2}, 0x3f8, v{TV}")
        a(f"v_or_b32 v{TV+1}, v{TV+1}, v{TV+2}")
        a(f"v_lshrrev_b32 v{TV+2}, 4, v{TV+1}")
        a(f"v_mul_u32_u24 v{TV+3}, 205, v{TV+2}")
        a(f"v_lshrrev_b32 v{TV+3}, 10, v{TV+3}")
        a(f"v_mul_u32_u24 v{TV+3}, 315, v{TV+3}")
        a(f"v_add_u32 v{TV+3}, v{TV+3}, v{TV+2}")
        a(f"v_lshlrev_b32 v{TV+3}, 10, v{TV+3}")
        a(f"v_and_b32 v{TV+1}, 15, v{TV+1}")
        a(f"v_lshl_add_u32 v{GA+i}, v{TV+1}, 4, v{TV+3}")

def reduce32(r, t):
    for dpp in ("quad_perm:[1,0,3,2]", "quad_perm:[2,3,0,1]", "row_half_mirror", "row_mirror"):
        a("s_nop 1")
        a(f"v_add_f32_dpp v{r}, v{r}, v{r} {dpp} row_mask:0xf bank_mask:0xf")
    a(f"v_mov_b32 v{t}, v{r}")
    a("s_nop 1")
    a(f"v_permlane16_swap_b32 v{r}, v{t}")
    a("s_nop 1")
    a(f"v_add_f32 v{r}, v{r}, v{t}")

def rne_bf16(dst, src):
    a(f"v_cvt_pk_bf16_f32 v{dst}, v{src}, v{src}")
    a(f"v_and_b32 v{dst}, 0xffff0000, v{dst}")

def ln_compute():
    for m in range(10):
        a(f"v_lshlrev_b32 v{FV+2*m}, 16, v{XR+m}")
        a(f"v_and_b32 v{FV+2*m+1}, 0xffff0000, v{XR+m}")
    s0, s1 = TV, TV+2
    a(f"v_pk_add_f32 {P(s0)}, {P(FV)}, {P(FV+2)}")
    a(f"v_pk_add_f32 {P(s1)}, {P(FV+4)}, {P(FV+6)}")
    for m in range(4, 10):
        s = s0 if m % 2 == 0 else s1
        a(f"v_pk_add_f32 {P(s)}, {P(s)}, {P(FV+2*m)}")
    a(f"v_pk_add_f32 {P(s0)}, {P(s0)}, {P(s1)}")
    mean = TV+4
    a(f"v_add_f32 v{mean}, v{s0}, v{s0+1}")
    reduce32(mean, TV+6)
    a(f"v_mul_f32 v{mean}, {f32hex(1.0/640)}, v{mean}")
    a(f"v_mov_b32 v{mean+1}, v{mean}")
    for m in range(10):
        a(f"v_pk_add_f32 {P(DV+2*m)}, {P(FV+2*m)}, {P(mean)} neg_lo:[0,1] neg_hi:[0,1]")
    a(f"v_pk_mul_f32 {P(s0)}, {P(DV)}, {P(DV)}")
    a(f"v_pk_mul_f32 {P(s1)}, {P(DV+2)}, {P(DV+2)}")
    for m in range(2, 10):
        s = s0 if m % 2 == 0 else s1
        a(f"v_pk_fma_f32 {P(s)}, {P(DV+2*m)}, {P(DV+2*m)}, {P(s)}")
    a(f"v_pk_add_f32 {P(s0)}, {P(s0)}, {P(s1)}")
    var = TV+8
    a(f"v_add_f32 v{var}, v{s0}, v{s0+1}")
    reduce32(var, TV+6)
    a(f"v_mul_f32 v{var}, {f32hex(1.0/640)}, v{var}")
    rs = TV+10
    if args.exact:
        rne_bf16(var, var)
        a(f"v_add_f32 v{var}, {f32hex(1e-5)}, v{var}")
        rne_bf16(var, var)
        a(f"v_sqrt_f32 v{var}, v{var}")
        a("s_nop 0")
        rne_bf16(var, var)
        a(f"v_rcp_f32 v{rs}, v{var}")
        rne_bf16(mean, mean)
        a(f"v_mov_b32 v{mean+1}, v{mean}")
        a(f"v_mov_b32 v{rs+1}, v{rs}")
        for m in range(10):
            a(f"v_pk_add_f32 {P(DV+2*m)}, {P(FV+2*m)}, {P(mean)} neg_lo:[0,1] neg_hi:[0,1]")
        for m in range(10):
            a(f"v_cvt_pk_bf16_f32 v{HP+m}, v{DV+2*m}, v{DV+2*m+1}")
        for m in range(10):
            a(f"v_lshlrev_b32 v{DV+2*m}, 16, v{HP+m}")
            a(f"v_and_b32 v{DV+2*m+1}, 0xffff0000, v{HP+m}")
    else:
        a(f"v_add_f32 v{var}, {f32hex(1e-5)}, v{var}")
        a(f"v_rsq_f32 v{rs}, v{var}")
        a("s_nop 0")
        a(f"v_mov_b32 v{rs+1}, v{rs}")
    for m in range(10):
        a(f"v_pk_mul_f32 {P(DV+2*m)}, {P(DV+2*m)}, {P(rs)}")
    for m in range(10):
        a(f"v_cvt_pk_bf16_f32 v{HP+m}, v{DV+2*m}, v{DV+2*m+1}")
    a(f"s_mov_b32 s{sT0}, 0x05040100")
    a(f"s_mov_b32 s{sT1}, 0x07060302")
    for k in range(5):
        a(f"v_permlane32_swap_b32 v{HP+2*k}, v{HP+2*k+1}")
    a("s_nop 1")
    for k in range(5):
        a(f"v_perm_b32 v{DV+2*k}, v{HP+2*k+1}, v{HP+2*k}, s{sT0}")
        a(f"v_perm_b32 v{DV+2*k+1}, v{HP+2*k+1}, v{HP+2*k}, s{sT1}")
    for k in range(10):
        a(f"ds_write_b32 v{WA+k}, v{DV+k}")

def ln_store():
    a(f"v_lshlrev_b32 v{TV}, 4, v{vTID}")
    a(f"v_add_u32 v{TV}, {T_OFF}, v{TV}")
    a(f"s_lshr_b32 s{sT0}, s{sB}, 2")
    a(f"s_mul_i32 s{sT0}, s{sT0}, 5120")
    a(f"s_and_b32 s{sT1}, s{sB}, 3")
    a(f"s_lshl_b32 s{sT1}, s{sT1}, 8")
    a(f"s_add_u32 s{sT0}, s{sT0}, s{sT1}")
    if H_OFF: a(f"s_add_u32 s{sT0}, s{sT0}, {H_OFF}")
    a("s_waitcnt lgkmcnt(0)")
    a("s_barrier")
    a(f"ds_read_b128 v[{FV}:{FV+3}], v{TV}")
    a(f"ds_read_b128 v[{FV+4}:{FV+7}], v{TV} offset:4096")
    a(f"s_cmp_ge_u32 s{sWV}, 2")
    a("s_cbranch_scc1 L_ln_two")
    a(f"ds_read_b128 v[{FV+8}:{FV+11}], v{TV} offset:8192")
    a("s_waitcnt lgkmcnt(0)")
    a(f"buffer_store_dwordx4 v[{FV+8}:{FV+11}], v{GA+2}, s[{srdWS}:{srdWS+3}], s{sT0} offen{SC}")
    vm.issue("hst3", True)
    a("L_ln_two:")
    a("s_waitcnt lgkmcnt(0)")
    a(f"buffer_store_dwordx4 v[{FV}:{FV+3}], v{GA}, s[{srdWS}:{srdWS+3}], s{sT0} offen{SC}")
    a(f"buffer_store_dwordx4 v[{FV+4}:{FV+7}], v{GA+1}, s[{srdWS}:{srdWS+3}], s{sT0} offen{SC}")
    vm.issue("hst"); vm.issue("hst")

def publish_nonce():
    a(f"s_or_b32 s{sT0}, s{sB}, s{sWV}")
    a(f"s_cmp_lg_u32 s{sT0}, 0")
    a("s_cbranch_scc1 L_no_nonce")
    a(f"s_memrealtime s[{sT0}:{sT0+1}]")
    a("s_waitcnt lgkmcnt(0)")
    a(f"s_or_b32 s{sT1}, s{sT1}, 0x40000000")
    a(f"v_mov_b32 v12, s{sT0}")
    a(f"v_mov_b32 v13, s{sT1}")
    a("v_mov_b32 v14, 0")
    a(f"buffer_store_dwordx2 v[12:13], v14, s[{srdDBG}:{srdDBG+3}], 0 offen sc1")
    a("L_no_nonce:")

def nonce_issue():
    a("v_mov_b32 v18, 0")
    a(f"buffer_load_dwordx2 v[16:17], v18, s[{srdDBG}:{srdDBG+3}], 0 offen sc1")
    vm.issue("nonce")

def nonce_finish(label):
    a(f"s_mov_b32 s{sSPIN}, {SPIN_MAX}")
    a(f"{label}:")
    a(f"v_readfirstlane_b32 s{sNON}, v16")
    a(f"v_readfirstlane_b32 s{sNON+1}, v17")
    a("s_nop 3")
    a(f"s_sub_u32 s{sSPIN}, s{sSPIN}, 1")
    a(f"s_cselect_b32 s{sT0}, 1, s{sNON+1}")
    a(f"s_cmp_lg_u32 s{sT0}, 0")
    a(f"s_cbranch_scc1 {label}_ok")
    a(f"buffer_load_dwordx2 v[16:17], v18, s[{srdDBG}:{srdDBG+3}], 0 offen sc1")
    a("s_waitcnt vmcnt(0)")
    a(f"s_branch {label}")
    a(f"{label}_ok:")

def store_flag(label, off_sreg):
    a(f"s_cmp_lg_u32 s{sWV}, 0")
    a(f"s_cbranch_scc1 {label}")
    a(f"v_mov_b32 v16, s{sNON}")
    a(f"v_mov_b32 v17, s{sNON+1}")
    a("v_mov_b32 v18, 0")
    a(f"s_mov_b64 s[{sEXEC}:{sEXEC+1}], exec")
    a("s_mov_b64 exec, 1")
    a(f"buffer_store_dwordx2 v[16:17], v18, s[{srdWS}:{srdWS+3}], s{off_sreg} offen sc1")
    a(f"s_mov_b64 exec, s[{sEXEC}:{sEXEC+1}]")
    a("s_nop 1")
    a(f"{label}:")
    vm.issue("flag", True)

def poll_flags(label, voff, off_sreg):
    a(f"s_mov_b32 s{sSPIN}, {SPIN_MAX}")
    a(f"{label}:")
    a(f"buffer_load_dwordx2 v[16:17], v{voff}, s[{srdWS}:{srdWS+3}], s{off_sreg} offen sc1")
    a("s_waitcnt vmcnt(0)")
    a(f"v_cmp_ne_u32 vcc, s{sNON}, v16")
    a(f"v_cmp_ne_u32 s[{sT0}:{sT0+1}], s{sNON+1}, v17")
    a("s_nop 3")
    a(f"s_or_b64 vcc, vcc, s[{sT0}:{sT0+1}]")
    a(f"s_cbranch_vccz {label}_ok")
    if args.sleep: a(f"s_sleep {args.sleep}")
    a(f"s_sub_u32 s{sSPIN}, s{sSPIN}, 1")
    a(f"s_cbranch_scc0 {label}")
    a(f"{label}_ok:")
    vm.drained()

def guarded(label, fn):
    a(f"s_cmp_ge_u32 s{sWV}, 2")
    a(f"s_cbranch_scc1 {label}")
    fn()
    a(f"{label}:")

def main_loop(gemm, nks, optional_last, tail_hook=None):
    depth = min(NA, nks)
    nreal = nks - 1 if optional_last else nks
    def loads(ks):
        for mi in range(5): a_load(ks % NA, mi, ks, optional_last and ks == nks - 1)
    for ks in range(depth): loads(ks)
    hooked = False
    for ks in range(nks):
        def body():
            vm.wait(("A", ks))
            if args.mstamps and ks in (0, 4, 8, 12): stamp(f"g{gemm} step {ks} data")
            nxt = ks + depth
            for mi in range(5):
                for c in range(4): mfma(ks == 0, ks, ks % NA, c, mi, gemm)
                if nxt < nreal: a_load(nxt % NA, mi, nxt)
        if optional_last and ks == nks - 1: guarded(f"L_g{gemm}_mm", body)
        else: body()
        nxt = ks + depth
        if optional_last and nxt == nks - 1:
            guarded(f"L_g{gemm}_ld", lambda: loads(nxt))
        if tail_hook is not None and not hooked and ks >= args.hookat:
            if args.mstamps: stamp("before hook")
            tail_hook(); hooked = True

RT = 16
def reduce_waves():
    a("s_nop 7")
    for c in range(1, 4):
        a(f"s_add_u32 s{sT0}, s{sWV}, {c}")
        a(f"s_and_b32 s{sT0}, s{sT0}, 3")
        a(f"s_mul_i32 s{sT1}, s{sT0}, {RING}")
        a(f"s_add_u32 s{sT1}, s{sT1}, {6*4096}")
        a(f"v_add_u32 v12, s{sT1}, v{vA}")
        if c == 3:
            a(f"s_mul_i32 s{sT1}, s{sT0}, 3072")
            a(f"s_add_u32 s{sT1}, s{sT1}, {T_OFF}")
            a(f"v_add_u32 v13, s{sT1}, v{vA}")
        for mi in range(5):
            blk = (c-1)*5 + mi
            r = acc(c, mi)
            if blk < 12: a(f"ds_write_b128 v12, v[{r}:{r+3}] offset:{blk*1024}")
            else:        a(f"ds_write_b128 v13, v[{r}:{r+3}] offset:{(blk-12)*1024}")
    a(f"s_add_u32 s{sT1}, s{sRING}, {6*4096}")
    a(f"v_add_u32 v76, s{sT1}, v{vA}")
    a(f"s_mul_i32 s{sT1}, s{sWV}, 3072")
    a(f"s_add_u32 s{sT1}, s{sT1}, {T_OFF}")
    a(f"v_add_u32 v77, s{sT1}, v{vA}")
    a("s_waitcnt lgkmcnt(0)")
    a("s_barrier")
    for blk in range(15):
        r = RT + 4*blk
        if blk < 12: a(f"ds_read_b128 v[{r}:{r+3}], v76 offset:{blk*1024}")
        else:        a(f"ds_read_b128 v[{r}:{r+3}], v77 offset:{(blk-12)*1024}")
    for c in range(1, 4):
        a(f"s_waitcnt lgkmcnt({15 - 5*c})")
        for mi in range(5):
            for h in range(2):
                d = acc(0, mi) + 2*h; s = RT + 4*((c-1)*5 + mi) + 2*h
                a(f"v_pk_add_f32 {P(d)}, {P(d)}, {P(s)}")

PK = 80
def pack_swap():
    for mi in range(5):
        d = acc(0, mi); r = PK + 2*mi
        a(f"v_cvt_pk_bf16_f32 v{r}, v{d}, v{d+1}")
        a(f"v_cvt_pk_bf16_f32 v{r+1}, v{d+2}, v{d+3}")
    a(f"v_mov_b32 v{PK+10}, v{PK+8}")
    a(f"v_mov_b32 v{PK+11}, v{PK+9}")
    a("s_nop 1")
    for p in range(3):
        b = PK + 4*p
        a(f"v_permlane16_swap_b32 v{b}, v{b+2}")
        a(f"v_permlane16_swap_b32 v{b+1}, v{b+3}")

def epilogue1():
    reduce_waves()
    a(f"v_lshlrev_b32 v96, 16, v{vBIAS}");   a(f"v_and_b32 v97, 0xffff0000, v{vBIAS}")
    a(f"v_lshlrev_b32 v98, 16, v{vBIAS+1}"); a(f"v_and_b32 v99, 0xffff0000, v{vBIAS+1}")
    c1 = -2.0 * 0.7978845608028654 * 1.4426950408889634
    a(f"v_mov_b32 v100, {f32hex(c1)}"); a(f"v_mov_b32 v101, {f32hex(c1)}")
    a(f"v_mov_b32 v102, {f32hex(c1*0.044715)}"); a(f"v_mov_b32 v103, {f32hex(c1*0.044715)}")
    a("v_mov_b32 v104, 1.0"); a("v_mov_b32 v105, 1.0")
    for mi in range(5):
        d = acc(0, mi)
        for h in range(2):
            a(f"v_pk_add_f32 {P(d+2*h)}, {P(d+2*h)}, {P(96+2*h)}")
    T = 16
    for mi in range(5):
        d = acc(0, mi)
        for h in range(2):
            u = d + 2*h; t = T + 4*mi + 2*h
            a(f"v_pk_mul_f32 {P(t)}, {P(u)}, {P(u)}")
            a(f"v_pk_fma_f32 {P(t)}, {P(t)}, {P(102)}, {P(100)}")
            a(f"v_pk_mul_f32 {P(t)}, {P(t)}, {P(u)}")
        t = T + 4*mi
        for k in range(4): a(f"v_exp_f32 v{t+k}, v{t+k}")
        for h in range(2): a(f"v_pk_add_f32 {P(t+2*h)}, {P(t+2*h)}, {P(104)}")
        for k in range(4): a(f"v_rcp_f32 v{t+k}, v{t+k}")
        a("s_nop 0")
        for h in range(2): a(f"v_pk_mul_f32 {P(d+2*h)}, {P(d+2*h)}, {P(t+2*h)}")
    pack_swap()
    a(f"v_lshrrev_b32 v12, 4, v{vLANE}")
    a("v_and_b32 v13, 1, v12")
    a("v_lshlrev_b32 v13, 10, v13")
    a("v_lshrrev_b32 v12, 1, v12")
    a("v_lshl_add_u32 v13, v12, 8, v13")
    a(f"v_and_b32 v12, 15, v{vLANE}")
    a("v_lshl_add_u32 v13, v12, 4, v13")
    a(f"v_and_b32 v12, 0xfffffbff, v13")
    a(f"s_mul_i32 s{sT0}, s{sDT1}, 54")
    a(f"s_lshl_b32 s{sT1}, s{sFT}, 1")
    a(f"s_add_u32 s{sT0}, s{sT0}, s{sT1}")
    a(f"s_lshr_b32 s{sT1}, s{sWV}, 1")
    a(f"s_add_u32 s{sT0}, s{sT0}, s{sT1}")
    a(f"s_mul_i32 s{sT0}, s{sT0}, 5120")
    a(f"s_and_b32 s{sT1}, s{sWV}, 1")
    a(f"s_lshl_b32 s{sT1}, s{sT1}, 9")
    a(f"s_add_u32 s{sT0}, s{sT0}, s{sT1}")
    a(f"s_add_u32 s{sT0}, s{sT0}, {G_OFF}")
    a(f"s_add_u32 s{sT1}, s{sT0}, 4096")
    a(f"buffer_store_dwordx4 v[{PK}:{PK+3}], v13, s[{srdWS}:{srdWS+3}], s{sT0} offen{SC}")
    a(f"buffer_store_dwordx4 v[{PK+4}:{PK+7}], v13, s[{srdWS}:{srdWS+3}], s{sT0} offen offset:2048{SC}")
    a(f"buffer_store_dwordx4 v[{PK+8}:{PK+11}], v12, s[{srdWS}:{srdWS+3}], s{sT1} offen{SC}")

def epilogue2():
    reduce_waves()
    a(f"v_lshlrev_b32 v96, 16, v{vBIAS}")
    a("v_mov_b32 v97, v96")
    for mi in range(5):
        d = acc(0, mi)
        for h in range(2):
            a(f"v_pk_add_f32 {P(d+2*h)}, {P(d+2*h)}, {P(96)}")
    pack_swap()
    a(f"v_lshrrev_b32 v12, 4, v{vLANE}")
    a("v_and_b32 v13, 1, v12")
    a("v_lshlrev_b32 v13, 5, v13")
    a("v_lshrrev_b32 v12, 1, v12")
    a("v_lshl_add_u32 v13, v12, 4, v13")
    a(f"v_and_b32 v12, 15, v{vLANE}")
    a("v_mul_u32_u24 v12, 1280, v12")
    a("v_add_u32 v13, v13, v12")
    a(f"v_and_b32 v12, 16, v{vLANE}")
    a("v_lshlrev_b32 v12, 1, v12")
    a("v_sub_u32 v12, v13, v12")
    a(f"s_lshl_b32 s{sT0}, s{sST}, 2")
    a(f"s_add_u32 s{sT0}, s{sT0}, s{sWV}")
    a(f"s_mul_i32 s{sT0}, s{sT0}, {16*1280}")
    a(f"s_mul_i32 s{sT1}, s{sDT}, 160")
    a(f"s_add_u32 s{sT0}, s{sT0}, s{sT1}")
    a(f"buffer_store_dwordx4 v[{PK}:{PK+3}], v13, s[{srdOUT}:{srdOUT+3}], s{sT0} offen")
    a(f"buffer_store_dwordx4 v[{PK+4}:{PK+7}], v13, s[{srdOUT}:{srdOUT+3}], s{sT0} offen offset:64")
    a(f"buffer_store_dwordx4 v[{PK+8}:{PK+11}], v12, s[{srdOUT}:{srdOUT+3}], s{sT0} offen offset:128")

def set_rot(n, mode, g, dreg):
    if mode == "none" or not args.rot:
        a(f"s_mov_b32 s{sROT}, 0"); return
    if mode == "d":
        a(f"s_mov_b32 s{sT0}, s{dreg}")
    else:
        a(f"s_lshr_b32 s{sT0}, s{sB}, 5")
        if mode == "qd": a(f"s_add_u32 s{sT0}, s{sT0}, s{dreg}")
    assert g in (2, 4, 8)
    a(f"s_and_b32 s{sT0}, s{sT0}, {g-1}")
    a(f"s_mul_i32 s{sT0}, s{sT0}, {n}")
    a(f"s_lshr_b32 s{sROT}, s{sT0}, {g.bit_length()-1}")
def set_run(run, base, end, n, stride):
    a(f"s_add_u32 s{end}, s{base}, {n*stride}")
    a(f"s_mul_i32 s{run}, s{sROT}, {stride}")
    a(f"s_add_u32 s{run}, s{run}, s{base}")
def set_w1_base():
    set_rot(16, args.rotmode, args.groups, sDT1)
    a(f"s_lshl_b32 s{sT0}, s{sWV}, 4")
    a(f"s_mul_i32 s{sWBASE}, s{sT0}, {W1_KS}")
    a(f"s_lshl_b32 s{sT0}, s{sFT}, 7")
    a(f"s_add_u32 s{sWBASE}, s{sWBASE}, s{sT0}")
    set_run(sWOFF, sWBASE, sWEND, 16, W1_KS)
def set_h_base():
    a(f"s_lshl_b32 s{sT0}, s{sDT1}, 6")
    a(f"s_lshl_b32 s{sT1}, s{sWV}, 4")
    a(f"s_add_u32 s{sT0}, s{sT0}, s{sT1}")
    a(f"s_mul_i32 s{sABASE}, s{sT0}, 5120")
    if H_OFF: a(f"s_add_u32 s{sABASE}, s{sABASE}, {H_OFF}")
    set_run(sAOFF, sABASE, sAEND, 16, 5120)
def k2_start(dst):
    a(f"s_mul_i32 s{dst}, s{sWV}, 14")
    a(f"s_cmp_eq_u32 s{sWV}, 3")
    a(f"s_cselect_b32 s{sT3}, 1, 0")
    a(f"s_sub_u32 s{dst}, s{dst}, s{sT3}")
def set_w2_base():
    set_rot(13, args.rotmode2, args.groups2, sDT)
    k2_start(sT0)
    a(f"s_mul_i32 s{sWBASE}, s{sT0}, {W2_KS}")
    a(f"s_lshl_b32 s{sT0}, s{sST}, 7")
    a(f"s_add_u32 s{sWBASE}, s{sWBASE}, s{sT0}")
    set_run(sWOFF, sWBASE, sWEND, 13, W2_KS)
def set_g_base():
    k2_start(sT0)
    a(f"s_mul_i32 s{sT1}, s{sDT}, 54")
    a(f"s_add_u32 s{sT0}, s{sT0}, s{sT1}")
    a(f"s_mul_i32 s{sABASE}, s{sT0}, 5120")
    a(f"s_add_u32 s{sABASE}, s{sABASE}, {G_OFF}")
    set_run(sAOFF, sABASE, sAEND, 13, 5120)

def stage_weights(srd, kstride, nks, issued, optional_last, tag):
    st = {"nxt": issued}
    def issue():
        n = st["nxt"]
        opt = optional_last and n == nks - 1
        fn = lambda: dma_step(srd, n, n % NSLOT, kstride, opt, opt)
        if opt: guarded(f"L_{tag}_d{n}", fn)
        else: fn()
        st["nxt"] += 1
    while st["nxt"] < min(NSLOT, nks): issue()
    for ks in range(nks):
        def body():
            if any(t == (srd, ks) for t, o in vm.ops): vm.wait((srd, ks))
            tr_step(ks, ks % NSLOT)
        if optional_last and ks == nks - 1: guarded(f"L_{tag}_tr", body)
        else: body()
        if ks >= 1 and st["nxt"] < nks:
            a("s_waitcnt lgkmcnt(8)")
            issue()
    a("s_waitcnt lgkmcnt(0)")

def role_split(tag, g1_fn, idle_fn=None):
    a(f"s_cmp_eq_u32 s{sROLE}, 0")
    a(f"s_cbranch_scc1 L_{tag}_idle")
    g1_fn()
    if idle_fn is not None:
        a(f"s_branch L_{tag}_done")
        a(f"L_{tag}_idle:")
        idle_fn()
        a(f"L_{tag}_done:")
    else:
        a(f"L_{tag}_idle:")

file_begin(a, [(MAIN, 256, 256, LDS_BYTES)])
prologue(MAIN, "L_end")
stamp("kernarg")
publish_nonce()
ln_issue()
dma_offsets(W1_ROW)
set_w1_base()
pos = [0]
def w1_issue(n):
    def f():
        for _ in range(n):
            dma_step(srdW1, pos[0], pos[0] % NSLOT, W1_KS); pos[0] += 1
    return f
role_split("pre", w1_issue(args.npre))
ln_addresses()
tr_addresses()
role_split("xw", lambda: vm.wait("x"), lambda: a("s_waitcnt vmcnt(0)"))
stamp("x landed")
ln_compute()
if args.n1: role_split("n1", w1_issue(args.n1))
ln_store()
nonce_issue()
stamp("h stores issued")
assert args.npre + args.n1 + args.n2 <= NSLOT
if args.n2: role_split("n2", w1_issue(args.n2))
role_split("hw", lambda: vm.wait("nonce"), lambda: a("s_waitcnt vmcnt(0)"))
nonce_finish("L_nonce")
a("s_barrier")
a(f"s_lshl_b32 s{sT2}, s{sB}, 6")
a(f"s_add_u32 s{sT2}, s{sT2}, {FL_LN}")
store_flag("L_flag_ln", sT2)
stamp("LN flag stored")
a(f"s_cmp_eq_u32 s{sROLE}, 0")
a("s_cbranch_scc1 L_idle")
i_branch = nstamp[0]
a(f"s_lshl_b32 s{sT0}, s{sFT}, 7")
a(f"s_lshl_b32 s{sT1}, s{sWV}, 5")
a(f"s_add_u32 s{sT0}, s{sT0}, s{sT1}")
a(f"v_lshrrev_b32 v12, 4, v{vLANE}")
a("v_lshlrev_b32 v12, 3, v12")
a(f"buffer_load_dwordx2 v[{vBIAS}:{vBIAS+1}], v12, s[{srdB1}:{srdB1+3}], s{sT0} offen")
vm.issue("b1")
stage_weights(srdW1, W1_KS, 16, pos[0], False, "w1")
a("s_barrier")
stamp("w1 in regs")
set_h_base()
a(f"s_lshl_b32 s{sT2}, s{sWV}, 12")
a(f"s_add_u32 s{sT2}, s{sT2}, {FL_LN}")
a(f"v_lshlrev_b32 v18, 6, v{vLANE}")
poll_flags("L_poll_ln", 18, sT2)
stamp("LN flags seen")
def w2_early():
    dma_offsets(W2_ROW)
    set_w2_base()
    for ks in range(args.n2pre): dma_step(srdW2, ks, ks, W2_KS)
main_loop(1, 16, False, w2_early)
stamp("main1 done")
epilogue1()
stamp("G stores issued")
a("s_waitcnt vmcnt(0)")
vm.drained()
a("s_barrier")
a(f"s_lshl_b32 s{sT2}, s{sDT1}, 5")
a(f"s_add_u32 s{sT2}, s{sT2}, s{sFT}")
a(f"s_lshl_b32 s{sT2}, s{sT2}, 6")
a(f"s_add_u32 s{sT2}, s{sT2}, {FL_G}")
store_flag("L_flag_g", sT2)
stamp("G flag stored")
i_join = nstamp[0]
a("s_branch L_gemm2")
a("L_idle:")
nstamp[0] = i_branch
if args.w2pf:
    if args.pfwait:
        a(f"s_lshl_b32 s{sT2}, s{sWV}, 12")
        a(f"s_add_u32 s{sT2}, s{sT2}, {FL_LN}")
        a(f"v_lshlrev_b32 v18, 6, v{vLANE}")
        poll_flags("L_poll_idle", 18, sT2)
    a(f"s_lshl_b32 s{sT0}, s{sIDLE}, 2")
    a(f"s_add_u32 s{sT0}, s{sT0}, s{sWV}")
    a(f"s_mul_i32 s{sT0}, s{sT0}, {44*1024}")
    a(f"s_mov_b32 s{sT1}, 44")
    a("L_pf_loop:")
    a(f"buffer_load_dwordx4 v[20:23], v{vA}, s[{srdW2}:{srdW2+3}], s{sT0} offen{fl(args.pffl)}")
    a(f"s_add_u32 s{sT0}, s{sT0}, 1024")
    a(f"s_sub_u32 s{sT1}, s{sT1}, 1")
    a(f"s_cmp_lg_u32 s{sT1}, 0")
    a("s_cbranch_scc1 L_pf_loop")
    a("s_waitcnt vmcnt(0)")
while nstamp[0] < i_join and args.stamps: stamp("idle")
dma_offsets(W2_ROW)
set_w2_base()
for ks in range(args.n2pre): dma_step(srdW2, ks, ks, W2_KS)
a("s_waitcnt vmcnt(0)")
vm.drained()
a("L_gemm2:")
a(f"s_lshl_b32 s{sT0}, s{sST}, 7")
a(f"s_lshl_b32 s{sT1}, s{sWV}, 5")
a(f"s_add_u32 s{sT0}, s{sT0}, s{sT1}")
a(f"v_and_b32 v12, 15, v{vLANE}")
a("v_lshlrev_b32 v12, 1, v12")
a(f"buffer_load_ushort v{vBIAS}, v12, s[{srdB2}:{srdB2+3}], s{sT0} offen")
vm.issue("b2")
stage_weights(srdW2, W2_KS, 14, args.n2pre, True, "w2")
a("s_barrier")
stamp("w2 in regs")
set_g_base()
a(f"s_mul_i32 s{sT2}, s{sWV}, 7")
a(f"s_cmp_eq_u32 s{sWV}, 3")
a(f"s_cselect_b32 s{sT3}, 1, 0")
a(f"s_sub_u32 s{sT2}, s{sT2}, s{sT3}")
a(f"s_lshl_b32 s{sT3}, s{sDT}, 5")
a(f"s_add_u32 s{sT2}, s{sT2}, s{sT3}")
a(f"s_lshl_b32 s{sT2}, s{sT2}, 6")
a(f"s_add_u32 s{sT2}, s{sT2}, {FL_G}")
a(f"v_min_u32 v18, 6, v{vLANE}")
a("v_lshlrev_b32 v18, 6, v18")
poll_flags("L_poll_g", 18, sT2)
stamp("G flags seen")
main_loop(2, 14, True)
stamp("main2 done")
epilogue2()
stamp("end")
write_stamps("L_st", STAMP)
a("L_end:")
a("s_endpgm")
a("L_code_end:")
kernel_desc(a, MAIN, 512, 102, 256)
print(a.text())
```

```python
import sys, argparse, struct
sys.path.insert(0, "tools")
from asmlib import *

ap = argparse.ArgumentParser()
ap.add_argument("--stamps", type=int, default=0)
ap.add_argument("--npre", type=int, default=3)
ap.add_argument("--codepf", type=int, default=1)
ap.add_argument("--w2pf", type=int, default=1)
ap.add_argument("--exact", type=int, default=1)
ap.add_argument("--n2pre", type=int, default=4)
ap.add_argument("--sleep", type=int, default=1)
ap.add_argument("--asc", default="sc1")
ap.add_argument("--ssc", default="sc1")
ap.add_argument("--nomfma", type=int, default=0)
ap.add_argument("--na", type=int, default=8)
ap.add_argument("--rot", type=int, default=1)
ap.add_argument("--n1", type=int, default=2)
ap.add_argument("--n2", type=int, default=3)
ap.add_argument("--groups", type=int, default=8)
ap.add_argument("--xfl", default="nt")
ap.add_argument("--w1fl", default="none")
ap.add_argument("--w2fl", default="none")
ap.add_argument("--pffl", default="none")
ap.add_argument("--ofl", default="none")
ap.add_argument("--pfwait", type=int, default=1)
ap.add_argument("--rotmode", default="qd")
ap.add_argument("--rotmode2", default="qd")
ap.add_argument("--groups2", type=int, default=8)
ap.add_argument("--hookat", type=int, default=15)
ap.add_argument("--dbgstamps", default="")
ap.add_argument("--map1", default="2d")
ap.add_argument("--mstamps", type=int, default=0)
args = ap.parse_args()

def fl(s): return "" if s == "none" else " " + s.replace("+", " ")
def f32hex(x): return "0x%08x" % struct.unpack("<I", struct.pack("<f", x))[0]

S, D, F = 2048, 640, 1728
H_OFF   = 0
G_OFF   = 0x280000
FL_LN   = 0x500000
FL_G    = 0x508000
STAMP   = 0x8000000
W1_ROW, W2_ROW = 3456, 4096
W1_KS, W2_KS = 32 * W1_ROW, 32 * W2_ROW
RING = 36864
NSLOT = 9
T_OFF = 147456
LDS_BYTES = 163840
SPIN_MAX = 200000
SC = (" " + args.ssc.replace("+", " ")) if args.ssc != "none" else ""
ASC = (" " + args.asc.replace("+", " ")) if args.asc != "none" else ""

sB, sWV = 2, 3
sDT, sFT, sST, sROLE = 4, 5, 6, 7
srdX, srdW1, srdW2, srdB1, srdB2, srdOUT, srdDBG, srdWS = 8, 12, 16, 20, 24, 28, 32, 36
sNON = 40
sT0, sT1, sT2, sT3 = 42, 43, 44, 45
sRING = 46
sOFF = 47
sKARG = 48
sSTAMP = 64
sWOFF = 96
sAOFF = 97
sSPIN = 98
sJ = 99
sEXEC = 100
sWBASE, sWEND, sABASE, sAEND, sROT = 48, 49, 50, 51, 52
sDT1, sIDLE = 94, 95

vTID, vLANE = 0, 1
vA, vA2 = 2, 3
vD = 4
vT = 8
vBIAS = 14
ABUF = 16
NA = args.na
ACC = 176
def acc(c, mi): return ACC + (c * 5 + mi) * 4
def abuf(slot, mi): return ABUF + slot * 20 + mi * 4
P = lambda r: f"v[{r}:{r+1}]"

a = Asm()
class VM:
    def __init__(self): self.ops = []
    def issue(self, tag, optional=False): self.ops.append((tag, optional))
    def count_after(self, tag):
        idx = max(i for i, (t, o) in enumerate(self.ops) if t == tag)
        return sum(1 for t, o in self.ops[idx+1:] if not o)
    def wait(self, tag):
        n = self.count_after(tag)
        assert n <= 63, (tag, n)
        a(f"s_waitcnt vmcnt({n})")
    def drained(self): self.ops = [(t, o) for t, o in self.ops[-1:]] and [("_", True)]
    def copy(self):
        v = VM(); v.ops = list(self.ops); return v
vm = VM()
nstamp = [0]
NSTAMPS = 28
stamp_names = {}
def stamp(name):
    if not args.stamps: return
    i = nstamp[0]; nstamp[0] += 1
    assert i < NSTAMPS
    stamp_names.setdefault(i, name)
    a("s_memrealtime s[92:93]")
    a("s_waitcnt lgkmcnt(0)")
    a(f"s_mov_b32 s{sSTAMP+i}, s92")

def write_stamps(label, base):
    if not args.stamps: return
    if args.dbgstamps:
        ids = [int(x) for x in args.dbgstamps.split(",")]
        a(f"s_cmp_lg_u32 s{sWV}, 0")
        a(f"s_cbranch_scc1 {label}_nostamp")
        a("s_mov_b64 exec, 1")
        a("v_mov_b32 v12, 0")
        a(f"s_not_b32 s{sT0}, s{sSTAMP}")
        a(f"v_mov_b32 v16, s{sT0}")
        a(f"buffer_atomic_umax v16, v12, s[{srdDBG}:{srdDBG+3}], 0 offen offset:8 sc1")
        for n, i in enumerate(ids):
            a(f"v_mov_b32 v{17+n}, s{sSTAMP+i}")
            a(f"buffer_atomic_umax v{17+n}, v12, s[{srdDBG}:{srdDBG+3}], 0 offen offset:{12+4*n} sc1")
        a(f"{label}_nostamp:")
        for i in sorted(stamp_names): a(f"; STAMPNAME {i} {stamp_names[i]}")
        return
    a(f"s_cmp_lg_u32 s{sWV}, {args.stamps - 1}")
    a(f"s_cbranch_scc1 {label}_nostamp")
    a(f"s_mul_i32 s{sT0}, s{sB}, 128")
    a(f"s_add_u32 s{sT0}, s{sT0}, {base}")
    a("v_mov_b32 v12, 0")
    a("s_mov_b64 exec, 1")
    for i in range(0, NSTAMPS, 4):
        for k in range(4):
            if i + k < nstamp[0]: a(f"v_mov_b32 v{16+k}, s{sSTAMP + i + k}")
            else:                 a(f"v_mov_b32 v{16+k}, 0")
        a(f"buffer_store_dwordx4 v[16:19], v12, s[{srdWS}:{srdWS+3}], s{sT0} offen offset:{i*4}")
        a("s_nop 2")
    a(f"{label}_nostamp:")
    for i in sorted(stamp_names): a(f"; STAMPNAME {i} {stamp_names[i]}")

def mk_srd(d, p, nbytes):
    a(f"s_mov_b32 s{d}, s{p}")
    a(f"s_and_b32 s{d+1}, s{p+1}, 0xffff")
    a(f"s_mov_b32 s{d+2}, {nbytes}")
    a(f"s_mov_b32 s{d+3}, 0x00020000")

def prologue(name, endlabel):
    kernel_begin(a, name)
    stamp("start")
    a(f"s_cmp_ge_u32 s{sB}, 256")
    a(f"s_cbranch_scc1 {endlabel}")
    a(f"s_load_dwordx16 s[{sKARG}:{sKARG+15}], s[0:1], 0")
    a(f"v_and_b32 v{vLANE}, 63, v{vTID}")
    a(f"v_lshrrev_b32 v12, 6, v{vTID}")
    a(f"v_lshlrev_b32 v{vA}, 4, v{vLANE}")
    a(f"v_readfirstlane_b32 s{sWV}, v12")
    a(f"v_add_u32 v{vA2}, 0x1000, v{vA}")
    if args.codepf: code_prefetch()
    a(f"s_and_b32 s{sT0}, s{sB}, 1")
    a(f"s_lshl_b32 s{sT0}, s{sT0}, 2")
    a(f"s_lshr_b32 s{sT1}, s{sB}, 3")
    a(f"s_and_b32 s{sT2}, s{sT1}, 3")
    a(f"s_add_u32 s{sDT}, s{sT0}, s{sT2}")
    a(f"s_lshr_b32 s{sT1}, s{sT1}, 2")
    a(f"s_bfe_u32 s{sJ}, s{sB}, 0x20001")
    a(f"s_lshl_b32 s{sT2}, s{sJ}, 3")
    a(f"s_add_u32 s{sST}, s{sT2}, s{sT1}")
    if args.map1 == "2d":
        a(f"s_mov_b32 s{sDT1}, s{sDT}")
        a(f"s_mul_i32 s{sT2}, s{sJ}, 7")
        a(f"s_add_u32 s{sFT}, s{sT2}, s{sT1}")
        a(f"s_cmp_eq_u32 s{sJ}, 3")
        a(f"s_cselect_b32 s{sT2}, 6, 7")
        a(f"s_cmp_lt_u32 s{sT1}, s{sT2}")
        a(f"s_cselect_b32 s{sROLE}, 1, 0")
        a(f"s_and_b32 s{sT0}, s{sB}, 7")
        a(f"s_and_b32 s{sT2}, s{sB}, 1")
        a(f"s_add_u32 s{sT2}, s{sT2}, 8")
        a(f"s_cmp_eq_u32 s{sT1}, 7")
        a(f"s_cselect_b32 s{sT0}, s{sT0}, s{sT2}")
        a(f"s_lshl_b32 s{sT0}, s{sT0}, 2")
        a(f"s_bfe_u32 s{sT2}, s{sB}, 0x20003")
        a(f"s_add_u32 s{sIDLE}, s{sT0}, s{sT2}")
    else:
        a(f"s_bfe_u32 s{sDT1}, s{sB}, 0x30003")
        a(f"s_lshr_b32 s{sT0}, s{sB}, 6")
        a(f"s_lshl_b32 s{sT0}, s{sT0}, 3")
        a(f"s_and_b32 s{sT2}, s{sB}, 7")
        a(f"s_add_u32 s{sFT}, s{sT0}, s{sT2}")
        a(f"s_cmp_lt_u32 s{sFT}, 27")
        a(f"s_cselect_b32 s{sROLE}, 1, 0")
        a(f"s_sub_u32 s{sT0}, s{sFT}, 27")
        a(f"s_lshl_b32 s{sT0}, s{sT0}, 3")
        a(f"s_add_u32 s{sIDLE}, s{sT0}, s{sDT1}")
    a(f"s_mul_i32 s{sRING}, s{sWV}, {RING}")
    a("s_waitcnt lgkmcnt(0)")
    mk_srd(srdX,   sKARG+0,  S*D*2)
    mk_srd(srdW1,  sKARG+2,  S*F*2)
    mk_srd(srdB1,  sKARG+4,  F*2)
    mk_srd(srdW2,  sKARG+6,  F*S*2)
    mk_srd(srdB2,  sKARG+8,  S*2)
    mk_srd(srdOUT, sKARG+10, S*D*2)
    mk_srd(srdDBG, sKARG+12, 256)
    mk_srd(srdWS,  sKARG+14, 268435456)

def code_prefetch():
    a(f"s_getpc_b64 s[{sT0}:{sT0+1}]")
    a("L_pf_base:")
    a("s_nop 2")
    a(f"s_lshr_b32 s{sT2}, s{sB}, 3")
    a(f"s_and_b32 s{sT2}, s{sT2}, 7")
    a(f"s_lshl_b32 s{sT2}, s{sT2}, 2")
    a(f"s_add_u32 s{sT2}, s{sT2}, s{sWV}")
    a(f"s_min_u32 s{sT2}, s{sT2}, (L_code_end - L_pf_base) / 1024 - 1")
    a(f"s_lshl_b32 s{sT2}, s{sT2}, 10")
    a(f"s_add_u32 s{sT0}, s{sT0}, s{sT2}")
    a(f"s_addc_u32 s{sT1}, s{sT1}, 0")
    a(f"global_load_dwordx4 v[96:99], v{vA}, s[{sT0}:{sT0+1}]")

def dma_offsets(row):
    a(f"v_lshrrev_b32 v12, 3, v{vLANE}")
    a(f"v_and_b32 v13, 2, v12")
    a(f"v_mul_u32_u24 v12, {row}, v12")
    a(f"v_and_b32 v{vD+2}, 7, v{vLANE}")
    a(f"v_xor_b32 v13, v13, v{vD+2}")
    a(f"v_lshl_add_u32 v{vD}, v13, 4, v12")
    a(f"v_xor_b32 v13, 4, v13")
    a(f"v_lshl_add_u32 v{vD+1}, v13, 4, v12")
    a(f"v_add_u32 v{vD+1}, {8*row}, v{vD+1}")
    a(f"v_add_u32 v{vD+2}, {16*row}, v{vD}")
    a(f"v_add_u32 v{vD+3}, {16*row}, v{vD+1}")

def tr_addresses():
    a(f"v_lshrrev_b32 v12, 4, v{vLANE}")
    a(f"v_bfe_u32 v13, v{vLANE}, 2, 2")
    a(f"v_lshl_add_u32 v14, v12, 3, v13")
    a(f"v_lshlrev_b32 v14, 7, v14")
    a(f"v_and_b32 v15, 1, v{vLANE}")
    a(f"v_lshl_add_u32 v14, v15, 3, v14")
    a(f"v_add_u32 v14, s{sRING}, v14")
    a(f"v_and_b32 v12, 1, v12")
    a(f"v_lshlrev_b32 v12, 2, v12")
    a(f"v_and_b32 v13, 2, v13")
    a(f"v_or_b32 v12, v12, v13")
    a(f"v_bfe_u32 v13, v{vLANE}, 1, 1")
    a(f"v_xor_b32 v12, v12, v13")
    for c in range(4):
        a(f"s_add_u32 s{sT0}, s{sWV}, {c}")
        a(f"s_and_b32 s{sT0}, s{sT0}, 3")
        a(f"s_lshl_b32 s{sT0}, s{sT0}, 1")
        a(f"v_xor_b32 v13, s{sT0}, v12")
        a(f"v_lshl_add_u32 v{vT+c}, v13, 4, v14")

def advance(run, base, end, stride):
    a(f"s_add_u32 s{run}, s{run}, {stride}")
    a(f"s_cmp_eq_u32 s{run}, s{end}")
    a(f"s_cselect_b32 s{run}, s{base}, s{run}")

def dma_step(srd, ks, slot, kstride, fixed=False, optional=False):
    off = sWOFF
    if fixed:
        a(f"s_add_u32 s{sOFF}, s{sWBASE}, {ks*kstride}"); off = sOFF
    for q in range(4):
        a(f"s_add_u32 m0, s{sRING}, {slot*4096 + q*1024}")
        a("s_nop 0")
        a(f"buffer_load_dwordx4 v{vD+q}, s[{srd}:{srd+3}], s{off} offen{fl(args.w1fl if srd == srdW1 else args.w2fl)} lds")
        vm.issue((srd, ks), optional)
    if not fixed: advance(sWOFF, sWBASE, sWEND, kstride)

def tr_step(ks, slot):
    for c in range(4):
        for t in range(2):
            r = 16*ks + 4*c + 2*t
            a(f"ds_read_b64_tr_b16 a[{r}:{r+1}], v{vT+c} offset:{slot*4096 + t*512}")

def a_load(slot, mi, ks, fixed=False):
    r = abuf(slot, mi)
    off = sAOFF
    if fixed:
        off = sOFF
        if mi == 0: a(f"s_add_u32 s{sOFF}, s{sABASE}, {ks*5120}")
    if mi < 4:
        a(f"buffer_load_dwordx4 v[{r}:{r+3}], v{vA}, s[{srdWS}:{srdWS+3}], s{off} offen offset:{mi*1024}{ASC}")
    else:
        a(f"buffer_load_dwordx4 v[{r}:{r+3}], v{vA2}, s[{srdWS}:{srdWS+3}], s{off} offen{ASC}")
        if not fixed: advance(sAOFF, sABASE, sAEND, 5120)
    vm.issue(("A", ks), fixed)

def mfma(first, ks, slot, c, mi, gemm):
    if args.nomfma and not first: return
    d = acc(c, mi); wr = 16*ks + 4*c; ar = abuf(slot, mi)
    cin = "0" if first else f"v[{d}:{d+3}]"
    if gemm == 1:
        a(f"v_mfma_f32_16x16x32_bf16 v[{d}:{d+3}], a[{wr}:{wr+3}], v[{ar}:{ar+3}], {cin}")
    else:
        a(f"v_mfma_f32_16x16x32_bf16 v[{d}:{d+3}], v[{ar}:{ar+3}], a[{wr}:{wr+3}], {cin}")

XR = 16
FV = 28
DV = 48
HP = 68
WA = 80
GA = 92
TV = 100
def ln_issue():
    a(f"s_lshl_b32 s{sT0}, s{sB}, 3")
    a(f"s_lshl_b32 s{sT1}, s{sWV}, 1")
    a(f"s_add_u32 s{sT0}, s{sT0}, s{sT1}")
    a(f"s_mul_i32 s{sT0}, s{sT0}, 1280")
    a(f"v_lshrrev_b32 v12, 5, v{vLANE}")
    a(f"v_mul_u32_u24 v12, 1280, v12")
    a(f"v_and_b32 v13, 31, v{vLANE}")
    a(f"v_lshl_add_u32 v14, v13, 4, v12")
    a(f"v_lshl_add_u32 v15, v13, 3, v12")
    a(f"buffer_load_dwordx4 v[{XR}:{XR+3}], v14, s[{srdX}:{srdX+3}], s{sT0} offen{fl(args.xfl)}")
    a(f"buffer_load_dwordx4 v[{XR+4}:{XR+7}], v14, s[{srdX}:{srdX+3}], s{sT0} offen offset:512{fl(args.xfl)}")
    a(f"buffer_load_dwordx2 v[{XR+8}:{XR+9}], v15, s[{srdX}:{srdX+3}], s{sT0} offen offset:1024{fl(args.xfl)}")
    for _ in range(3): vm.issue("x")

def ln_addresses():
    a(f"v_and_b32 v{TV}, 31, v{vLANE}")
    a(f"v_lshrrev_b32 v{TV+1}, 5, v{vLANE}")
    a(f"v_lshlrev_b32 v{TV+1}, 1, v{TV+1}")
    a(f"s_lshl_b32 s{sT0}, s{sWV}, 2")
    a(f"s_add_u32 s{sT0}, s{sT0}, {T_OFF}")
    a(f"v_and_b32 v{TV+2}, 7, v{TV}")
    a(f"v_xor_b32 v{TV+2}, v{TV+2}, v{TV+1}")
    a(f"v_lshlrev_b32 v{TV+3}, 7, v{TV}")
    a(f"v_add_u32 v{TV+3}, s{sT0}, v{TV+3}")
    for k in range(4):
        base = 4096 if k >= 2 else 0
        e = 4 if (k & 1) else 0
        for o in range(2):
            a(f"v_xor_b32 v{TV+4}, {e + o}, v{TV+2}")
            a(f"v_lshl_add_u32 v{WA + 2*k + o}, v{TV+4}, 4, v{TV+3}")
            if base: a(f"v_add_u32 v{WA + 2*k + o}, {base}, v{WA + 2*k + o}")
    a(f"v_lshrrev_b32 v{TV+4}, 1, v{TV}")
    a(f"v_and_b32 v{TV+5}, 1, v{TV}")
    a(f"v_lshl_add_u32 v{TV+5}, v{TV+5}, 2, v{TV+1}")
    a(f"v_and_b32 v{TV+6}, 7, v{TV+4}")
    a(f"v_xor_b32 v{TV+5}, v{TV+5}, v{TV+6}")
    a(f"v_lshlrev_b32 v{TV+4}, 7, v{TV+4}")
    a(f"v_add_u32 v{TV+4}, s{sT0}, v{TV+4}")
    a(f"v_add_u32 v{TV+4}, 8192, v{TV+4}")
    a(f"v_lshl_add_u32 v{WA+8}, v{TV+5}, 4, v{TV+4}")
    a(f"v_xor_b32 v{TV+5}, 1, v{TV+5}")
    a(f"v_lshl_add_u32 v{WA+9}, v{TV+5}, 4, v{TV+4}")
    for i in range(3):
        a(f"v_add_u32 v{TV}, {256*i}, v{vTID}")
        a(f"v_lshrrev_b32 v{TV+1}, 3, v{TV}")
        a(f"v_xor_b32 v{TV+1}, v{TV+1}, v{TV}")
        a(f"v_and_b32 v{TV+1}, 7, v{TV+1}")
        a(f"v_and_b32 v{TV+2}, 0x3f8, v{TV}")
        a(f"v_or_b32 v{TV+1}, v{TV+1}, v{TV+2}")
        a(f"v_lshrrev_b32 v{TV+2}, 4, v{TV+1}")
        a(f"v_mul_u32_u24 v{TV+3}, 205, v{TV+2}")
        a(f"v_lshrrev_b32 v{TV+3}, 10, v{TV+3}")
        a(f"v_mul_u32_u24 v{TV+3}, 315, v{TV+3}")
        a(f"v_add_u32 v{TV+3}, v{TV+3}, v{TV+2}")
        a(f"v_lshlrev_b32 v{TV+3}, 10, v{TV+3}")
        a(f"v_and_b32 v{TV+1}, 15, v{TV+1}")
        a(f"v_lshl_add_u32 v{GA+i}, v{TV+1}, 4, v{TV+3}")

def reduce32(r, t):
    for dpp in ("quad_perm:[1,0,3,2]", "quad_perm:[2,3,0,1]", "row_half_mirror", "row_mirror"):
        a("s_nop 1")
        a(f"v_add_f32_dpp v{r}, v{r}, v{r} {dpp} row_mask:0xf bank_mask:0xf")
    a(f"v_mov_b32 v{t}, v{r}")
    a("s_nop 1")
    a(f"v_permlane16_swap_b32 v{r}, v{t}")
    a("s_nop 1")
    a(f"v_add_f32 v{r}, v{r}, v{t}")

def rne_bf16(dst, src):
    a(f"v_cvt_pk_bf16_f32 v{dst}, v{src}, v{src}")
    a(f"v_and_b32 v{dst}, 0xffff0000, v{dst}")

def ln_compute():
    for m in range(10):
        a(f"v_lshlrev_b32 v{FV+2*m}, 16, v{XR+m}")
        a(f"v_and_b32 v{FV+2*m+1}, 0xffff0000, v{XR+m}")
    s0, s1 = TV, TV+2
    a(f"v_pk_add_f32 {P(s0)}, {P(FV)}, {P(FV+2)}")
    a(f"v_pk_add_f32 {P(s1)}, {P(FV+4)}, {P(FV+6)}")
    for m in range(4, 10):
        s = s0 if m % 2 == 0 else s1
        a(f"v_pk_add_f32 {P(s)}, {P(s)}, {P(FV+2*m)}")
    a(f"v_pk_add_f32 {P(s0)}, {P(s0)}, {P(s1)}")
    mean = TV+4
    a(f"v_add_f32 v{mean}, v{s0}, v{s0+1}")
    reduce32(mean, TV+6)
    a(f"v_mul_f32 v{mean}, {f32hex(1.0/640)}, v{mean}")
    a(f"v_mov_b32 v{mean+1}, v{mean}")
    for m in range(10):
        a(f"v_pk_add_f32 {P(DV+2*m)}, {P(FV+2*m)}, {P(mean)} neg_lo:[0,1] neg_hi:[0,1]")
    a(f"v_pk_mul_f32 {P(s0)}, {P(DV)}, {P(DV)}")
    a(f"v_pk_mul_f32 {P(s1)}, {P(DV+2)}, {P(DV+2)}")
    for m in range(2, 10):
        s = s0 if m % 2 == 0 else s1
        a(f"v_pk_fma_f32 {P(s)}, {P(DV+2*m)}, {P(DV+2*m)}, {P(s)}")
    a(f"v_pk_add_f32 {P(s0)}, {P(s0)}, {P(s1)}")
    var = TV+8
    a(f"v_add_f32 v{var}, v{s0}, v{s0+1}")
    reduce32(var, TV+6)
    a(f"v_mul_f32 v{var}, {f32hex(1.0/640)}, v{var}")
    rs = TV+10
    if args.exact:
        rne_bf16(var, var)
        a(f"v_add_f32 v{var}, {f32hex(1e-5)}, v{var}")
        rne_bf16(var, var)
        a(f"v_sqrt_f32 v{var}, v{var}")
        a("s_nop 0")
        rne_bf16(var, var)
        a(f"v_rcp_f32 v{rs}, v{var}")
        rne_bf16(mean, mean)
        a(f"v_mov_b32 v{mean+1}, v{mean}")
        a(f"v_mov_b32 v{rs+1}, v{rs}")
        for m in range(10):
            a(f"v_pk_add_f32 {P(DV+2*m)}, {P(FV+2*m)}, {P(mean)} neg_lo:[0,1] neg_hi:[0,1]")
        for m in range(10):
            a(f"v_cvt_pk_bf16_f32 v{HP+m}, v{DV+2*m}, v{DV+2*m+1}")
        for m in range(10):
            a(f"v_lshlrev_b32 v{DV+2*m}, 16, v{HP+m}")
            a(f"v_and_b32 v{DV+2*m+1}, 0xffff0000, v{HP+m}")
    else:
        a(f"v_add_f32 v{var}, {f32hex(1e-5)}, v{var}")
        a(f"v_rsq_f32 v{rs}, v{var}")
        a("s_nop 0")
        a(f"v_mov_b32 v{rs+1}, v{rs}")
    for m in range(10):
        a(f"v_pk_mul_f32 {P(DV+2*m)}, {P(DV+2*m)}, {P(rs)}")
    for m in range(10):
        a(f"v_cvt_pk_bf16_f32 v{HP+m}, v{DV+2*m}, v{DV+2*m+1}")
    a(f"s_mov_b32 s{sT0}, 0x05040100")
    a(f"s_mov_b32 s{sT1}, 0x07060302")
    for k in range(5):
        a(f"v_permlane32_swap_b32 v{HP+2*k}, v{HP+2*k+1}")
    a("s_nop 1")
    for k in range(5):
        a(f"v_perm_b32 v{DV+2*k}, v{HP+2*k+1}, v{HP+2*k}, s{sT0}")
        a(f"v_perm_b32 v{DV+2*k+1}, v{HP+2*k+1}, v{HP+2*k}, s{sT1}")
    for k in range(10):
        a(f"ds_write_b32 v{WA+k}, v{DV+k}")

def ln_store():
    a(f"v_lshlrev_b32 v{TV}, 4, v{vTID}")
    a(f"v_add_u32 v{TV}, {T_OFF}, v{TV}")
    a(f"s_lshr_b32 s{sT0}, s{sB}, 2")
    a(f"s_mul_i32 s{sT0}, s{sT0}, 5120")
    a(f"s_and_b32 s{sT1}, s{sB}, 3")
    a(f"s_lshl_b32 s{sT1}, s{sT1}, 8")
    a(f"s_add_u32 s{sT0}, s{sT0}, s{sT1}")
    if H_OFF: a(f"s_add_u32 s{sT0}, s{sT0}, {H_OFF}")
    a("s_waitcnt lgkmcnt(0)")
    a("s_barrier")
    a(f"ds_read_b128 v[{FV}:{FV+3}], v{TV}")
    a(f"ds_read_b128 v[{FV+4}:{FV+7}], v{TV} offset:4096")
    a(f"s_cmp_ge_u32 s{sWV}, 2")
    a("s_cbranch_scc1 L_ln_two")
    a(f"ds_read_b128 v[{FV+8}:{FV+11}], v{TV} offset:8192")
    a("s_waitcnt lgkmcnt(0)")
    a(f"buffer_store_dwordx4 v[{FV+8}:{FV+11}], v{GA+2}, s[{srdWS}:{srdWS+3}], s{sT0} offen{SC}")
    vm.issue("hst3", True)
    a("L_ln_two:")
    a("s_waitcnt lgkmcnt(0)")
    a(f"buffer_store_dwordx4 v[{FV}:{FV+3}], v{GA}, s[{srdWS}:{srdWS+3}], s{sT0} offen{SC}")
    a(f"buffer_store_dwordx4 v[{FV+4}:{FV+7}], v{GA+1}, s[{srdWS}:{srdWS+3}], s{sT0} offen{SC}")
    vm.issue("hst"); vm.issue("hst")

def publish_nonce():
    a(f"s_or_b32 s{sT0}, s{sB}, s{sWV}")
    a(f"s_cmp_lg_u32 s{sT0}, 0")
    a("s_cbranch_scc1 L_no_nonce")
    a(f"s_memrealtime s[{sT0}:{sT0+1}]")
    a("s_waitcnt lgkmcnt(0)")
    a(f"s_or_b32 s{sT1}, s{sT1}, 0x40000000")
    a(f"v_mov_b32 v12, s{sT0}")
    a(f"v_mov_b32 v13, s{sT1}")
    a("v_mov_b32 v14, 0")
    a(f"buffer_store_dwordx2 v[12:13], v14, s[{srdDBG}:{srdDBG+3}], 0 offen sc1")
    a("L_no_nonce:")

def nonce_issue():
    a("v_mov_b32 v18, 0")
    a(f"buffer_load_dwordx2 v[16:17], v18, s[{srdDBG}:{srdDBG+3}], 0 offen sc1")
    vm.issue("nonce")

def nonce_finish(label):
    a(f"s_mov_b32 s{sSPIN}, {SPIN_MAX}")
    a(f"{label}:")
    a(f"v_readfirstlane_b32 s{sNON}, v16")
    a(f"v_readfirstlane_b32 s{sNON+1}, v17")
    a("s_nop 3")
    a(f"s_sub_u32 s{sSPIN}, s{sSPIN}, 1")
    a(f"s_cselect_b32 s{sT0}, 1, s{sNON+1}")
    a(f"s_cmp_lg_u32 s{sT0}, 0")
    a(f"s_cbranch_scc1 {label}_ok")
    a(f"buffer_load_dwordx2 v[16:17], v18, s[{srdDBG}:{srdDBG+3}], 0 offen sc1")
    a("s_waitcnt vmcnt(0)")
    a(f"s_branch {label}")
    a(f"{label}_ok:")

def store_flag(label, off_sreg):
    a(f"s_cmp_lg_u32 s{sWV}, 0")
    a(f"s_cbranch_scc1 {label}")
    a(f"v_mov_b32 v16, s{sNON}")
    a(f"v_mov_b32 v17, s{sNON+1}")
    a("v_mov_b32 v18, 0")
    a(f"s_mov_b64 s[{sEXEC}:{sEXEC+1}], exec")
    a("s_mov_b64 exec, 1")
    a(f"buffer_store_dwordx2 v[16:17], v18, s[{srdWS}:{srdWS+3}], s{off_sreg} offen sc1")
    a(f"s_mov_b64 exec, s[{sEXEC}:{sEXEC+1}]")
    a("s_nop 1")
    a(f"{label}:")
    vm.issue("flag", True)

def poll_flags(label, voff, off_sreg):
    a(f"s_mov_b32 s{sSPIN}, {SPIN_MAX}")
    a(f"{label}:")
    a(f"buffer_load_dwordx2 v[16:17], v{voff}, s[{srdWS}:{srdWS+3}], s{off_sreg} offen sc1")
    a("s_waitcnt vmcnt(0)")
    a(f"v_cmp_ne_u32 vcc, s{sNON}, v16")
    a(f"v_cmp_ne_u32 s[{sT0}:{sT0+1}], s{sNON+1}, v17")
    a("s_nop 3")
    a(f"s_or_b64 vcc, vcc, s[{sT0}:{sT0+1}]")
    a(f"s_cbranch_vccz {label}_ok")
    if args.sleep: a(f"s_sleep {args.sleep}")
    a(f"s_sub_u32 s{sSPIN}, s{sSPIN}, 1")
    a(f"s_cbranch_scc0 {label}")
    a(f"{label}_ok:")
    vm.drained()

def guarded(label, fn):
    a(f"s_cmp_ge_u32 s{sWV}, 2")
    a(f"s_cbranch_scc1 {label}")
    fn()
    a(f"{label}:")

def main_loop(gemm, nks, optional_last, tail_hook=None):
    depth = min(NA, nks)
    nreal = nks - 1 if optional_last else nks
    def loads(ks):
        for mi in range(5): a_load(ks % NA, mi, ks, optional_last and ks == nks - 1)
    for ks in range(depth): loads(ks)
    hooked = False
    for ks in range(nks):
        def body():
            vm.wait(("A", ks))
            if args.mstamps and ks in (0, 4, 8, 12): stamp(f"g{gemm} step {ks} data")
            nxt = ks + depth
            for mi in range(5):
                for c in range(4): mfma(ks == 0, ks, ks % NA, c, mi, gemm)
                if nxt < nreal: a_load(nxt % NA, mi, nxt)
        if optional_last and ks == nks - 1: guarded(f"L_g{gemm}_mm", body)
        else: body()
        nxt = ks + depth
        if optional_last and nxt == nks - 1:
            guarded(f"L_g{gemm}_ld", lambda: loads(nxt))
        if tail_hook is not None and not hooked and ks >= args.hookat:
            if args.mstamps: stamp("before hook")
            tail_hook(); hooked = True

RT = 16
def reduce_waves():
    a("s_nop 7")
    for c in range(1, 4):
        a(f"s_add_u32 s{sT0}, s{sWV}, {c}")
        a(f"s_and_b32 s{sT0}, s{sT0}, 3")
        a(f"s_mul_i32 s{sT1}, s{sT0}, {RING}")
        a(f"s_add_u32 s{sT1}, s{sT1}, {6*4096}")
        a(f"v_add_u32 v12, s{sT1}, v{vA}")
        if c == 3:
            a(f"s_mul_i32 s{sT1}, s{sT0}, 3072")
            a(f"s_add_u32 s{sT1}, s{sT1}, {T_OFF}")
            a(f"v_add_u32 v13, s{sT1}, v{vA}")
        for mi in range(5):
            blk = (c-1)*5 + mi
            r = acc(c, mi)
            if blk < 12: a(f"ds_write_b128 v12, v[{r}:{r+3}] offset:{blk*1024}")
            else:        a(f"ds_write_b128 v13, v[{r}:{r+3}] offset:{(blk-12)*1024}")
    a(f"s_add_u32 s{sT1}, s{sRING}, {6*4096}")
    a(f"v_add_u32 v76, s{sT1}, v{vA}")
    a(f"s_mul_i32 s{sT1}, s{sWV}, 3072")
    a(f"s_add_u32 s{sT1}, s{sT1}, {T_OFF}")
    a(f"v_add_u32 v77, s{sT1}, v{vA}")
    a("s_waitcnt lgkmcnt(0)")
    a("s_barrier")
    for blk in range(15):
        r = RT + 4*blk
        if blk < 12: a(f"ds_read_b128 v[{r}:{r+3}], v76 offset:{blk*1024}")
        else:        a(f"ds_read_b128 v[{r}:{r+3}], v77 offset:{(blk-12)*1024}")
    for c in range(1, 4):
        a(f"s_waitcnt lgkmcnt({15 - 5*c})")
        for mi in range(5):
            for h in range(2):
                d = acc(0, mi) + 2*h; s = RT + 4*((c-1)*5 + mi) + 2*h
                a(f"v_pk_add_f32 {P(d)}, {P(d)}, {P(s)}")

PK = 80
def pack_swap():
    for mi in range(5):
        d = acc(0, mi); r = PK + 2*mi
        a(f"v_cvt_pk_bf16_f32 v{r}, v{d}, v{d+1}")
        a(f"v_cvt_pk_bf16_f32 v{r+1}, v{d+2}, v{d+3}")
    a(f"v_mov_b32 v{PK+10}, v{PK+8}")
    a(f"v_mov_b32 v{PK+11}, v{PK+9}")
    a("s_nop 1")
    for p in range(3):
        b = PK + 4*p
        a(f"v_permlane16_swap_b32 v{b}, v{b+2}")
        a(f"v_permlane16_swap_b32 v{b+1}, v{b+3}")

def epilogue1():
    reduce_waves()
    a(f"v_lshlrev_b32 v96, 16, v{vBIAS}");   a(f"v_and_b32 v97, 0xffff0000, v{vBIAS}")
    a(f"v_lshlrev_b32 v98, 16, v{vBIAS+1}"); a(f"v_and_b32 v99, 0xffff0000, v{vBIAS+1}")
    c1 = -2.0 * 0.7978845608028654 * 1.4426950408889634
    a(f"v_mov_b32 v100, {f32hex(c1)}"); a(f"v_mov_b32 v101, {f32hex(c1)}")
    a(f"v_mov_b32 v102, {f32hex(c1*0.044715)}"); a(f"v_mov_b32 v103, {f32hex(c1*0.044715)}")
    a("v_mov_b32 v104, 1.0"); a("v_mov_b32 v105, 1.0")
    for mi in range(5):
        d = acc(0, mi)
        for h in range(2):
            a(f"v_pk_add_f32 {P(d+2*h)}, {P(d+2*h)}, {P(96+2*h)}")
    T = 16
    for mi in range(5):
        d = acc(0, mi)
        for h in range(2):
            u = d + 2*h; t = T + 4*mi + 2*h
            a(f"v_pk_mul_f32 {P(t)}, {P(u)}, {P(u)}")
            a(f"v_pk_fma_f32 {P(t)}, {P(t)}, {P(102)}, {P(100)}")
            a(f"v_pk_mul_f32 {P(t)}, {P(t)}, {P(u)}")
        t = T + 4*mi
        for k in range(4): a(f"v_exp_f32 v{t+k}, v{t+k}")
        for h in range(2): a(f"v_pk_add_f32 {P(t+2*h)}, {P(t+2*h)}, {P(104)}")
        for k in range(4): a(f"v_rcp_f32 v{t+k}, v{t+k}")
        a("s_nop 0")
        for h in range(2): a(f"v_pk_mul_f32 {P(d+2*h)}, {P(d+2*h)}, {P(t+2*h)}")
    pack_swap()
    a(f"v_lshrrev_b32 v12, 4, v{vLANE}")
    a("v_and_b32 v13, 1, v12")
    a("v_lshlrev_b32 v13, 10, v13")
    a("v_lshrrev_b32 v12, 1, v12")
    a("v_lshl_add_u32 v13, v12, 8, v13")
    a(f"v_and_b32 v12, 15, v{vLANE}")
    a("v_lshl_add_u32 v13, v12, 4, v13")
    a(f"v_and_b32 v12, 0xfffffbff, v13")
    a(f"s_mul_i32 s{sT0}, s{sDT1}, 54")
    a(f"s_lshl_b32 s{sT1}, s{sFT}, 1")
    a(f"s_add_u32 s{sT0}, s{sT0}, s{sT1}")
    a(f"s_lshr_b32 s{sT1}, s{sWV}, 1")
    a(f"s_add_u32 s{sT0}, s{sT0}, s{sT1}")
    a(f"s_mul_i32 s{sT0}, s{sT0}, 5120")
    a(f"s_and_b32 s{sT1}, s{sWV}, 1")
    a(f"s_lshl_b32 s{sT1}, s{sT1}, 9")
    a(f"s_add_u32 s{sT0}, s{sT0}, s{sT1}")
    a(f"s_add_u32 s{sT0}, s{sT0}, {G_OFF}")
    a(f"s_add_u32 s{sT1}, s{sT0}, 4096")
    a(f"buffer_store_dwordx4 v[{PK}:{PK+3}], v13, s[{srdWS}:{srdWS+3}], s{sT0} offen{SC}")
    a(f"buffer_store_dwordx4 v[{PK+4}:{PK+7}], v13, s[{srdWS}:{srdWS+3}], s{sT0} offen offset:2048{SC}")
    a(f"buffer_store_dwordx4 v[{PK+8}:{PK+11}], v12, s[{srdWS}:{srdWS+3}], s{sT1} offen{SC}")

def epilogue2():
    reduce_waves()
    a(f"v_lshlrev_b32 v96, 16, v{vBIAS}")
    a("v_mov_b32 v97, v96")
    for mi in range(5):
        d = acc(0, mi)
        for h in range(2):
            a(f"v_pk_add_f32 {P(d+2*h)}, {P(d+2*h)}, {P(96)}")
    pack_swap()
    a(f"v_lshrrev_b32 v12, 4, v{vLANE}")
    a("v_and_b32 v13, 1, v12")
    a("v_lshlrev_b32 v13, 5, v13")
    a("v_lshrrev_b32 v12, 1, v12")
    a("v_lshl_add_u32 v13, v12, 4, v13")
    a(f"v_and_b32 v12, 15, v{vLANE}")
    a("v_mul_u32_u24 v12, 1280, v12")
    a("v_add_u32 v13, v13, v12")
    a(f"v_and_b32 v12, 16, v{vLANE}")
    a("v_lshlrev_b32 v12, 1, v12")
    a("v_sub_u32 v12, v13, v12")
    a(f"s_lshl_b32 s{sT0}, s{sST}, 2")
    a(f"s_add_u32 s{sT0}, s{sT0}, s{sWV}")
    a(f"s_mul_i32 s{sT0}, s{sT0}, {16*1280}")
    a(f"s_mul_i32 s{sT1}, s{sDT}, 160")
    a(f"s_add_u32 s{sT0}, s{sT0}, s{sT1}")
    a(f"buffer_store_dwordx4 v[{PK}:{PK+3}], v13, s[{srdOUT}:{srdOUT+3}], s{sT0} offen")
    a(f"buffer_store_dwordx4 v[{PK+4}:{PK+7}], v13, s[{srdOUT}:{srdOUT+3}], s{sT0} offen offset:64")
    a(f"buffer_store_dwordx4 v[{PK+8}:{PK+11}], v12, s[{srdOUT}:{srdOUT+3}], s{sT0} offen offset:128")

def set_rot(n, mode, g, dreg):
    if mode == "none" or not args.rot:
        a(f"s_mov_b32 s{sROT}, 0"); return
    if mode == "d":
        a(f"s_mov_b32 s{sT0}, s{dreg}")
    else:
        a(f"s_lshr_b32 s{sT0}, s{sB}, 5")
        if mode == "qd": a(f"s_add_u32 s{sT0}, s{sT0}, s{dreg}")
    assert g in (2, 4, 8)
    a(f"s_and_b32 s{sT0}, s{sT0}, {g-1}")
    a(f"s_mul_i32 s{sT0}, s{sT0}, {n}")
    a(f"s_lshr_b32 s{sROT}, s{sT0}, {g.bit_length()-1}")
def set_run(run, base, end, n, stride):
    a(f"s_add_u32 s{end}, s{base}, {n*stride}")
    a(f"s_mul_i32 s{run}, s{sROT}, {stride}")
    a(f"s_add_u32 s{run}, s{run}, s{base}")
def set_w1_base():
    set_rot(16, args.rotmode, args.groups, sDT1)
    a(f"s_lshl_b32 s{sT0}, s{sWV}, 4")
    a(f"s_mul_i32 s{sWBASE}, s{sT0}, {W1_KS}")
    a(f"s_lshl_b32 s{sT0}, s{sFT}, 7")
    a(f"s_add_u32 s{sWBASE}, s{sWBASE}, s{sT0}")
    set_run(sWOFF, sWBASE, sWEND, 16, W1_KS)
def set_h_base():
    a(f"s_lshl_b32 s{sT0}, s{sDT1}, 6")
    a(f"s_lshl_b32 s{sT1}, s{sWV}, 4")
    a(f"s_add_u32 s{sT0}, s{sT0}, s{sT1}")
    a(f"s_mul_i32 s{sABASE}, s{sT0}, 5120")
    if H_OFF: a(f"s_add_u32 s{sABASE}, s{sABASE}, {H_OFF}")
    set_run(sAOFF, sABASE, sAEND, 16, 5120)
def k2_start(dst):
    a(f"s_mul_i32 s{dst}, s{sWV}, 14")
    a(f"s_cmp_eq_u32 s{sWV}, 3")
    a(f"s_cselect_b32 s{sT3}, 1, 0")
    a(f"s_sub_u32 s{dst}, s{dst}, s{sT3}")
def set_w2_base():
    set_rot(13, args.rotmode2, args.groups2, sDT)
    k2_start(sT0)
    a(f"s_mul_i32 s{sWBASE}, s{sT0}, {W2_KS}")
    a(f"s_lshl_b32 s{sT0}, s{sST}, 7")
    a(f"s_add_u32 s{sWBASE}, s{sWBASE}, s{sT0}")
    set_run(sWOFF, sWBASE, sWEND, 13, W2_KS)
def set_g_base():
    k2_start(sT0)
    a(f"s_mul_i32 s{sT1}, s{sDT}, 54")
    a(f"s_add_u32 s{sT0}, s{sT0}, s{sT1}")
    a(f"s_mul_i32 s{sABASE}, s{sT0}, 5120")
    a(f"s_add_u32 s{sABASE}, s{sABASE}, {G_OFF}")
    set_run(sAOFF, sABASE, sAEND, 13, 5120)

def stage_weights(srd, kstride, nks, issued, optional_last, tag):
    st = {"nxt": issued}
    def issue():
        n = st["nxt"]
        opt = optional_last and n == nks - 1
        fn = lambda: dma_step(srd, n, n % NSLOT, kstride, opt, opt)
        if opt: guarded(f"L_{tag}_d{n}", fn)
        else: fn()
        st["nxt"] += 1
    while st["nxt"] < min(NSLOT, nks): issue()
    for ks in range(nks):
        def body():
            if any(t == (srd, ks) for t, o in vm.ops): vm.wait((srd, ks))
            tr_step(ks, ks % NSLOT)
        if optional_last and ks == nks - 1: guarded(f"L_{tag}_tr", body)
        else: body()
        if ks >= 1 and st["nxt"] < nks:
            a("s_waitcnt lgkmcnt(8)")
            issue()
    a("s_waitcnt lgkmcnt(0)")

def role_split(tag, g1_fn, idle_fn=None):
    a(f"s_cmp_eq_u32 s{sROLE}, 0")
    a(f"s_cbranch_scc1 L_{tag}_idle")
    g1_fn()
    if idle_fn is not None:
        a(f"s_branch L_{tag}_done")
        a(f"L_{tag}_idle:")
        idle_fn()
        a(f"L_{tag}_done:")
    else:
        a(f"L_{tag}_idle:")

file_begin(a, [(MAIN, 256, 256, LDS_BYTES)])
prologue(MAIN, "L_end")
stamp("kernarg")
publish_nonce()
ln_issue()
dma_offsets(W1_ROW)
set_w1_base()
pos = [0]
def w1_issue(n):
    def f():
        for _ in range(n):
            dma_step(srdW1, pos[0], pos[0] % NSLOT, W1_KS); pos[0] += 1
    return f
role_split("pre", w1_issue(args.npre))
ln_addresses()
tr_addresses()
role_split("xw", lambda: vm.wait("x"), lambda: a("s_waitcnt vmcnt(0)"))
stamp("x landed")
ln_compute()
if args.n1: role_split("n1", w1_issue(args.n1))
ln_store()
nonce_issue()
stamp("h stores issued")
assert args.npre + args.n1 + args.n2 <= NSLOT
if args.n2: role_split("n2", w1_issue(args.n2))
role_split("hw", lambda: vm.wait("nonce"), lambda: a("s_waitcnt vmcnt(0)"))
nonce_finish("L_nonce")
a("s_barrier")
a(f"s_lshl_b32 s{sT2}, s{sB}, 6")
a(f"s_add_u32 s{sT2}, s{sT2}, {FL_LN}")
store_flag("L_flag_ln", sT2)
stamp("LN flag stored")
a(f"s_cmp_eq_u32 s{sROLE}, 0")
a("s_cbranch_scc1 L_idle")
i_branch = nstamp[0]
a(f"s_lshl_b32 s{sT0}, s{sFT}, 7")
a(f"s_lshl_b32 s{sT1}, s{sWV}, 5")
a(f"s_add_u32 s{sT0}, s{sT0}, s{sT1}")
a(f"v_lshrrev_b32 v12, 4, v{vLANE}")
a("v_lshlrev_b32 v12, 3, v12")
a(f"buffer_load_dwordx2 v[{vBIAS}:{vBIAS+1}], v12, s[{srdB1}:{srdB1+3}], s{sT0} offen")
vm.issue("b1")
stage_weights(srdW1, W1_KS, 16, pos[0], False, "w1")
a("s_barrier")
stamp("w1 in regs")
set_h_base()
a(f"s_lshl_b32 s{sT2}, s{sWV}, 12")
a(f"s_add_u32 s{sT2}, s{sT2}, {FL_LN}")
a(f"v_lshlrev_b32 v18, 6, v{vLANE}")
poll_flags("L_poll_ln", 18, sT2)
stamp("LN flags seen")
def w2_early():
    dma_offsets(W2_ROW)
    set_w2_base()
    for ks in range(args.n2pre): dma_step(srdW2, ks, ks, W2_KS)
main_loop(1, 16, False, w2_early)
stamp("main1 done")
epilogue1()
stamp("G stores issued")
a("s_waitcnt vmcnt(0)")
vm.drained()
a("s_barrier")
a(f"s_lshl_b32 s{sT2}, s{sDT1}, 5")
a(f"s_add_u32 s{sT2}, s{sT2}, s{sFT}")
a(f"s_lshl_b32 s{sT2}, s{sT2}, 6")
a(f"s_add_u32 s{sT2}, s{sT2}, {FL_G}")
store_flag("L_flag_g", sT2)
stamp("G flag stored")
i_join = nstamp[0]
a("s_branch L_gemm2")
a("L_idle:")
nstamp[0] = i_branch
if args.w2pf:
    if args.pfwait:
        a(f"s_lshl_b32 s{sT2}, s{sWV}, 12")
        a(f"s_add_u32 s{sT2}, s{sT2}, {FL_LN}")
        a(f"v_lshlrev_b32 v18, 6, v{vLANE}")
        poll_flags("L_poll_idle", 18, sT2)
    a(f"s_lshl_b32 s{sT0}, s{sIDLE}, 2")
    a(f"s_add_u32 s{sT0}, s{sT0}, s{sWV}")
    a(f"s_mul_i32 s{sT0}, s{sT0}, {44*1024}")
    a(f"s_mov_b32 s{sT1}, 44")
    a("L_pf_loop:")
    a(f"buffer_load_dwordx4 v[20:23], v{vA}, s[{srdW2}:{srdW2+3}], s{sT0} offen{fl(args.pffl)}")
    a(f"s_add_u32 s{sT0}, s{sT0}, 1024")
    a(f"s_sub_u32 s{sT1}, s{sT1}, 1")
    a(f"s_cmp_lg_u32 s{sT1}, 0")
    a("s_cbranch_scc1 L_pf_loop")
    a("s_waitcnt vmcnt(0)")
while nstamp[0] < i_join and args.stamps: stamp("idle")
dma_offsets(W2_ROW)
set_w2_base()
for ks in range(args.n2pre): dma_step(srdW2, ks, ks, W2_KS)
a("s_waitcnt vmcnt(0)")
vm.drained()
a("L_gemm2:")
a(f"s_lshl_b32 s{sT0}, s{sST}, 7")
a(f"s_lshl_b32 s{sT1}, s{sWV}, 5")
a(f"s_add_u32 s{sT0}, s{sT0}, s{sT1}")
a(f"v_and_b32 v12, 15, v{vLANE}")
a("v_lshlrev_b32 v12, 1, v12")
a(f"buffer_load_ushort v{vBIAS}, v12, s[{srdB2}:{srdB2+3}], s{sT0} offen")
vm.issue("b2")
stage_weights(srdW2, W2_KS, 14, args.n2pre, True, "w2")
a("s_barrier")
stamp("w2 in regs")
set_g_base()
a(f"s_mul_i32 s{sT2}, s{sWV}, 7")
a(f"s_cmp_eq_u32 s{sWV}, 3")
a(f"s_cselect_b32 s{sT3}, 1, 0")
a(f"s_sub_u32 s{sT2}, s{sT2}, s{sT3}")
a(f"s_lshl_b32 s{sT3}, s{sDT}, 5")
a(f"s_add_u32 s{sT2}, s{sT2}, s{sT3}")
a(f"s_lshl_b32 s{sT2}, s{sT2}, 6")
a(f"s_add_u32 s{sT2}, s{sT2}, {FL_G}")
a(f"v_min_u32 v18, 6, v{vLANE}")
a("v_lshlrev_b32 v18, 6, v18")
poll_flags("L_poll_g", 18, sT2)
stamp("G flags seen")
main_loop(2, 14, True)
stamp("main2 done")
epilogue2()
stamp("end")
write_stamps("L_st", STAMP)
a("L_end:")
a("s_endpgm")
a("L_code_end:")
kernel_desc(a, MAIN, 512, 102, 256)
print(a.text())
```

```python
import sys, argparse, struct
sys.path.insert(0, "tools")
from asmlib import *

ap = argparse.ArgumentParser()
ap.add_argument("--stamps", type=int, default=0)
ap.add_argument("--npre", type=int, default=3)
ap.add_argument("--codepf", type=int, default=1)
ap.add_argument("--w2pf", type=int, default=1)
ap.add_argument("--exact", type=int, default=1)
ap.add_argument("--n2pre", type=int, default=4)
ap.add_argument("--sleep", type=int, default=1)
ap.add_argument("--asc", default="sc1")
ap.add_argument("--ssc", default="sc1")
ap.add_argument("--nomfma", type=int, default=0)
ap.add_argument("--na", type=int, default=8)
ap.add_argument("--rot", type=int, default=1)
ap.add_argument("--n1", type=int, default=2)
ap.add_argument("--n2", type=int, default=3)
ap.add_argument("--groups", type=int, default=8)
ap.add_argument("--xfl", default="nt")
ap.add_argument("--w1fl", default="none")
ap.add_argument("--w2fl", default="none")
ap.add_argument("--pffl", default="none")
ap.add_argument("--ofl", default="none")
ap.add_argument("--pfwait", type=int, default=1)
ap.add_argument("--rotmode", default="qd")
ap.add_argument("--rotmode2", default="qd")
ap.add_argument("--groups2", type=int, default=8)
ap.add_argument("--hookat", type=int, default=15)
ap.add_argument("--padto", type=int, default=0)
ap.add_argument("--dbgstamps", default="")
ap.add_argument("--map1", default="2d")
ap.add_argument("--mstamps", type=int, default=0)
args = ap.parse_args()

def fl(s): return "" if s == "none" else " " + s.replace("+", " ")
def f32hex(x): return "0x%08x" % struct.unpack("<I", struct.pack("<f", x))[0]

S, D, F = 2048, 640, 1728
H_OFF   = 0
G_OFF   = 0x280000
FL_LN   = 0x500000
FL_G    = 0x508000
STAMP   = 0x8000000
W1_ROW, W2_ROW = 3456, 4096
W1_KS, W2_KS = 32 * W1_ROW, 32 * W2_ROW
RING = 36864
NSLOT = 9
T_OFF = 147456
LDS_BYTES = 163840
SPIN_MAX = 200000
SC = (" " + args.ssc.replace("+", " ")) if args.ssc != "none" else ""
ASC = (" " + args.asc.replace("+", " ")) if args.asc != "none" else ""

sB, sWV = 2, 3
sDT, sFT, sST, sROLE = 4, 5, 6, 7
srdX, srdW1, srdW2, srdB1, srdB2, srdOUT, srdDBG, srdWS = 8, 12, 16, 20, 24, 28, 32, 36
sNON = 40
sT0, sT1, sT2, sT3 = 42, 43, 44, 45
sRING = 46
sOFF = 47
sKARG = 48
sSTAMP = 64
sWOFF = 96
sAOFF = 97
sSPIN = 98
sJ = 99
sEXEC = 100
sWBASE, sWEND, sABASE, sAEND, sROT = 48, 49, 50, 51, 52
sDT1, sIDLE = 94, 95

vTID, vLANE = 0, 1
vA, vA2 = 2, 3
vD = 4
vT = 8
vBIAS = 14
ABUF = 16
NA = args.na
ACC = 176
def acc(c, mi): return ACC + (c * 5 + mi) * 4
def abuf(slot, mi): return ABUF + slot * 20 + mi * 4
P = lambda r: f"v[{r}:{r+1}]"

a = Asm()
class VM:
    def __init__(self): self.ops = []
    def issue(self, tag, optional=False): self.ops.append((tag, optional))
    def count_after(self, tag):
        idx = max(i for i, (t, o) in enumerate(self.ops) if t == tag)
        return sum(1 for t, o in self.ops[idx+1:] if not o)
    def wait(self, tag):
        n = self.count_after(tag)
        assert n <= 63, (tag, n)
        a(f"s_waitcnt vmcnt({n})")
    def drained(self): self.ops = [(t, o) for t, o in self.ops[-1:]] and [("_", True)]
    def copy(self):
        v = VM(); v.ops = list(self.ops); return v
vm = VM()
nstamp = [0]
NSTAMPS = 28
stamp_names = {}
def stamp(name):
    if not args.stamps: return
    i = nstamp[0]; nstamp[0] += 1
    assert i < NSTAMPS
    stamp_names.setdefault(i, name)
    a("s_memrealtime s[92:93]")
    a("s_waitcnt lgkmcnt(0)")
    a(f"s_mov_b32 s{sSTAMP+i}, s92")

def write_stamps(label, base):
    if not args.stamps: return
    if args.dbgstamps:
        ids = [int(x) for x in args.dbgstamps.split(",")]
        a(f"s_cmp_lg_u32 s{sWV}, 0")
        a(f"s_cbranch_scc1 {label}_nostamp")
        a("s_mov_b64 exec, 1")
        a("v_mov_b32 v12, 0")
        a(f"s_not_b32 s{sT0}, s{sSTAMP}")
        a(f"v_mov_b32 v16, s{sT0}")
        a(f"buffer_atomic_umax v16, v12, s[{srdDBG}:{srdDBG+3}], 0 offen offset:8 sc1")
        for n, i in enumerate(ids):
            a(f"v_mov_b32 v{17+n}, s{sSTAMP+i}")
            a(f"buffer_atomic_umax v{17+n}, v12, s[{srdDBG}:{srdDBG+3}], 0 offen offset:{12+4*n} sc1")
        a(f"{label}_nostamp:")
        for i in sorted(stamp_names): a(f"; STAMPNAME {i} {stamp_names[i]}")
        return
    a(f"s_cmp_lg_u32 s{sWV}, {args.stamps - 1}")
    a(f"s_cbranch_scc1 {label}_nostamp")
    a(f"s_mul_i32 s{sT0}, s{sB}, 128")
    a(f"s_add_u32 s{sT0}, s{sT0}, {base}")
    a("v_mov_b32 v12, 0")
    a("s_mov_b64 exec, 1")
    for i in range(0, NSTAMPS, 4):
        for k in range(4):
            if i + k < nstamp[0]: a(f"v_mov_b32 v{16+k}, s{sSTAMP + i + k}")
            else:                 a(f"v_mov_b32 v{16+k}, 0")
        a(f"buffer_store_dwordx4 v[16:19], v12, s[{srdWS}:{srdWS+3}], s{sT0} offen offset:{i*4}")
        a("s_nop 2")
    a(f"{label}_nostamp:")
    for i in sorted(stamp_names): a(f"; STAMPNAME {i} {stamp_names[i]}")

def mk_srd(d, p, nbytes):
    a(f"s_mov_b32 s{d}, s{p}")
    a(f"s_and_b32 s{d+1}, s{p+1}, 0xffff")
    a(f"s_mov_b32 s{d+2}, {nbytes}")
    a(f"s_mov_b32 s{d+3}, 0x00020000")

def prologue(name, endlabel):
    kernel_begin(a, name)
    stamp("start")
    if args.padto:
        a("s_memrealtime s[90:91]")
    a(f"s_cmp_ge_u32 s{sB}, 256")
    a(f"s_cbranch_scc1 {endlabel}")
    a(f"s_load_dwordx16 s[{sKARG}:{sKARG+15}], s[0:1], 0")
    a(f"v_and_b32 v{vLANE}, 63, v{vTID}")
    a(f"v_lshrrev_b32 v12, 6, v{vTID}")
    a(f"v_lshlrev_b32 v{vA}, 4, v{vLANE}")
    a(f"v_readfirstlane_b32 s{sWV}, v12")
    a(f"v_add_u32 v{vA2}, 0x1000, v{vA}")
    if args.codepf: code_prefetch()
    a(f"s_and_b32 s{sT0}, s{sB}, 1")
    a(f"s_lshl_b32 s{sT0}, s{sT0}, 2")
    a(f"s_lshr_b32 s{sT1}, s{sB}, 3")
    a(f"s_and_b32 s{sT2}, s{sT1}, 3")
    a(f"s_add_u32 s{sDT}, s{sT0}, s{sT2}")
    a(f"s_lshr_b32 s{sT1}, s{sT1}, 2")
    a(f"s_bfe_u32 s{sJ}, s{sB}, 0x20001")
    a(f"s_lshl_b32 s{sT2}, s{sJ}, 3")
    a(f"s_add_u32 s{sST}, s{sT2}, s{sT1}")
    if args.map1 == "2d":
        a(f"s_mov_b32 s{sDT1}, s{sDT}")
        a(f"s_mul_i32 s{sT2}, s{sJ}, 7")
        a(f"s_add_u32 s{sFT}, s{sT2}, s{sT1}")
        a(f"s_cmp_eq_u32 s{sJ}, 3")
        a(f"s_cselect_b32 s{sT2}, 6, 7")
        a(f"s_cmp_lt_u32 s{sT1}, s{sT2}")
        a(f"s_cselect_b32 s{sROLE}, 1, 0")
        a(f"s_and_b32 s{sT0}, s{sB}, 7")
        a(f"s_and_b32 s{sT2}, s{sB}, 1")
        a(f"s_add_u32 s{sT2}, s{sT2}, 8")
        a(f"s_cmp_eq_u32 s{sT1}, 7")
        a(f"s_cselect_b32 s{sT0}, s{sT0}, s{sT2}")
        a(f"s_lshl_b32 s{sT0}, s{sT0}, 2")
        a(f"s_bfe_u32 s{sT2}, s{sB}, 0x20003")
        a(f"s_add_u32 s{sIDLE}, s{sT0}, s{sT2}")
    else:
        a(f"s_bfe_u32 s{sDT1}, s{sB}, 0x30003")
        a(f"s_lshr_b32 s{sT0}, s{sB}, 6")
        a(f"s_lshl_b32 s{sT0}, s{sT0}, 3")
        a(f"s_and_b32 s{sT2}, s{sB}, 7")
        a(f"s_add_u32 s{sFT}, s{sT0}, s{sT2}")
        a(f"s_cmp_lt_u32 s{sFT}, 27")
        a(f"s_cselect_b32 s{sROLE}, 1, 0")
        a(f"s_sub_u32 s{sT0}, s{sFT}, 27")
        a(f"s_lshl_b32 s{sT0}, s{sT0}, 3")
        a(f"s_add_u32 s{sIDLE}, s{sT0}, s{sDT1}")
    a(f"s_mul_i32 s{sRING}, s{sWV}, {RING}")
    a("s_waitcnt lgkmcnt(0)")
    mk_srd(srdX,   sKARG+0,  S*D*2)
    mk_srd(srdW1,  sKARG+2,  S*F*2)
    mk_srd(srdB1,  sKARG+4,  F*2)
    mk_srd(srdW2,  sKARG+6,  F*S*2)
    mk_srd(srdB2,  sKARG+8,  S*2)
    mk_srd(srdOUT, sKARG+10, S*D*2)
    mk_srd(srdDBG, sKARG+12, 256)
    mk_srd(srdWS,  sKARG+14, 268435456)

def code_prefetch():
    a(f"s_getpc_b64 s[{sT0}:{sT0+1}]")
    a("L_pf_base:")
    a("s_nop 2")
    a(f"s_lshr_b32 s{sT2}, s{sB}, 3")
    a(f"s_and_b32 s{sT2}, s{sT2}, 7")
    a(f"s_lshl_b32 s{sT2}, s{sT2}, 2")
    a(f"s_add_u32 s{sT2}, s{sT2}, s{sWV}")
    a(f"s_min_u32 s{sT2}, s{sT2}, (L_code_end - L_pf_base) / 1024 - 1")
    a(f"s_lshl_b32 s{sT2}, s{sT2}, 10")
    a(f"s_add_u32 s{sT0}, s{sT0}, s{sT2}")
    a(f"s_addc_u32 s{sT1}, s{sT1}, 0")
    a(f"global_load_dwordx4 v[96:99], v{vA}, s[{sT0}:{sT0+1}]")

def dma_offsets(row):
    a(f"v_lshrrev_b32 v12, 3, v{vLANE}")
    a(f"v_and_b32 v13, 2, v12")
    a(f"v_mul_u32_u24 v12, {row}, v12")
    a(f"v_and_b32 v{vD+2}, 7, v{vLANE}")
    a(f"v_xor_b32 v13, v13, v{vD+2}")
    a(f"v_lshl_add_u32 v{vD}, v13, 4, v12")
    a(f"v_xor_b32 v13, 4, v13")
    a(f"v_lshl_add_u32 v{vD+1}, v13, 4, v12")
    a(f"v_add_u32 v{vD+1}, {8*row}, v{vD+1}")
    a(f"v_add_u32 v{vD+2}, {16*row}, v{vD}")
    a(f"v_add_u32 v{vD+3}, {16*row}, v{vD+1}")

def tr_addresses():
    a(f"v_lshrrev_b32 v12, 4, v{vLANE}")
    a(f"v_bfe_u32 v13, v{vLANE}, 2, 2")
    a(f"v_lshl_add_u32 v14, v12, 3, v13")
    a(f"v_lshlrev_b32 v14, 7, v14")
    a(f"v_and_b32 v15, 1, v{vLANE}")
    a(f"v_lshl_add_u32 v14, v15, 3, v14")
    a(f"v_add_u32 v14, s{sRING}, v14")
    a(f"v_and_b32 v12, 1, v12")
    a(f"v_lshlrev_b32 v12, 2, v12")
    a(f"v_and_b32 v13, 2, v13")
    a(f"v_or_b32 v12, v12, v13")
    a(f"v_bfe_u32 v13, v{vLANE}, 1, 1")
    a(f"v_xor_b32 v12, v12, v13")
    for c in range(4):
        a(f"s_add_u32 s{sT0}, s{sWV}, {c}")
        a(f"s_and_b32 s{sT0}, s{sT0}, 3")
        a(f"s_lshl_b32 s{sT0}, s{sT0}, 1")
        a(f"v_xor_b32 v13, s{sT0}, v12")
        a(f"v_lshl_add_u32 v{vT+c}, v13, 4, v14")

def advance(run, base, end, stride):
    a(f"s_add_u32 s{run}, s{run}, {stride}")
    a(f"s_cmp_eq_u32 s{run}, s{end}")
    a(f"s_cselect_b32 s{run}, s{base}, s{run}")

def dma_step(srd, ks, slot, kstride, fixed=False, optional=False):
    off = sWOFF
    if fixed:
        a(f"s_add_u32 s{sOFF}, s{sWBASE}, {ks*kstride}"); off = sOFF
    for q in range(4):
        a(f"s_add_u32 m0, s{sRING}, {slot*4096 + q*1024}")
        a("s_nop 0")
        a(f"buffer_load_dwordx4 v{vD+q}, s[{srd}:{srd+3}], s{off} offen{fl(args.w1fl if srd == srdW1 else args.w2fl)} lds")
        vm.issue((srd, ks), optional)
    if not fixed: advance(sWOFF, sWBASE, sWEND, kstride)

def tr_step(ks, slot):
    for c in range(4):
        for t in range(2):
            r = 16*ks + 4*c + 2*t
            a(f"ds_read_b64_tr_b16 a[{r}:{r+1}], v{vT+c} offset:{slot*4096 + t*512}")

def a_load(slot, mi, ks, fixed=False):
    r = abuf(slot, mi)
    off = sAOFF
    if fixed:
        off = sOFF
        if mi == 0: a(f"s_add_u32 s{sOFF}, s{sABASE}, {ks*5120}")
    if mi < 4:
        a(f"buffer_load_dwordx4 v[{r}:{r+3}], v{vA}, s[{srdWS}:{srdWS+3}], s{off} offen offset:{mi*1024}{ASC}")
    else:
        a(f"buffer_load_dwordx4 v[{r}:{r+3}], v{vA2}, s[{srdWS}:{srdWS+3}], s{off} offen{ASC}")
        if not fixed: advance(sAOFF, sABASE, sAEND, 5120)
    vm.issue(("A", ks), fixed)

def mfma(first, ks, slot, c, mi, gemm):
    if args.nomfma and not first: return
    d = acc(c, mi); wr = 16*ks + 4*c; ar = abuf(slot, mi)
    cin = "0" if first else f"v[{d}:{d+3}]"
    if gemm == 1:
        a(f"v_mfma_f32_16x16x32_bf16 v[{d}:{d+3}], a[{wr}:{wr+3}], v[{ar}:{ar+3}], {cin}")
    else:
        a(f"v_mfma_f32_16x16x32_bf16 v[{d}:{d+3}], v[{ar}:{ar+3}], a[{wr}:{wr+3}], {cin}")

XR = 16
FV = 28
DV = 48
HP = 68
WA = 80
GA = 92
TV = 100
def ln_issue():
    a(f"s_lshl_b32 s{sT0}, s{sB}, 3")
    a(f"s_lshl_b32 s{sT1}, s{sWV}, 1")
    a(f"s_add_u32 s{sT0}, s{sT0}, s{sT1}")
    a(f"s_mul_i32 s{sT0}, s{sT0}, 1280")
    a(f"v_lshrrev_b32 v12, 5, v{vLANE}")
    a(f"v_mul_u32_u24 v12, 1280, v12")
    a(f"v_and_b32 v13, 31, v{vLANE}")
    a(f"v_lshl_add_u32 v14, v13, 4, v12")
    a(f"v_lshl_add_u32 v15, v13, 3, v12")
    a(f"buffer_load_dwordx4 v[{XR}:{XR+3}], v14, s[{srdX}:{srdX+3}], s{sT0} offen{fl(args.xfl)}")
    a(f"buffer_load_dwordx4 v[{XR+4}:{XR+7}], v14, s[{srdX}:{srdX+3}], s{sT0} offen offset:512{fl(args.xfl)}")
    a(f"buffer_load_dwordx2 v[{XR+8}:{XR+9}], v15, s[{srdX}:{srdX+3}], s{sT0} offen offset:1024{fl(args.xfl)}")
    for _ in range(3): vm.issue("x")

def ln_addresses():
    a(f"v_and_b32 v{TV}, 31, v{vLANE}")
    a(f"v_lshrrev_b32 v{TV+1}, 5, v{vLANE}")
    a(f"v_lshlrev_b32 v{TV+1}, 1, v{TV+1}")
    a(f"s_lshl_b32 s{sT0}, s{sWV}, 2")
    a(f"s_add_u32 s{sT0}, s{sT0}, {T_OFF}")
    a(f"v_and_b32 v{TV+2}, 7, v{TV}")
    a(f"v_xor_b32 v{TV+2}, v{TV+2}, v{TV+1}")
    a(f"v_lshlrev_b32 v{TV+3}, 7, v{TV}")
    a(f"v_add_u32 v{TV+3}, s{sT0}, v{TV+3}")
    for k in range(4):
        base = 4096 if k >= 2 else 0
        e = 4 if (k & 1) else 0
        for o in range(2):
            a(f"v_xor_b32 v{TV+4}, {e + o}, v{TV+2}")
            a(f"v_lshl_add_u32 v{WA + 2*k + o}, v{TV+4}, 4, v{TV+3}")
            if base: a(f"v_add_u32 v{WA + 2*k + o}, {base}, v{WA + 2*k + o}")
    a(f"v_lshrrev_b32 v{TV+4}, 1, v{TV}")
    a(f"v_and_b32 v{TV+5}, 1, v{TV}")
    a(f"v_lshl_add_u32 v{TV+5}, v{TV+5}, 2, v{TV+1}")
    a(f"v_and_b32 v{TV+6}, 7, v{TV+4}")
    a(f"v_xor_b32 v{TV+5}, v{TV+5}, v{TV+6}")
    a(f"v_lshlrev_b32 v{TV+4}, 7, v{TV+4}")
    a(f"v_add_u32 v{TV+4}, s{sT0}, v{TV+4}")
    a(f"v_add_u32 v{TV+4}, 8192, v{TV+4}")
    a(f"v_lshl_add_u32 v{WA+8}, v{TV+5}, 4, v{TV+4}")
    a(f"v_xor_b32 v{TV+5}, 1, v{TV+5}")
    a(f"v_lshl_add_u32 v{WA+9}, v{TV+5}, 4, v{TV+4}")
    for i in range(3):
        a(f"v_add_u32 v{TV}, {256*i}, v{vTID}")
        a(f"v_lshrrev_b32 v{TV+1}, 3, v{TV}")
        a(f"v_xor_b32 v{TV+1}, v{TV+1}, v{TV}")
        a(f"v_and_b32 v{TV+1}, 7, v{TV+1}")
        a(f"v_and_b32 v{TV+2}, 0x3f8, v{TV}")
        a(f"v_or_b32 v{TV+1}, v{TV+1}, v{TV+2}")
        a(f"v_lshrrev_b32 v{TV+2}, 4, v{TV+1}")
        a(f"v_mul_u32_u24 v{TV+3}, 205, v{TV+2}")
        a(f"v_lshrrev_b32 v{TV+3}, 10, v{TV+3}")
        a(f"v_mul_u32_u24 v{TV+3}, 315, v{TV+3}")
        a(f"v_add_u32 v{TV+3}, v{TV+3}, v{TV+2}")
        a(f"v_lshlrev_b32 v{TV+3}, 10, v{TV+3}")
        a(f"v_and_b32 v{TV+1}, 15, v{TV+1}")
        a(f"v_lshl_add_u32 v{GA+i}, v{TV+1}, 4, v{TV+3}")

def reduce32(r, t):
    for dpp in ("quad_perm:[1,0,3,2]", "quad_perm:[2,3,0,1]", "row_half_mirror", "row_mirror"):
        a("s_nop 1")
        a(f"v_add_f32_dpp v{r}, v{r}, v{r} {dpp} row_mask:0xf bank_mask:0xf")
    a(f"v_mov_b32 v{t}, v{r}")
    a("s_nop 1")
    a(f"v_permlane16_swap_b32 v{r}, v{t}")
    a("s_nop 1")
    a(f"v_add_f32 v{r}, v{r}, v{t}")

def rne_bf16(dst, src):
    a(f"v_cvt_pk_bf16_f32 v{dst}, v{src}, v{src}")
    a(f"v_and_b32 v{dst}, 0xffff0000, v{dst}")

def ln_compute():
    for m in range(10):
        a(f"v_lshlrev_b32 v{FV+2*m}, 16, v{XR+m}")
        a(f"v_and_b32 v{FV+2*m+1}, 0xffff0000, v{XR+m}")
    s0, s1 = TV, TV+2
    a(f"v_pk_add_f32 {P(s0)}, {P(FV)}, {P(FV+2)}")
    a(f"v_pk_add_f32 {P(s1)}, {P(FV+4)}, {P(FV+6)}")
    for m in range(4, 10):
        s = s0 if m % 2 == 0 else s1
        a(f"v_pk_add_f32 {P(s)}, {P(s)}, {P(FV+2*m)}")
    a(f"v_pk_add_f32 {P(s0)}, {P(s0)}, {P(s1)}")
    mean = TV+4
    a(f"v_add_f32 v{mean}, v{s0}, v{s0+1}")
    reduce32(mean, TV+6)
    a(f"v_mul_f32 v{mean}, {f32hex(1.0/640)}, v{mean}")
    a(f"v_mov_b32 v{mean+1}, v{mean}")
    for m in range(10):
        a(f"v_pk_add_f32 {P(DV+2*m)}, {P(FV+2*m)}, {P(mean)} neg_lo:[0,1] neg_hi:[0,1]")
    a(f"v_pk_mul_f32 {P(s0)}, {P(DV)}, {P(DV)}")
    a(f"v_pk_mul_f32 {P(s1)}, {P(DV+2)}, {P(DV+2)}")
    for m in range(2, 10):
        s = s0 if m % 2 == 0 else s1
        a(f"v_pk_fma_f32 {P(s)}, {P(DV+2*m)}, {P(DV+2*m)}, {P(s)}")
    a(f"v_pk_add_f32 {P(s0)}, {P(s0)}, {P(s1)}")
    var = TV+8
    a(f"v_add_f32 v{var}, v{s0}, v{s0+1}")
    reduce32(var, TV+6)
    a(f"v_mul_f32 v{var}, {f32hex(1.0/640)}, v{var}")
    rs = TV+10
    if args.exact:
        rne_bf16(var, var)
        a(f"v_add_f32 v{var}, {f32hex(1e-5)}, v{var}")
        rne_bf16(var, var)
        a(f"v_sqrt_f32 v{var}, v{var}")
        a("s_nop 0")
        rne_bf16(var, var)
        a(f"v_rcp_f32 v{rs}, v{var}")
        rne_bf16(mean, mean)
        a(f"v_mov_b32 v{mean+1}, v{mean}")
        a(f"v_mov_b32 v{rs+1}, v{rs}")
        for m in range(10):
            a(f"v_pk_add_f32 {P(DV+2*m)}, {P(FV+2*m)}, {P(mean)} neg_lo:[0,1] neg_hi:[0,1]")
        for m in range(10):
            a(f"v_cvt_pk_bf16_f32 v{HP+m}, v{DV+2*m}, v{DV+2*m+1}")
        for m in range(10):
            a(f"v_lshlrev_b32 v{DV+2*m}, 16, v{HP+m}")
            a(f"v_and_b32 v{DV+2*m+1}, 0xffff0000, v{HP+m}")
    else:
        a(f"v_add_f32 v{var}, {f32hex(1e-5)}, v{var}")
        a(f"v_rsq_f32 v{rs}, v{var}")
        a("s_nop 0")
        a(f"v_mov_b32 v{rs+1}, v{rs}")
    for m in range(10):
        a(f"v_pk_mul_f32 {P(DV+2*m)}, {P(DV+2*m)}, {P(rs)}")
    for m in range(10):
        a(f"v_cvt_pk_bf16_f32 v{HP+m}, v{DV+2*m}, v{DV+2*m+1}")
    a(f"s_mov_b32 s{sT0}, 0x05040100")
    a(f"s_mov_b32 s{sT1}, 0x07060302")
    for k in range(5):
        a(f"v_permlane32_swap_b32 v{HP+2*k}, v{HP+2*k+1}")
    a("s_nop 1")
    for k in range(5):
        a(f"v_perm_b32 v{DV+2*k}, v{HP+2*k+1}, v{HP+2*k}, s{sT0}")
        a(f"v_perm_b32 v{DV+2*k+1}, v{HP+2*k+1}, v{HP+2*k}, s{sT1}")
    for k in range(10):
        a(f"ds_write_b32 v{WA+k}, v{DV+k}")

def ln_store():
    a(f"v_lshlrev_b32 v{TV}, 4, v{vTID}")
    a(f"v_add_u32 v{TV}, {T_OFF}, v{TV}")
    a(f"s_lshr_b32 s{sT0}, s{sB}, 2")
    a(f"s_mul_i32 s{sT0}, s{sT0}, 5120")
    a(f"s_and_b32 s{sT1}, s{sB}, 3")
    a(f"s_lshl_b32 s{sT1}, s{sT1}, 8")
    a(f"s_add_u32 s{sT0}, s{sT0}, s{sT1}")
    if H_OFF: a(f"s_add_u32 s{sT0}, s{sT0}, {H_OFF}")
    a("s_waitcnt lgkmcnt(0)")
    a("s_barrier")
    a(f"ds_read_b128 v[{FV}:{FV+3}], v{TV}")
    a(f"ds_read_b128 v[{FV+4}:{FV+7}], v{TV} offset:4096")
    a(f"s_cmp_ge_u32 s{sWV}, 2")
    a("s_cbranch_scc1 L_ln_two")
    a(f"ds_read_b128 v[{FV+8}:{FV+11}], v{TV} offset:8192")
    a("s_waitcnt lgkmcnt(0)")
    a(f"buffer_store_dwordx4 v[{FV+8}:{FV+11}], v{GA+2}, s[{srdWS}:{srdWS+3}], s{sT0} offen{SC}")
    vm.issue("hst3", True)
    a("L_ln_two:")
    a("s_waitcnt lgkmcnt(0)")
    a(f"buffer_store_dwordx4 v[{FV}:{FV+3}], v{GA}, s[{srdWS}:{srdWS+3}], s{sT0} offen{SC}")
    a(f"buffer_store_dwordx4 v[{FV+4}:{FV+7}], v{GA+1}, s[{srdWS}:{srdWS+3}], s{sT0} offen{SC}")
    vm.issue("hst"); vm.issue("hst")

def publish_nonce():
    a(f"s_or_b32 s{sT0}, s{sB}, s{sWV}")
    a(f"s_cmp_lg_u32 s{sT0}, 0")
    a("s_cbranch_scc1 L_no_nonce")
    a(f"s_memrealtime s[{sT0}:{sT0+1}]")
    a("s_waitcnt lgkmcnt(0)")
    a(f"s_or_b32 s{sT1}, s{sT1}, 0x40000000")
    a(f"v_mov_b32 v12, s{sT0}")
    a(f"v_mov_b32 v13, s{sT1}")
    a("v_mov_b32 v14, 0")
    a(f"buffer_store_dwordx2 v[12:13], v14, s[{srdDBG}:{srdDBG+3}], 0 offen sc1")
    a("L_no_nonce:")

def nonce_issue():
    a("v_mov_b32 v18, 0")
    a(f"buffer_load_dwordx2 v[16:17], v18, s[{srdDBG}:{srdDBG+3}], 0 offen sc1")
    vm.issue("nonce")

def nonce_finish(label):
    a(f"s_mov_b32 s{sSPIN}, {SPIN_MAX}")
    a(f"{label}:")
    a(f"v_readfirstlane_b32 s{sNON}, v16")
    a(f"v_readfirstlane_b32 s{sNON+1}, v17")
    a("s_nop 3")
    a(f"s_sub_u32 s{sSPIN}, s{sSPIN}, 1")
    a(f"s_cselect_b32 s{sT0}, 1, s{sNON+1}")
    a(f"s_cmp_lg_u32 s{sT0}, 0")
    a(f"s_cbranch_scc1 {label}_ok")
    a(f"buffer_load_dwordx2 v[16:17], v18, s[{srdDBG}:{srdDBG+3}], 0 offen sc1")
    a("s_waitcnt vmcnt(0)")
    a(f"s_branch {label}")
    a(f"{label}_ok:")

def store_flag(label, off_sreg):
    a(f"s_cmp_lg_u32 s{sWV}, 0")
    a(f"s_cbranch_scc1 {label}")
    a(f"v_mov_b32 v16, s{sNON}")
    a(f"v_mov_b32 v17, s{sNON+1}")
    a("v_mov_b32 v18, 0")
    a(f"s_mov_b64 s[{sEXEC}:{sEXEC+1}], exec")
    a("s_mov_b64 exec, 1")
    a(f"buffer_store_dwordx2 v[16:17], v18, s[{srdWS}:{srdWS+3}], s{off_sreg} offen sc1")
    a(f"s_mov_b64 exec, s[{sEXEC}:{sEXEC+1}]")
    a("s_nop 1")
    a(f"{label}:")
    vm.issue("flag", True)

def poll_flags(label, voff, off_sreg):
    a(f"s_mov_b32 s{sSPIN}, {SPIN_MAX}")
    a(f"{label}:")
    a(f"buffer_load_dwordx2 v[16:17], v{voff}, s[{srdWS}:{srdWS+3}], s{off_sreg} offen sc1")
    a("s_waitcnt vmcnt(0)")
    a(f"v_cmp_ne_u32 vcc, s{sNON}, v16")
    a(f"v_cmp_ne_u32 s[{sT0}:{sT0+1}], s{sNON+1}, v17")
    a("s_nop 3")
    a(f"s_or_b64 vcc, vcc, s[{sT0}:{sT0+1}]")
    a(f"s_cbranch_vccz {label}_ok")
    if args.sleep: a(f"s_sleep {args.sleep}")
    a(f"s_sub_u32 s{sSPIN}, s{sSPIN}, 1")
    a(f"s_cbranch_scc0 {label}")
    a(f"{label}_ok:")
    vm.drained()

def guarded(label, fn):
    a(f"s_cmp_ge_u32 s{sWV}, 2")
    a(f"s_cbranch_scc1 {label}")
    fn()
    a(f"{label}:")

def main_loop(gemm, nks, optional_last, tail_hook=None):
    depth = min(NA, nks)
    nreal = nks - 1 if optional_last else nks
    def loads(ks):
        for mi in range(5): a_load(ks % NA, mi, ks, optional_last and ks == nks - 1)
    for ks in range(depth): loads(ks)
    hooked = False
    for ks in range(nks):
        def body():
            vm.wait(("A", ks))
            if args.mstamps and ks in (0, 4, 8, 12): stamp(f"g{gemm} step {ks} data")
            nxt = ks + depth
            for mi in range(5):
                for c in range(4): mfma(ks == 0, ks, ks % NA, c, mi, gemm)
                if nxt < nreal: a_load(nxt % NA, mi, nxt)
        if optional_last and ks == nks - 1: guarded(f"L_g{gemm}_mm", body)
        else: body()
        nxt = ks + depth
        if optional_last and nxt == nks - 1:
            guarded(f"L_g{gemm}_ld", lambda: loads(nxt))
        if tail_hook is not None and not hooked and ks >= args.hookat:
            if args.mstamps: stamp("before hook")
            tail_hook(); hooked = True

RT = 16
def reduce_waves():
    a("s_nop 7")
    for c in range(1, 4):
        a(f"s_add_u32 s{sT0}, s{sWV}, {c}")
        a(f"s_and_b32 s{sT0}, s{sT0}, 3")
        a(f"s_mul_i32 s{sT1}, s{sT0}, {RING}")
        a(f"s_add_u32 s{sT1}, s{sT1}, {6*4096}")
        a(f"v_add_u32 v12, s{sT1}, v{vA}")
        if c == 3:
            a(f"s_mul_i32 s{sT1}, s{sT0}, 3072")
            a(f"s_add_u32 s{sT1}, s{sT1}, {T_OFF}")
            a(f"v_add_u32 v13, s{sT1}, v{vA}")
        for mi in range(5):
            blk = (c-1)*5 + mi
            r = acc(c, mi)
            if blk < 12: a(f"ds_write_b128 v12, v[{r}:{r+3}] offset:{blk*1024}")
            else:        a(f"ds_write_b128 v13, v[{r}:{r+3}] offset:{(blk-12)*1024}")
    a(f"s_add_u32 s{sT1}, s{sRING}, {6*4096}")
    a(f"v_add_u32 v76, s{sT1}, v{vA}")
    a(f"s_mul_i32 s{sT1}, s{sWV}, 3072")
    a(f"s_add_u32 s{sT1}, s{sT1}, {T_OFF}")
    a(f"v_add_u32 v77, s{sT1}, v{vA}")
    a("s_waitcnt lgkmcnt(0)")
    a("s_barrier")
    for blk in range(15):
        r = RT + 4*blk
        if blk < 12: a(f"ds_read_b128 v[{r}:{r+3}], v76 offset:{blk*1024}")
        else:        a(f"ds_read_b128 v[{r}:{r+3}], v77 offset:{(blk-12)*1024}")
    for c in range(1, 4):
        a(f"s_waitcnt lgkmcnt({15 - 5*c})")
        for mi in range(5):
            for h in range(2):
                d = acc(0, mi) + 2*h; s = RT + 4*((c-1)*5 + mi) + 2*h
                a(f"v_pk_add_f32 {P(d)}, {P(d)}, {P(s)}")

PK = 80
def pack_swap():
    for mi in range(5):
        d = acc(0, mi); r = PK + 2*mi
        a(f"v_cvt_pk_bf16_f32 v{r}, v{d}, v{d+1}")
        a(f"v_cvt_pk_bf16_f32 v{r+1}, v{d+2}, v{d+3}")
    a(f"v_mov_b32 v{PK+10}, v{PK+8}")
    a(f"v_mov_b32 v{PK+11}, v{PK+9}")
    a("s_nop 1")
    for p in range(3):
        b = PK + 4*p
        a(f"v_permlane16_swap_b32 v{b}, v{b+2}")
        a(f"v_permlane16_swap_b32 v{b+1}, v{b+3}")

def epilogue1():
    reduce_waves()
    a(f"v_lshlrev_b32 v96, 16, v{vBIAS}");   a(f"v_and_b32 v97, 0xffff0000, v{vBIAS}")
    a(f"v_lshlrev_b32 v98, 16, v{vBIAS+1}"); a(f"v_and_b32 v99, 0xffff0000, v{vBIAS+1}")
    c1 = -2.0 * 0.7978845608028654 * 1.4426950408889634
    a(f"v_mov_b32 v100, {f32hex(c1)}"); a(f"v_mov_b32 v101, {f32hex(c1)}")
    a(f"v_mov_b32 v102, {f32hex(c1*0.044715)}"); a(f"v_mov_b32 v103, {f32hex(c1*0.044715)}")
    a("v_mov_b32 v104, 1.0"); a("v_mov_b32 v105, 1.0")
    for mi in range(5):
        d = acc(0, mi)
        for h in range(2):
            a(f"v_pk_add_f32 {P(d+2*h)}, {P(d+2*h)}, {P(96+2*h)}")
    T = 16
    for mi in range(5):
        d = acc(0, mi)
        for h in range(2):
            u = d + 2*h; t = T + 4*mi + 2*h
            a(f"v_pk_mul_f32 {P(t)}, {P(u)}, {P(u)}")
            a(f"v_pk_fma_f32 {P(t)}, {P(t)}, {P(102)}, {P(100)}")
            a(f"v_pk_mul_f32 {P(t)}, {P(t)}, {P(u)}")
        t = T + 4*mi
        for k in range(4): a(f"v_exp_f32 v{t+k}, v{t+k}")
        for h in range(2): a(f"v_pk_add_f32 {P(t+2*h)}, {P(t+2*h)}, {P(104)}")
        for k in range(4): a(f"v_rcp_f32 v{t+k}, v{t+k}")
        a("s_nop 0")
        for h in range(2): a(f"v_pk_mul_f32 {P(d+2*h)}, {P(d+2*h)}, {P(t+2*h)}")
    pack_swap()
    a(f"v_lshrrev_b32 v12, 4, v{vLANE}")
    a("v_and_b32 v13, 1, v12")
    a("v_lshlrev_b32 v13, 10, v13")
    a("v_lshrrev_b32 v12, 1, v12")
    a("v_lshl_add_u32 v13, v12, 8, v13")
    a(f"v_and_b32 v12, 15, v{vLANE}")
    a("v_lshl_add_u32 v13, v12, 4, v13")
    a(f"v_and_b32 v12, 0xfffffbff, v13")
    a(f"s_mul_i32 s{sT0}, s{sDT1}, 54")
    a(f"s_lshl_b32 s{sT1}, s{sFT}, 1")
    a(f"s_add_u32 s{sT0}, s{sT0}, s{sT1}")
    a(f"s_lshr_b32 s{sT1}, s{sWV}, 1")
    a(f"s_add_u32 s{sT0}, s{sT0}, s{sT1}")
    a(f"s_mul_i32 s{sT0}, s{sT0}, 5120")
    a(f"s_and_b32 s{sT1}, s{sWV}, 1")
    a(f"s_lshl_b32 s{sT1}, s{sT1}, 9")
    a(f"s_add_u32 s{sT0}, s{sT0}, s{sT1}")
    a(f"s_add_u32 s{sT0}, s{sT0}, {G_OFF}")
    a(f"s_add_u32 s{sT1}, s{sT0}, 4096")
    a(f"buffer_store_dwordx4 v[{PK}:{PK+3}], v13, s[{srdWS}:{srdWS+3}], s{sT0} offen{SC}")
    a(f"buffer_store_dwordx4 v[{PK+4}:{PK+7}], v13, s[{srdWS}:{srdWS+3}], s{sT0} offen offset:2048{SC}")
    a(f"buffer_store_dwordx4 v[{PK+8}:{PK+11}], v12, s[{srdWS}:{srdWS+3}], s{sT1} offen{SC}")

def epilogue2():
    reduce_waves()
    a(f"v_lshlrev_b32 v96, 16, v{vBIAS}")
    a("v_mov_b32 v97, v96")
    for mi in range(5):
        d = acc(0, mi)
        for h in range(2):
            a(f"v_pk_add_f32 {P(d+2*h)}, {P(d+2*h)}, {P(96)}")
    pack_swap()
    a(f"v_lshrrev_b32 v12, 4, v{vLANE}")
    a("v_and_b32 v13, 1, v12")
    a("v_lshlrev_b32 v13, 5, v13")
    a("v_lshrrev_b32 v12, 1, v12")
    a("v_lshl_add_u32 v13, v12, 4, v13")
    a(f"v_and_b32 v12, 15, v{vLANE}")
    a("v_mul_u32_u24 v12, 1280, v12")
    a("v_add_u32 v13, v13, v12")
    a(f"v_and_b32 v12, 16, v{vLANE}")
    a("v_lshlrev_b32 v12, 1, v12")
    a("v_sub_u32 v12, v13, v12")
    a(f"s_lshl_b32 s{sT0}, s{sST}, 2")
    a(f"s_add_u32 s{sT0}, s{sT0}, s{sWV}")
    a(f"s_mul_i32 s{sT0}, s{sT0}, {16*1280}")
    a(f"s_mul_i32 s{sT1}, s{sDT}, 160")
    a(f"s_add_u32 s{sT0}, s{sT0}, s{sT1}")
    a(f"buffer_store_dwordx4 v[{PK}:{PK+3}], v13, s[{srdOUT}:{srdOUT+3}], s{sT0} offen")
    a(f"buffer_store_dwordx4 v[{PK+4}:{PK+7}], v13, s[{srdOUT}:{srdOUT+3}], s{sT0} offen offset:64")
    a(f"buffer_store_dwordx4 v[{PK+8}:{PK+11}], v12, s[{srdOUT}:{srdOUT+3}], s{sT0} offen offset:128")

def set_rot(n, mode, g, dreg):
    if mode == "none" or not args.rot:
        a(f"s_mov_b32 s{sROT}, 0"); return
    if mode == "d":
        a(f"s_mov_b32 s{sT0}, s{dreg}")
    else:
        a(f"s_lshr_b32 s{sT0}, s{sB}, 5")
        if mode == "qd": a(f"s_add_u32 s{sT0}, s{sT0}, s{dreg}")
    assert g in (2, 4, 8)
    a(f"s_and_b32 s{sT0}, s{sT0}, {g-1}")
    a(f"s_mul_i32 s{sT0}, s{sT0}, {n}")
    a(f"s_lshr_b32 s{sROT}, s{sT0}, {g.bit_length()-1}")
def set_run(run, base, end, n, stride):
    a(f"s_add_u32 s{end}, s{base}, {n*stride}")
    a(f"s_mul_i32 s{run}, s{sROT}, {stride}")
    a(f"s_add_u32 s{run}, s{run}, s{base}")
def set_w1_base():
    set_rot(16, args.rotmode, args.groups, sDT1)
    a(f"s_lshl_b32 s{sT0}, s{sWV}, 4")
    a(f"s_mul_i32 s{sWBASE}, s{sT0}, {W1_KS}")
    a(f"s_lshl_b32 s{sT0}, s{sFT}, 7")
    a(f"s_add_u32 s{sWBASE}, s{sWBASE}, s{sT0}")
    set_run(sWOFF, sWBASE, sWEND, 16, W1_KS)
def set_h_base():
    a(f"s_lshl_b32 s{sT0}, s{sDT1}, 6")
    a(f"s_lshl_b32 s{sT1}, s{sWV}, 4")
    a(f"s_add_u32 s{sT0}, s{sT0}, s{sT1}")
    a(f"s_mul_i32 s{sABASE}, s{sT0}, 5120")
    if H_OFF: a(f"s_add_u32 s{sABASE}, s{sABASE}, {H_OFF}")
    set_run(sAOFF, sABASE, sAEND, 16, 5120)
def k2_start(dst):
    a(f"s_mul_i32 s{dst}, s{sWV}, 14")
    a(f"s_cmp_eq_u32 s{sWV}, 3")
    a(f"s_cselect_b32 s{sT3}, 1, 0")
    a(f"s_sub_u32 s{dst}, s{dst}, s{sT3}")
def set_w2_base():
    set_rot(13, args.rotmode2, args.groups2, sDT)
    k2_start(sT0)
    a(f"s_mul_i32 s{sWBASE}, s{sT0}, {W2_KS}")
    a(f"s_lshl_b32 s{sT0}, s{sST}, 7")
    a(f"s_add_u32 s{sWBASE}, s{sWBASE}, s{sT0}")
    set_run(sWOFF, sWBASE, sWEND, 13, W2_KS)
def set_g_base():
    k2_start(sT0)
    a(f"s_mul_i32 s{sT1}, s{sDT}, 54")
    a(f"s_add_u32 s{sT0}, s{sT0}, s{sT1}")
    a(f"s_mul_i32 s{sABASE}, s{sT0}, 5120")
    a(f"s_add_u32 s{sABASE}, s{sABASE}, {G_OFF}")
    set_run(sAOFF, sABASE, sAEND, 13, 5120)

def stage_weights(srd, kstride, nks, issued, optional_last, tag):
    st = {"nxt": issued}
    def issue():
        n = st["nxt"]
        opt = optional_last and n == nks - 1
        fn = lambda: dma_step(srd, n, n % NSLOT, kstride, opt, opt)
        if opt: guarded(f"L_{tag}_d{n}", fn)
        else: fn()
        st["nxt"] += 1
    while st["nxt"] < min(NSLOT, nks): issue()
    for ks in range(nks):
        def body():
            if any(t == (srd, ks) for t, o in vm.ops): vm.wait((srd, ks))
            tr_step(ks, ks % NSLOT)
        if optional_last and ks == nks - 1: guarded(f"L_{tag}_tr", body)
        else: body()
        if ks >= 1 and st["nxt"] < nks:
            a("s_waitcnt lgkmcnt(8)")
            issue()
    a("s_waitcnt lgkmcnt(0)")

def role_split(tag, g1_fn, idle_fn=None):
    a(f"s_cmp_eq_u32 s{sROLE}, 0")
    a(f"s_cbranch_scc1 L_{tag}_idle")
    g1_fn()
    if idle_fn is not None:
        a(f"s_branch L_{tag}_done")
        a(f"L_{tag}_idle:")
        idle_fn()
        a(f"L_{tag}_done:")
    else:
        a(f"L_{tag}_idle:")

file_begin(a, [(MAIN, 256, 256, LDS_BYTES)])
prologue(MAIN, "L_end")
stamp("kernarg")
publish_nonce()
ln_issue()
dma_offsets(W1_ROW)
set_w1_base()
pos = [0]
def w1_issue(n):
    def f():
        for _ in range(n):
            dma_step(srdW1, pos[0], pos[0] % NSLOT, W1_KS); pos[0] += 1
    return f
role_split("pre", w1_issue(args.npre))
ln_addresses()
tr_addresses()
role_split("xw", lambda: vm.wait("x"), lambda: a("s_waitcnt vmcnt(0)"))
stamp("x landed")
ln_compute()
if args.n1: role_split("n1", w1_issue(args.n1))
ln_store()
nonce_issue()
stamp("h stores issued")
assert args.npre + args.n1 + args.n2 <= NSLOT
if args.n2: role_split("n2", w1_issue(args.n2))
role_split("hw", lambda: vm.wait("nonce"), lambda: a("s_waitcnt vmcnt(0)"))
nonce_finish("L_nonce")
a("s_barrier")
a(f"s_lshl_b32 s{sT2}, s{sB}, 6")
a(f"s_add_u32 s{sT2}, s{sT2}, {FL_LN}")
store_flag("L_flag_ln", sT2)
stamp("LN flag stored")
a(f"s_cmp_eq_u32 s{sROLE}, 0")
a("s_cbranch_scc1 L_idle")
i_branch = nstamp[0]
a(f"s_lshl_b32 s{sT0}, s{sFT}, 7")
a(f"s_lshl_b32 s{sT1}, s{sWV}, 5")
a(f"s_add_u32 s{sT0}, s{sT0}, s{sT1}")
a(f"v_lshrrev_b32 v12, 4, v{vLANE}")
a("v_lshlrev_b32 v12, 3, v12")
a(f"buffer_load_dwordx2 v[{vBIAS}:{vBIAS+1}], v12, s[{srdB1}:{srdB1+3}], s{sT0} offen")
vm.issue("b1")
stage_weights(srdW1, W1_KS, 16, pos[0], False, "w1")
a("s_barrier")
stamp("w1 in regs")
set_h_base()
a(f"s_lshl_b32 s{sT2}, s{sWV}, 12")
a(f"s_add_u32 s{sT2}, s{sT2}, {FL_LN}")
a(f"v_lshlrev_b32 v18, 6, v{vLANE}")
poll_flags("L_poll_ln", 18, sT2)
stamp("LN flags seen")
def w2_early():
    dma_offsets(W2_ROW)
    set_w2_base()
    for ks in range(args.n2pre): dma_step(srdW2, ks, ks, W2_KS)
main_loop(1, 16, False, w2_early)
stamp("main1 done")
epilogue1()
stamp("G stores issued")
a("s_waitcnt vmcnt(0)")
vm.drained()
a("s_barrier")
a(f"s_lshl_b32 s{sT2}, s{sDT1}, 5")
a(f"s_add_u32 s{sT2}, s{sT2}, s{sFT}")
a(f"s_lshl_b32 s{sT2}, s{sT2}, 6")
a(f"s_add_u32 s{sT2}, s{sT2}, {FL_G}")
store_flag("L_flag_g", sT2)
stamp("G flag stored")
i_join = nstamp[0]
a("s_branch L_gemm2")
a("L_idle:")
nstamp[0] = i_branch
if args.w2pf:
    if args.pfwait:
        a(f"s_lshl_b32 s{sT2}, s{sWV}, 12")
        a(f"s_add_u32 s{sT2}, s{sT2}, {FL_LN}")
        a(f"v_lshlrev_b32 v18, 6, v{vLANE}")
        poll_flags("L_poll_idle", 18, sT2)
    a(f"s_lshl_b32 s{sT0}, s{sIDLE}, 2")
    a(f"s_add_u32 s{sT0}, s{sT0}, s{sWV}")
    a(f"s_mul_i32 s{sT0}, s{sT0}, {44*1024}")
    a(f"s_mov_b32 s{sT1}, 44")
    a("L_pf_loop:")
    a(f"buffer_load_dwordx4 v[20:23], v{vA}, s[{srdW2}:{srdW2+3}], s{sT0} offen{fl(args.pffl)}")
    a(f"s_add_u32 s{sT0}, s{sT0}, 1024")
    a(f"s_sub_u32 s{sT1}, s{sT1}, 1")
    a(f"s_cmp_lg_u32 s{sT1}, 0")
    a("s_cbranch_scc1 L_pf_loop")
    a("s_waitcnt vmcnt(0)")
while nstamp[0] < i_join and args.stamps: stamp("idle")
dma_offsets(W2_ROW)
set_w2_base()
for ks in range(args.n2pre): dma_step(srdW2, ks, ks, W2_KS)
a("s_waitcnt vmcnt(0)")
vm.drained()
a("L_gemm2:")
a(f"s_lshl_b32 s{sT0}, s{sST}, 7")
a(f"s_lshl_b32 s{sT1}, s{sWV}, 5")
a(f"s_add_u32 s{sT0}, s{sT0}, s{sT1}")
a(f"v_and_b32 v12, 15, v{vLANE}")
a("v_lshlrev_b32 v12, 1, v12")
a(f"buffer_load_ushort v{vBIAS}, v12, s[{srdB2}:{srdB2+3}], s{sT0} offen")
vm.issue("b2")
stage_weights(srdW2, W2_KS, 14, args.n2pre, True, "w2")
a("s_barrier")
stamp("w2 in regs")
set_g_base()
a(f"s_mul_i32 s{sT2}, s{sWV}, 7")
a(f"s_cmp_eq_u32 s{sWV}, 3")
a(f"s_cselect_b32 s{sT3}, 1, 0")
a(f"s_sub_u32 s{sT2}, s{sT2}, s{sT3}")
a(f"s_lshl_b32 s{sT3}, s{sDT}, 5")
a(f"s_add_u32 s{sT2}, s{sT2}, s{sT3}")
a(f"s_lshl_b32 s{sT2}, s{sT2}, 6")
a(f"s_add_u32 s{sT2}, s{sT2}, {FL_G}")
a(f"v_min_u32 v18, 6, v{vLANE}")
a("v_lshlrev_b32 v18, 6, v18")
poll_flags("L_poll_g", 18, sT2)
stamp("G flags seen")
main_loop(2, 14, True)
stamp("main2 done")
epilogue2()
stamp("end")
write_stamps("L_st", STAMP)
if args.padto:
    a("s_waitcnt vmcnt(0)")
    a("L_pad:")
    a("s_memrealtime s[88:89]")
    a("s_waitcnt lgkmcnt(0)")
    a("s_sub_u32 s88, s88, s90")
    a(f"s_cmp_lt_u32 s88, {args.padto}")
    a("s_cbranch_scc1 L_pad")
a("L_end:")
a("s_endpgm")
a("L_code_end:")
kernel_desc(a, MAIN, 512, 102, 256)
print(a.text())
```

```python
import sys, argparse, struct
sys.path.insert(0, "tools")
from asmlib import *

ap = argparse.ArgumentParser()
ap.add_argument("--stamps", type=int, default=0)
ap.add_argument("--mstamps", type=int, default=0)
ap.add_argument("--cyc", type=int, default=0)
ap.add_argument("--padto", type=int, default=0)
ap.add_argument("--exact", type=int, default=1)
ap.add_argument("--na", type=int, default=4)
ap.add_argument("--npre", type=int, default=4)
ap.add_argument("--nln", type=int, default=0)
ap.add_argument("--w2pf", type=int, default=1)
ap.add_argument("--lnevery", type=int, default=10)
ap.add_argument("--kpre", type=int, default=3)
ap.add_argument("--n2pre", type=int, default=6)
ap.add_argument("--epevery", type=int, default=12)
ap.add_argument("--pollat", type=int, default=13)
ap.add_argument("--pollat2", type=int, default=12)
ap.add_argument("--eptr", type=int, default=3)
ap.add_argument("--tailpieces", type=int, default=1)
ap.add_argument("--ep3", type=int, default=3)
ap.add_argument("--lntr", type=int, default=2)
ap.add_argument("--addrevery", type=int, default=3)
ap.add_argument("--n2fill", type=int, default=2)
ap.add_argument("--k2pre", type=int, default=4)
ap.add_argument("--sleep", type=int, default=1)
ap.add_argument("--rot1", default="none:2")
ap.add_argument("--rot2", default="none:2")
ap.add_argument("--xfl", default="none")
ap.add_argument("--w1fl", default="none")
ap.add_argument("--w2fl", default="none")
ap.add_argument("--ofl", default="none")
ap.add_argument("--map1", default="2d")
ap.add_argument("--astride", type=int, default=5120)
ap.add_argument("--asc", default="sc1")
ap.add_argument("--touch", type=int, default=0)
args = ap.parse_args()

def fl(s): return "" if s == "none" else " " + s.replace("+", " ")
def f32hex(x): return "0x%08x" % struct.unpack("<I", struct.pack("<f", x))[0]

S, D, F = 2048, 640, 1728
H_OFF   = 0
G_OFF   = 0x280000
FL_LN   = 0x500000
FL_G    = 0x508000
STAMP   = 0x8000000
W1_ROW, W2_ROW = 3456, 4096
W1_KS, W2_KS = 32 * W1_ROW, 32 * W2_ROW
RING = 36864
NSLOT = 9
T_OFF = 147456
LDS_BYTES = 163840
SPIN_MAX = 200000
SC = " sc1"
OOB = 0x10000000

sB, sWV = 2, 3
sDT, sFT, sST, sROLE = 4, 5, 6, 7
srdX, srdW1, srdW2, srdB1, srdB2, srdOUT, srdDBG, srdWS = 8, 12, 16, 20, 24, 28, 32, 36
sNON = 40
sT0, sT1, sT2, sT3 = 42, 43, 44, 45
sRING, sOFF = 46, 47
sKARG = 48
sSTAMP = 64
sDT1 = 94
sW2B, sW2R = 95, 99
sWOFF, sAOFF, sSPIN = 96, 97, 98
sEXEC = 100
sWBASE, sWEND, sABASE, sAEND, sROT, sW2E, sGST, sOST = 48, 49, 50, 51, 52, 53, 54, 55
sKX = 56

vTID, vLANE, vA, vA2 = 0, 1, 2, 3
vD, vT = 4, 8
vB1 = 14
ABUF, NA = 16, args.na
assert NA <= 5
vD2 = 128
vB2 = 132
vGO, vGL = 133, 134
vOO, vOL = 135, 136
vRW = 137
vRR = 141
vC = 144
ACC = 176
def acc(c, mi): return ACC + (c * 5 + mi) * 4
def abuf(slot, mi): return ABUF + slot * 20 + mi * 4
P = lambda r: f"v[{r}:{r+1}]"

a = Asm()

class VM:
    def __init__(self): self.ops = []
    def issue(self, tag, optional=False): self.ops.append((tag, optional))
    def has(self, tag): return any(t == tag for t, o in self.ops)
    def wait(self, tag):
        idx = max(i for i, (t, o) in enumerate(self.ops) if t == tag)
        n = sum(1 for t, o in self.ops[idx+1:] if not o)
        assert n <= 63, (tag, n)
        a(f"s_waitcnt vmcnt({n})")
        self.ops = self.ops[idx+1:]
    def drained(self): self.ops = []
vm = VM()

class BG:
    def __init__(self): self.q = []; self.cnt = 0; self.every = 0
    def add(self, fn): self.q.append(fn)
    def step(self):
        if self.q: self.q.pop(0)()
    def flush(self):
        while self.q: self.step()
    def tick(self, n=1):
        self.cnt += n
        while self.every and self.cnt >= self.every and self.q:
            self.cnt -= self.every; self.step()
bg = BG()
def fg(s):
    a(s); bg.tick()
def queue_lines(fn):
    save = a.lines; a.lines = []
    ops_before = len(vm.ops)
    fn()
    lines = a.lines; a.lines = save
    vmops = vm.ops[ops_before:]; del vm.ops[ops_before:]
    groups = []
    for l in lines:
        op = l.split()[0] if l.split() else ""
        if groups and op in ("s_cselect_b32", "s_addc_u32", "s_cbranch_scc0", "s_cbranch_scc1"): groups[-1].append(l)
        else: groups.append([l])
    def emit(g):
        for l in g:
            a(l)
            if l.startswith("buffer_"): vm.issue(*vmops.pop(0))
    for g in groups: bg.add(lambda g=g: emit(g))

nstamp = [0]
NSTAMPS = 28
stamp_names = {}
def stamp(name):
    if not args.stamps: return
    i = nstamp[0]; nstamp[0] += 1
    assert i < NSTAMPS
    stamp_names.setdefault(i, name)
    a(("s_memtime" if args.cyc else "s_memrealtime") + " s[92:93]")
    a("s_waitcnt lgkmcnt(0)")
    a(f"s_mov_b32 s{sSTAMP+i}, s92")

def write_stamps(label, base):
    if not args.stamps: return
    a(f"s_cmp_lg_u32 s{sWV}, {args.stamps - 1}")
    a(f"s_cbranch_scc1 {label}_nostamp")
    a(f"s_mul_i32 s{sT0}, s{sB}, 128")
    a(f"s_add_u32 s{sT0}, s{sT0}, {base}")
    a("v_mov_b32 v12, 0")
    a("s_mov_b64 exec, 1")
    for i in range(0, NSTAMPS, 4):
        for k in range(4):
            if i + k < nstamp[0]: a(f"v_mov_b32 v{16+k}, s{sSTAMP + i + k}")
            else:                 a(f"v_mov_b32 v{16+k}, 0")
        a(f"buffer_store_dwordx4 v[16:19], v12, s[{srdWS}:{srdWS+3}], s{sT0} offen offset:{i*4}")
        a("s_nop 2")
    a(f"{label}_nostamp:")
    for i in sorted(stamp_names): a(f"; STAMPNAME {i} {stamp_names[i]}")

def mk_srd(d, p, nbytes):
    a(f"s_mov_b32 s{d}, s{p}")
    a(f"s_and_b32 s{d+1}, s{p+1}, 0xffff")
    a(f"s_mov_b32 s{d+2}, {nbytes}")
    a(f"s_mov_b32 s{d+3}, 0x00020000")

def prologue(name, endlabel):
    kernel_begin(a, name)
    stamp("start")
    if args.padto: a("s_memrealtime s[90:91]")
    a(f"s_cmp_ge_u32 s{sB}, 256")
    a(f"s_cbranch_scc1 {endlabel}")
    a(f"s_load_dwordx16 s[{sKARG}:{sKARG+15}], s[0:1], 0")
    a(f"v_and_b32 v{vLANE}, 63, v{vTID}")
    a(f"v_lshrrev_b32 v12, 6, v{vTID}")
    a(f"v_lshlrev_b32 v{vA}, 4, v{vLANE}")
    a(f"v_readfirstlane_b32 s{sWV}, v12")
    a(f"v_add_u32 v{vA2}, 0x1000, v{vA}")
    a(f"s_getpc_b64 s[{sT0}:{sT0+1}]")
    a("L_pf_base:")
    a("s_nop 2")
    a(f"s_lshr_b32 s{sT2}, s{sB}, 3")
    a(f"s_and_b32 s{sT2}, s{sT2}, 7")
    a(f"s_lshl_b32 s{sT2}, s{sT2}, 2")
    a(f"s_add_u32 s{sT2}, s{sT2}, s{sWV}")
    a(f"s_min_u32 s{sT2}, s{sT2}, (L_code_end - L_pf_base) / 1024 - 1")
    a(f"s_lshl_b32 s{sT2}, s{sT2}, 10")
    a(f"s_add_u32 s{sT0}, s{sT0}, s{sT2}")
    a(f"s_addc_u32 s{sT1}, s{sT1}, 0")
    a(f"global_load_dwordx4 v[124:127], v{vA}, s[{sT0}:{sT0+1}]")
    a(f"s_and_b32 s{sT0}, s{sB}, 1")
    a(f"s_lshl_b32 s{sT0}, s{sT0}, 2")
    a(f"s_bfe_u32 s{sT2}, s{sB}, 0x20003")
    a(f"s_add_u32 s{sDT}, s{sT0}, s{sT2}")
    a(f"s_lshr_b32 s{sT1}, s{sB}, 5")
    a(f"s_bfe_u32 s{sT3}, s{sB}, 0x20001")
    a(f"s_lshl_b32 s{sT2}, s{sT3}, 3")
    a(f"s_add_u32 s{sST}, s{sT2}, s{sT1}")
    if args.map1 == "2d":
        a(f"s_mov_b32 s{sDT1}, s{sDT}")
        a(f"s_mul_i32 s{sT2}, s{sT3}, 7")
        a(f"s_add_u32 s{sFT}, s{sT2}, s{sT1}")
        a(f"s_cmp_eq_u32 s{sT3}, 3")
        a(f"s_cselect_b32 s{sT2}, 6, 7")
        a(f"s_cmp_lt_u32 s{sT1}, s{sT2}")
        a(f"s_cselect_b32 s{sROLE}, 1, 0")
    else:
        a(f"s_bfe_u32 s{sDT1}, s{sB}, 0x30003")
        a(f"s_lshr_b32 s{sT0}, s{sB}, 6")
        a(f"s_lshl_b32 s{sT0}, s{sT0}, 3")
        a(f"s_and_b32 s{sT2}, s{sB}, 7")
        a(f"s_add_u32 s{sFT}, s{sT0}, s{sT2}")
        a(f"s_cmp_lt_u32 s{sFT}, 27")
        a(f"s_cselect_b32 s{sROLE}, 1, 0")
    a(f"s_mul_i32 s{sRING}, s{sWV}, {RING}")
    a(f"v_lshrrev_b32 v12, 5, v{vLANE}")
    a(f"v_mul_u32_u24 v12, 1280, v12")
    a(f"v_and_b32 v13, 31, v{vLANE}")
    a(f"v_lshl_add_u32 v14, v13, 4, v12")
    a(f"v_lshl_add_u32 v15, v13, 3, v12")
    dma_offsets(vD, W1_ROW)
    a(f"s_lshl_b32 s{sT0}, s{sB}, 3")
    a(f"s_lshl_b32 s{sT1}, s{sWV}, 1")
    a(f"s_add_u32 s{sT0}, s{sT0}, s{sT1}")
    a(f"s_mul_i32 s{sOFF}, s{sT0}, 1280")
    a("s_waitcnt lgkmcnt(0)")
    mk_srd(srdX, sKARG+0, S*D*2)
    a(f"buffer_load_dwordx4 v[{XR}:{XR+3}], v14, s[{srdX}:{srdX+3}], s{sOFF} offen{fl(args.xfl)}")
    a(f"buffer_load_dwordx4 v[{XR+4}:{XR+7}], v14, s[{srdX}:{srdX+3}], s{sOFF} offen offset:512{fl(args.xfl)}")
    a(f"buffer_load_dwordx2 v[{XR+8}:{XR+9}], v15, s[{srdX}:{srdX+3}], s{sOFF} offen offset:1024{fl(args.xfl)}")
    for _ in range(3): vm.issue("x")
    mk_srd(srdW1,  sKARG+2,  S*F*2)
    mk_srd(srdB1,  sKARG+4,  F*2)
    mk_srd(srdW2,  sKARG+6,  F*S*2)
    mk_srd(srdDBG, sKARG+12, 256)
    mk_srd(srdWS,  sKARG+14, 268435456)
    mk_srd(srdB2,  sKARG+8,  S*2)
    mk_srd(srdOUT, sKARG+10, S*D*2)

def dma_offsets(dst, row):
    a(f"v_lshrrev_b32 v12, 3, v{vLANE}")
    a(f"v_and_b32 v13, 2, v12")
    a(f"v_mul_u32_u24 v12, {row}, v12")
    a(f"v_and_b32 v{dst+2}, 7, v{vLANE}")
    a(f"v_xor_b32 v13, v13, v{dst+2}")
    a(f"v_lshl_add_u32 v{dst}, v13, 4, v12")
    a(f"v_xor_b32 v13, 4, v13")
    a(f"v_lshl_add_u32 v{dst+1}, v13, 4, v12")
    a(f"v_add_u32 v{dst+1}, {8*row}, v{dst+1}")
    a(f"v_add_u32 v{dst+2}, {16*row}, v{dst}")
    a(f"v_add_u32 v{dst+3}, {16*row}, v{dst+1}")

def tr_addresses():
    t0, t1, t2, t3 = 112, 113, 114, 115
    fg(f"v_lshrrev_b32 v{t0}, 4, v{vLANE}")
    fg(f"v_bfe_u32 v{t1}, v{vLANE}, 2, 2")
    fg(f"v_lshl_add_u32 v{t2}, v{t0}, 3, v{t1}")
    fg(f"v_lshlrev_b32 v{t2}, 7, v{t2}")
    fg(f"v_and_b32 v{t3}, 1, v{vLANE}")
    fg(f"v_lshl_add_u32 v{t2}, v{t3}, 3, v{t2}")
    fg(f"v_add_u32 v{t2}, s{sRING}, v{t2}")
    fg(f"v_and_b32 v{t0}, 1, v{t0}")
    fg(f"v_lshlrev_b32 v{t0}, 2, v{t0}")
    fg(f"v_and_b32 v{t1}, 2, v{t1}")
    fg(f"v_or_b32 v{t0}, v{t0}, v{t1}")
    fg(f"v_bfe_u32 v{t1}, v{vLANE}, 1, 1")
    fg(f"v_xor_b32 v{t0}, v{t0}, v{t1}")
    for c in range(4):
        a(f"s_add_u32 s{sT0}, s{sWV}, {c}")
        a(f"s_and_b32 s{sT0}, s{sT0}, 3")
        a(f"s_lshl_b32 s{sT0}, s{sT0}, 1")
        fg(f"v_xor_b32 v{t1}, s{sT0}, v{t0}")
        fg(f"v_lshl_add_u32 v{vT+c}, v{t1}, 4, v{t2}")

class Stager:
    def __init__(self, srd, dreg, run, base, end, kstride, nks, optional_last, flags, tag):
        self.srd, self.dreg, self.run, self.base, self.end = srd, dreg, run, base, end
        self.kstride, self.nks, self.opt, self.flags, self.tag = kstride, nks, optional_last, flags, tag
        self.nd = 0; self.nt = 0; self.uid = 0; self.started = False
    def lds(self, pos, q): return (pos % NSLOT)*4096 + q*1024
    def start(self):
        a(f"s_add_u32 m0, s{sRING}, {self.lds(0, 0)}")
        a("s_nop 0")
        self.started = True
    def piece(self, pos, q, burst):
        assert self.started
        opt = self.is_opt(pos)
        off = self.run
        if opt:
            off = sOFF
            if q == 0: a(f"s_add_u32 s{sOFF}, s{self.base}, {pos*self.kstride}")
        a(f"buffer_load_dwordx4 v{self.dreg+q}, s[{self.srd}:{self.srd+3}], s{off} offen{self.flags} lds")
        vm.issue((self.tag, pos), opt)
        npos, nq = (pos, q+1) if q < 3 else (pos+1, 0)
        last = npos >= self.nks
        if not last: a(f"s_add_u32 m0, s{sRING}, {self.lds(npos, nq)}")
        if q == 3 and not opt:
            a(f"s_add_u32 s{self.run}, s{self.run}, {self.kstride}")
            a(f"s_cmp_eq_u32 s{self.run}, s{self.end}")
            a(f"s_cselect_b32 s{self.run}, s{self.base}, s{self.run}")
        elif burst and not last:
            a("s_nop 0")
    def is_opt(self, pos): return self.opt and pos == self.nks - 1
    def dma(self):
        pos = self.nd; self.nd += 1
        body = lambda: [self.piece(pos, q, True) for q in range(4)]
        if self.is_opt(pos): guarded(f"L_{self.tag}_d{self.uid}", body); self.uid += 1
        else: body()
    def dma_bg(self, n):
        for _ in range(n):
            pos = self.nd; self.nd += 1
            assert not self.is_opt(pos)
            for q in range(4): bg.add(lambda pos=pos, q=q: self.piece(pos, q, False))
    def tr_body(self, pos):
        if vm.has((self.tag, pos)): vm.wait((self.tag, pos))
        for c in range(4):
            for t in range(2):
                r = 16*pos + 4*c + 2*t
                a(f"ds_read_b64_tr_b16 a[{r}:{r+1}], v{vT+c} offset:{(pos % NSLOT)*4096 + t*512}")
    def tr(self):
        pos = self.nt; self.nt += 1
        if self.is_opt(pos): guarded(f"L_{self.tag}_t{self.uid}", lambda: self.tr_body(pos)); self.uid += 1
        else: self.tr_body(pos)
    def tr_bg(self, n):
        for _ in range(n):
            pos = self.nt; self.nt += 1
            assert not self.is_opt(pos)
            bg.add(lambda pos=pos: self.tr_body(pos))
    def refill(self, settled=False):
        waited = settled
        lim = self.nt if settled else self.nt - 1
        while self.nd < self.nks and self.nd - NSLOT < lim:
            if self.nd >= NSLOT and not waited: a("s_waitcnt lgkmcnt(8)"); waited = True
            self.dma()
    def step(self):
        self.refill()
        if self.nt < self.nks: self.tr()
        self.refill()
    def fill(self, limit=NSLOT):
        while self.nd < min(limit, self.nks): self.dma()
    def request_all(self):
        while self.nd < self.nks: self.step()
    def finish(self):
        while self.nt < self.nks or self.nd < self.nks: self.step()
        a("s_waitcnt lgkmcnt(0)")

def guarded(label, fn):
    a(f"s_cmp_ge_u32 s{sWV}, 2")
    a(f"s_cbranch_scc1 {label}")
    fn()
    a(f"{label}:")

def set_rot(n, spec, dreg):
    mode, g = spec.split(":"); g = int(g)
    if mode == "none":
        a(f"s_mov_b32 s{sROT}, 0"); return
    if mode == "d": a(f"s_mov_b32 s{sT0}, s{dreg}")
    else:
        a(f"s_lshr_b32 s{sT0}, s{sB}, 5")
        if mode == "qd": a(f"s_add_u32 s{sT0}, s{sT0}, s{dreg}")
    a(f"s_and_b32 s{sT0}, s{sT0}, {g-1}")
    a(f"s_mul_i32 s{sT0}, s{sT0}, {n}")
    a(f"s_lshr_b32 s{sROT}, s{sT0}, {g.bit_length()-1}")
def set_run(run, base, end, n, stride):
    a(f"s_add_u32 s{end}, s{base}, {n*stride}")
    a(f"s_mul_i32 s{run}, s{sROT}, {stride}")
    a(f"s_add_u32 s{run}, s{run}, s{base}")
def set_w1_base():
    set_rot(16, args.rot1, sDT1)
    a(f"s_lshl_b32 s{sT0}, s{sWV}, 4")
    a(f"s_mul_i32 s{sWBASE}, s{sT0}, {W1_KS}")
    a(f"s_lshl_b32 s{sT0}, s{sFT}, 7")
    a(f"s_add_u32 s{sWBASE}, s{sWBASE}, s{sT0}")
    a(f"s_cmp_eq_u32 s{sROLE}, 0")
    a(f"s_cselect_b32 s{sWBASE}, {OOB}, s{sWBASE}")
    set_run(sWOFF, sWBASE, sWEND, 16, W1_KS)
def set_h_base():
    set_rot(16, args.rot1, sDT1)
    a(f"s_lshl_b32 s{sT0}, s{sDT1}, 6")
    a(f"s_lshl_b32 s{sT1}, s{sWV}, 4")
    a(f"s_add_u32 s{sT0}, s{sT0}, s{sT1}")
    a(f"s_mul_i32 s{sABASE}, s{sT0}, 5120")
    if H_OFF: a(f"s_add_u32 s{sABASE}, s{sABASE}, {H_OFF}")
    set_run(sAOFF, sABASE, sAEND, 16, 5120)
def k2_start(dst):
    a(f"s_mul_i32 s{dst}, s{sWV}, 14")
    a(f"s_cmp_eq_u32 s{sWV}, 3")
    a(f"s_cselect_b32 s{sT3}, 1, 0")
    a(f"s_sub_u32 s{dst}, s{dst}, s{sT3}")
def set_w2_base():
    set_rot(13, args.rot2, sDT)
    k2_start(sT0)
    a(f"s_mul_i32 s{sW2B}, s{sT0}, {W2_KS}")
    a(f"s_lshl_b32 s{sT0}, s{sST}, 7")
    a(f"s_add_u32 s{sW2B}, s{sW2B}, s{sT0}")
    set_run(sW2R, sW2B, sW2E, 13, W2_KS)
def set_g_base():
    set_rot(13, args.rot2, sDT)
    k2_start(sT0)
    a(f"s_mul_i32 s{sT1}, s{sDT}, 54")
    a(f"s_add_u32 s{sT0}, s{sT0}, s{sT1}")
    a(f"s_mul_i32 s{sABASE}, s{sT0}, 5120")
    a(f"s_add_u32 s{sABASE}, s{sABASE}, {G_OFF}")
    set_run(sAOFF, sABASE, sAEND, 13, 5120)

XR = 16
FV = 28
DV = 48
HP = 68
WA = 80
GA = 92
TV = 100
def ln_addresses():
    fg(f"v_and_b32 v{TV}, 31, v{vLANE}")
    fg(f"v_lshrrev_b32 v{TV+1}, 5, v{vLANE}")
    fg(f"v_lshlrev_b32 v{TV+1}, 1, v{TV+1}")
    a(f"s_lshl_b32 s{sT0}, s{sWV}, 2")
    a(f"s_add_u32 s{sT0}, s{sT0}, {T_OFF}")
    fg(f"v_and_b32 v{TV+2}, 7, v{TV}")
    fg(f"v_xor_b32 v{TV+2}, v{TV+2}, v{TV+1}")
    fg(f"v_lshlrev_b32 v{TV+3}, 7, v{TV}")
    a(f"v_add_u32 v{TV+3}, s{sT0}, v{TV+3}")
    a(f"v_lshrrev_b32 v{TV+7}, 1, v{TV}")
    a(f"v_lshlrev_b32 v{TV+8}, 7, v{TV+7}")
    fg(f"v_add_u32 v{TV+8}, s{sT0}, v{TV+8}")
    for k in range(4):
        base = 4096 if k >= 2 else 0
        e = 4 if (k & 1) else 0
        for o in range(2):
            fg(f"v_xor_b32 v{TV+4}, {e + o}, v{TV+2}")
            fg(f"v_lshl_add_u32 v{WA + 2*k + o}, v{TV+4}, 4, v{TV+3}")
            if base: fg(f"v_add_u32 v{WA + 2*k + o}, {base}, v{WA + 2*k + o}")
    fg(f"v_and_b32 v{TV+5}, 1, v{TV}")
    fg(f"v_lshl_add_u32 v{TV+5}, v{TV+5}, 2, v{TV+1}")
    fg(f"v_and_b32 v{TV+6}, 7, v{TV+7}")
    fg(f"v_xor_b32 v{TV+5}, v{TV+5}, v{TV+6}")
    fg(f"v_add_u32 v{TV+8}, 8192, v{TV+8}")
    fg(f"v_lshl_add_u32 v{WA+8}, v{TV+5}, 4, v{TV+8}")
    fg(f"v_xor_b32 v{TV+5}, 1, v{TV+5}")
    fg(f"v_lshl_add_u32 v{WA+9}, v{TV+5}, 4, v{TV+8}")
    for i in range(3):
        fg(f"v_add_u32 v{TV}, {256*i}, v{vTID}")
        fg(f"v_lshrrev_b32 v{TV+1}, 3, v{TV}")
        fg(f"v_xor_b32 v{TV+1}, v{TV+1}, v{TV}")
        fg(f"v_and_b32 v{TV+1}, 7, v{TV+1}")
        fg(f"v_and_b32 v{TV+2}, 0x3f8, v{TV}")
        fg(f"v_or_b32 v{TV+1}, v{TV+1}, v{TV+2}")
        fg(f"v_lshrrev_b32 v{TV+2}, 4, v{TV+1}")
        fg(f"v_mul_u32_u24 v{TV+3}, 205, v{TV+2}")
        fg(f"v_lshrrev_b32 v{TV+3}, 10, v{TV+3}")
        fg(f"v_mul_u32_u24 v{TV+3}, 315, v{TV+3}")
        fg(f"v_add_u32 v{TV+3}, v{TV+3}, v{TV+2}")
        fg(f"v_lshlrev_b32 v{TV+3}, 10, v{TV+3}")
        fg(f"v_and_b32 v{TV+1}, 15, v{TV+1}")
        fg(f"v_lshl_add_u32 v{GA+i}, v{TV+1}, 4, v{TV+3}")
    fg(f"v_lshlrev_b32 v95, 4, v{vTID}")
    fg(f"v_add_u32 v95, {T_OFF}, v95")
    a(f"s_lshr_b32 s{sT0}, s{sB}, 2")
    a(f"s_mul_i32 s{sT0}, s{sT0}, 5120")
    a(f"s_and_b32 s{sT1}, s{sB}, 3")
    a(f"s_lshl_b32 s{sT1}, s{sT1}, 8")
    a(f"s_add_u32 s{sGST}, s{sT0}, s{sT1}")
    if H_OFF: a(f"s_add_u32 s{sGST}, s{sGST}, {H_OFF}")

def reduce32(r, t):
    for dpp in ("quad_perm:[1,0,3,2]", "quad_perm:[2,3,0,1]", "row_half_mirror", "row_mirror"):
        a("s_nop 1")
        a(f"v_add_f32_dpp v{r}, v{r}, v{r} {dpp} row_mask:0xf bank_mask:0xf")
    a(f"v_mov_b32 v{t}, v{r}")
    a("s_nop 1")
    a(f"v_permlane16_swap_b32 v{r}, v{t}")
    a("s_nop 1")
    fg(f"v_add_f32 v{r}, v{r}, v{t}")

def rne_bf16(dst, src):
    a(f"v_cvt_pk_bf16_f32 v{dst}, v{src}, v{src}")
    a(f"v_and_b32 v{dst}, 0xffff0000, v{dst}")

def ln_compute():
    for m in range(10):
        fg(f"v_lshlrev_b32 v{FV+2*m}, 16, v{XR+m}")
        fg(f"v_and_b32 v{FV+2*m+1}, 0xffff0000, v{XR+m}")
    s0, s1 = TV, TV+2
    fg(f"v_pk_add_f32 {P(s0)}, {P(FV)}, {P(FV+2)}")
    fg(f"v_pk_add_f32 {P(s1)}, {P(FV+4)}, {P(FV+6)}")
    for m in range(4, 10):
        s = s0 if m % 2 == 0 else s1
        fg(f"v_pk_add_f32 {P(s)}, {P(s)}, {P(FV+2*m)}")
    fg(f"v_pk_add_f32 {P(s0)}, {P(s0)}, {P(s1)}")
    mean = TV+4
    fg(f"v_add_f32 v{mean}, v{s0}, v{s0+1}")
    reduce32(mean, TV+6)
    fg(f"v_mul_f32 v{mean}, {f32hex(1.0/640)}, v{mean}")
    fg(f"v_mov_b32 v{mean+1}, v{mean}")
    for m in range(10):
        fg(f"v_pk_add_f32 {P(DV+2*m)}, {P(FV+2*m)}, {P(mean)} neg_lo:[0,1] neg_hi:[0,1]")
    fg(f"v_pk_mul_f32 {P(s0)}, {P(DV)}, {P(DV)}")
    fg(f"v_pk_mul_f32 {P(s1)}, {P(DV+2)}, {P(DV+2)}")
    for m in range(2, 10):
        s = s0 if m % 2 == 0 else s1
        fg(f"v_pk_fma_f32 {P(s)}, {P(DV+2*m)}, {P(DV+2*m)}, {P(s)}")
    fg(f"v_pk_add_f32 {P(s0)}, {P(s0)}, {P(s1)}")
    var = TV+8
    fg(f"v_add_f32 v{var}, v{s0}, v{s0+1}")
    reduce32(var, TV+6)
    fg(f"v_mul_f32 v{var}, {f32hex(1.0/640)}, v{var}")
    rs = TV+10
    if args.exact:
        rne_bf16(var, var)
        a(f"v_add_f32 v{var}, {f32hex(1e-5)}, v{var}")
        rne_bf16(var, var)
        a(f"v_sqrt_f32 v{var}, v{var}")
        a("s_nop 0")
        rne_bf16(var, var)
        a(f"v_rcp_f32 v{rs}, v{var}")
        rne_bf16(mean, mean)
        a(f"v_mov_b32 v{mean+1}, v{mean}")
        fg(f"v_mov_b32 v{rs+1}, v{rs}")
        for m in range(10):
            fg(f"v_pk_add_f32 {P(DV+2*m)}, {P(FV+2*m)}, {P(mean)} neg_lo:[0,1] neg_hi:[0,1]")
        for m in range(10):
            fg(f"v_cvt_pk_bf16_f32 v{HP+m}, v{DV+2*m}, v{DV+2*m+1}")
        for m in range(10):
            fg(f"v_lshlrev_b32 v{DV+2*m}, 16, v{HP+m}")
            fg(f"v_and_b32 v{DV+2*m+1}, 0xffff0000, v{HP+m}")
    else:
        a(f"v_add_f32 v{var}, {f32hex(1e-5)}, v{var}")
        a(f"v_rsq_f32 v{rs}, v{var}")
        a("s_nop 0")
        fg(f"v_mov_b32 v{rs+1}, v{rs}")
    for m in range(10):
        fg(f"v_pk_mul_f32 {P(DV+2*m)}, {P(DV+2*m)}, {P(rs)}")
    for m in range(10):
        fg(f"v_cvt_pk_bf16_f32 v{HP+m}, v{DV+2*m}, v{DV+2*m+1}")
    a(f"s_mov_b32 s{sT0}, 0x05040100")
    a(f"s_mov_b32 s{sT1}, 0x07060302")
    for k in range(5):
        a(f"v_permlane32_swap_b32 v{HP+2*k}, v{HP+2*k+1}")
    a("s_nop 1")
    for k in range(5):
        a(f"v_perm_b32 v{DV+2*k}, v{HP+2*k+1}, v{HP+2*k}, s{sT0}")
        a(f"v_perm_b32 v{DV+2*k+1}, v{HP+2*k+1}, v{HP+2*k}, s{sT1}")
    for k in range(10):
        a(f"ds_write_b32 v{WA+k}, v{DV+k}")

def ln_store():
    a("s_waitcnt lgkmcnt(0)")
    a("s_barrier")
    a(f"ds_read_b128 v[{FV}:{FV+3}], v95")
    a(f"ds_read_b128 v[{FV+4}:{FV+7}], v95 offset:4096")
    a(f"s_cmp_ge_u32 s{sWV}, 2")
    a("s_cbranch_scc1 L_ln_two")
    a(f"ds_read_b128 v[{FV+8}:{FV+11}], v95 offset:8192")
    a("s_waitcnt lgkmcnt(0)")
    a(f"buffer_store_dwordx4 v[{FV+8}:{FV+11}], v{GA+2}, s[{srdWS}:{srdWS+3}], s{sGST} offen{SC}")
    vm.issue("hst3", True)
    a("L_ln_two:")
    a("s_waitcnt lgkmcnt(0)")
    a(f"buffer_store_dwordx4 v[{FV}:{FV+3}], v{GA}, s[{srdWS}:{srdWS+3}], s{sGST} offen{SC}")
    a(f"buffer_store_dwordx4 v[{FV+4}:{FV+7}], v{GA+1}, s[{srdWS}:{srdWS+3}], s{sGST} offen{SC}")
    vm.issue("hst"); vm.issue("hst")

def publish_nonce():
    a(f"s_or_b32 s{sT0}, s{sB}, s{sWV}")
    a(f"s_cmp_lg_u32 s{sT0}, 0")
    a("s_cbranch_scc1 L_no_nonce")
    a(f"s_memrealtime s[{sT0}:{sT0+1}]")
    a("s_waitcnt lgkmcnt(0)")
    a(f"s_or_b32 s{sT1}, s{sT1}, 0x40000000")
    a(f"v_mov_b32 v12, s{sT0}")
    a(f"v_mov_b32 v13, s{sT1}")
    a("v_mov_b32 v112, 0")
    a(f"buffer_store_dwordx2 v[12:13], v112, s[{srdDBG}:{srdDBG+3}], 0 offen sc1")
    a("L_no_nonce:")
    vm.issue("noncest", True)

def nonce_issue():
    a("v_mov_b32 v18, 0")
    a(f"buffer_load_dwordx2 v[16:17], v18, s[{srdDBG}:{srdDBG+3}], 0 offen sc1")
    vm.issue("nonce")

def nonce_finish(label):
    a(f"s_mov_b32 s{sSPIN}, {SPIN_MAX}")
    a(f"{label}:")
    a(f"v_readfirstlane_b32 s{sNON}, v16")
    a(f"v_readfirstlane_b32 s{sNON+1}, v17")
    a("s_nop 3")
    a(f"s_sub_u32 s{sSPIN}, s{sSPIN}, 1")
    a(f"s_cselect_b32 s{sT0}, 1, s{sNON+1}")
    a(f"s_cmp_lg_u32 s{sT0}, 0")
    a(f"s_cbranch_scc1 {label}_ok")
    a(f"buffer_load_dwordx2 v[16:17], v18, s[{srdDBG}:{srdDBG+3}], 0 offen sc1")
    a("s_waitcnt vmcnt(0)")
    a(f"s_branch {label}")
    a(f"{label}_ok:")

def store_flag(label, off_sreg):
    a(f"s_cmp_lg_u32 s{sWV}, 0")
    a(f"s_cbranch_scc1 {label}")
    a(f"v_mov_b32 v16, s{sNON}")
    a(f"v_mov_b32 v17, s{sNON+1}")
    a("v_mov_b32 v18, 0")
    a(f"s_mov_b64 s[{sEXEC}:{sEXEC+1}], exec")
    a("s_mov_b64 exec, 1")
    a(f"buffer_store_dwordx2 v[16:17], v18, s[{srdWS}:{srdWS+3}], s{off_sreg} offen sc1")
    a(f"s_mov_b64 exec, s[{sEXEC}:{sEXEC+1}]")
    a("s_nop 1")
    a(f"{label}:")
    vm.issue("flag", True)

vPOLL = 120
def poll_issue(off_sreg):
    a(f"buffer_load_dwordx2 v[{vPOLL}:{vPOLL+1}], v{vPOLL+2}, s[{srdWS}:{srdWS+3}], s{off_sreg} offen sc1")
    vm.issue("poll")
def poll_check(label, off_sreg):
    vm.wait("poll")
    a(f"s_mov_b32 s{sSPIN}, {SPIN_MAX}")
    a(f"{label}:")
    a(f"v_cmp_ne_u32 vcc, s{sNON}, v{vPOLL}")
    a(f"v_cmp_ne_u32 s[{sT0}:{sT0+1}], s{sNON+1}, v{vPOLL+1}")
    a("s_nop 3")
    a(f"s_or_b64 vcc, vcc, s[{sT0}:{sT0+1}]")
    a(f"s_cbranch_vccz {label}_ok")
    if args.sleep: a(f"s_sleep {args.sleep}")
    a(f"buffer_load_dwordx2 v[{vPOLL}:{vPOLL+1}], v{vPOLL+2}, s[{srdWS}:{srdWS+3}], s{off_sreg} offen sc1")
    a("s_waitcnt vmcnt(0)")
    a(f"s_sub_u32 s{sSPIN}, s{sSPIN}, 1")
    a(f"s_cbranch_scc0 {label}")
    a(f"{label}_ok:")

def a_load(slot, mi, ks, fixed=False):
    r = abuf(slot, mi)
    off = sAOFF
    if fixed:
        off = sOFF
        if mi == 0: a(f"s_add_u32 s{sOFF}, s{sABASE}, {ks*5120}")
    if mi < 4:
        a(f"buffer_load_dwordx4 v[{r}:{r+3}], v{vA}, s[{srdWS}:{srdWS+3}], s{off} offen offset:{mi*1024}{fl(args.asc)}")
    else:
        a(f"buffer_load_dwordx4 v[{r}:{r+3}], v{vA2}, s[{srdWS}:{srdWS+3}], s{off} offen{fl(args.asc)}")
        if not fixed:
            a(f"s_add_u32 s{sAOFF}, s{sAOFF}, {args.astride}")
            a(f"s_cmp_eq_u32 s{sAOFF}, s{sAEND}")
            a(f"s_cselect_b32 s{sAOFF}, s{sABASE}, s{sAOFF}")
    vm.issue(("A", ks), fixed)

def mfma(first, ks, slot, c, mi, gemm):
    d = acc(c, mi); wr = 16*ks + 4*c; ar = abuf(slot, mi)
    cin = "0" if first else f"v[{d}:{d+3}]"
    if gemm == 1: a(f"v_mfma_f32_16x16x32_bf16 v[{d}:{d+3}], a[{wr}:{wr+3}], v[{ar}:{ar+3}], {cin}")
    else:         a(f"v_mfma_f32_16x16x32_bf16 v[{d}:{d+3}], v[{ar}:{ar+3}], a[{wr}:{wr+3}], {cin}")

def main_prefill(gemm, nks, optional_last):
    for ks in range(min(NA, nks)):
        for mi in range(5): a_load(ks % NA, mi, ks, optional_last and ks == nks - 1)

def main_loop(gemm, nks, optional_last, tail=None):
    depth = min(NA, nks)
    nreal = nks - 1 if optional_last else nks
    def loads(ks):
        for mi in range(5): a_load(ks % NA, mi, ks, optional_last and ks == nks - 1)
    for ks in range(nks):
        def body():
            vm.wait(("A", ks))
            if args.mstamps and ks in (0, 4, 8, 12): stamp(f"g{gemm} step {ks} data")
            nxt = ks + depth
            for mi in range(5):
                for c in range(4):
                    mfma(ks == 0, ks, ks % NA, c, mi, gemm)
                    if nxt < nreal: bg.tick()
                if nxt < nreal: a_load(nxt % NA, mi, nxt)
                elif tail is not None: tail()
        if optional_last and ks == nks - 1: guarded(f"L_g{gemm}_mm", body)
        else: body()
        nxt = ks + depth
        if optional_last and nxt == nks - 1:
            guarded(f"L_g{gemm}_ld", lambda: loads(nxt))
        if nxt == nreal - 1: bg.flush()

RT = 16
PK = 80
def epilogue_addresses():
    for c in range(1, 4):
        a(f"s_add_u32 s{sT0}, s{sWV}, {c}")
        a(f"s_and_b32 s{sT0}, s{sT0}, 3")
        a(f"s_mul_i32 s{sT1}, s{sT0}, {RING}")
        a(f"s_add_u32 s{sT1}, s{sT1}, {6*4096}")
        a(f"v_add_u32 v{vRW+c-1}, s{sT1}, v{vA}")
        if c == 3:
            a(f"s_mul_i32 s{sT1}, s{sT0}, 3072")
            a(f"s_add_u32 s{sT1}, s{sT1}, {T_OFF}")
            a(f"v_add_u32 v{vRW+3}, s{sT1}, v{vA}")
    a(f"s_add_u32 s{sT1}, s{sRING}, {6*4096}")
    a(f"v_add_u32 v{vRR}, s{sT1}, v{vA}")
    a(f"s_mul_i32 s{sT1}, s{sWV}, 3072")
    a(f"s_add_u32 s{sT1}, s{sT1}, {T_OFF}")
    a(f"v_add_u32 v{vRR+1}, s{sT1}, v{vA}")
    a(f"v_lshrrev_b32 v12, 4, v{vLANE}")
    a("v_and_b32 v13, 1, v12")
    a(f"v_lshlrev_b32 v{vGO}, 10, v13")
    a(f"v_lshlrev_b32 v{vOO}, 5, v13")
    a("v_lshrrev_b32 v12, 1, v12")
    a(f"v_lshl_add_u32 v{vGL}, v12, 8, 0")
    a(f"v_lshlrev_b32 v{vOL}, 4, v12")
    a(f"v_and_b32 v12, 15, v{vLANE}")
    a(f"v_lshl_add_u32 v{vGL}, v12, 4, v{vGL}")
    a(f"v_add_u32 v{vGO}, v{vGO}, v{vGL}")
    a("v_mul_u32_u24 v12, 1280, v12")
    a(f"v_add_u32 v{vOL}, v{vOL}, v12")
    a(f"v_add_u32 v{vOO}, v{vOO}, v{vOL}")
    a(f"s_mul_i32 s{sT0}, s{sDT1}, 54")
    a(f"s_lshl_b32 s{sT1}, s{sFT}, 1")
    a(f"s_add_u32 s{sT0}, s{sT0}, s{sT1}")
    a(f"s_lshr_b32 s{sT1}, s{sWV}, 1")
    a(f"s_add_u32 s{sT0}, s{sT0}, s{sT1}")
    a(f"s_mul_i32 s{sT0}, s{sT0}, 5120")
    a(f"s_and_b32 s{sT1}, s{sWV}, 1")
    a(f"s_lshl_b32 s{sT1}, s{sT1}, 9")
    a(f"s_add_u32 s{sT0}, s{sT0}, s{sT1}")
    a(f"s_add_u32 s{sGST}, s{sT0}, {G_OFF}")
    a(f"s_lshl_b32 s{sT0}, s{sST}, 2")
    a(f"s_add_u32 s{sT0}, s{sT0}, s{sWV}")
    a(f"s_mul_i32 s{sT0}, s{sT0}, {16*1280}")
    a(f"s_mul_i32 s{sT1}, s{sDT}, 160")
    a(f"s_add_u32 s{sOST}, s{sT0}, s{sT1}")
    c1 = -2.0 * 0.7978845608028654 * 1.4426950408889634
    a(f"v_mov_b32 v{vC}, {f32hex(c1)}"); a(f"v_mov_b32 v{vC+1}, {f32hex(c1)}")
    a(f"v_mov_b32 v{vC+2}, {f32hex(c1*0.044715)}"); a(f"v_mov_b32 v{vC+3}, {f32hex(c1*0.044715)}")
    a(f"v_mov_b32 v{vC+4}, 1.0"); a(f"v_mov_b32 v{vC+5}, 1.0")
    dma_offsets(vD2, W2_ROW)
    set_w2_base()
    a(f"s_lshl_b32 s{sT0}, s{sST}, 7")
    a(f"s_lshl_b32 s{sT1}, s{sWV}, 5")
    a(f"s_add_u32 s{sT0}, s{sT0}, s{sT1}")
    a(f"v_and_b32 v12, 15, v{vLANE}")
    a("v_lshlrev_b32 v12, 1, v12")
    a(f"buffer_load_ushort v{vB2}, v12, s[{srdB2}:{srdB2+3}], s{sT0} offen")
    vm.issue("b2")

def reduce_waves():
    a("s_nop 6")
    a("s_barrier")
    for c in range(1, 4):
        for mi in range(5):
            blk = (c-1)*5 + mi
            r = acc(c, mi)
            if blk < 12: a(f"ds_write_b128 v{vRW+c-1}, v[{r}:{r+3}] offset:{blk*1024}")
            else:        a(f"ds_write_b128 v{vRW+3}, v[{r}:{r+3}] offset:{(blk-12)*1024}")
            bg.tick(3)
    a("s_waitcnt lgkmcnt(0)")
    a("s_barrier")
    for blk in range(15):
        r = RT + 4*blk
        if blk < 12: a(f"ds_read_b128 v[{r}:{r+3}], v{vRR} offset:{blk*1024}")
        else:        a(f"ds_read_b128 v[{r}:{r+3}], v{vRR+1} offset:{(blk-12)*1024}")
    for c in range(1, 4):
        a(f"s_waitcnt lgkmcnt({15 - 5*c})")
        for mi in range(5):
            for h in range(2):
                d = acc(0, mi) + 2*h; s = RT + 4*((c-1)*5 + mi) + 2*h
                fg(f"v_pk_add_f32 {P(d)}, {P(d)}, {P(s)}")

def pack_swap():
    for mi in range(5):
        d = acc(0, mi); r = PK + 2*mi
        a(f"v_cvt_pk_bf16_f32 v{r}, v{d}, v{d+1}")
        a(f"v_cvt_pk_bf16_f32 v{r+1}, v{d+2}, v{d+3}")
    a(f"v_mov_b32 v{PK+10}, v{PK+8}")
    a(f"v_mov_b32 v{PK+11}, v{PK+9}")
    a("s_nop 1")
    for p in range(3):
        b = PK + 4*p
        a(f"v_permlane16_swap_b32 v{b}, v{b+2}")
        a(f"v_permlane16_swap_b32 v{b+1}, v{b+3}")

def epilogue1(after_reduce):
    reduce_waves()
    after_reduce()
    fg(f"v_lshlrev_b32 v96, 16, v{vB1}");   fg(f"v_and_b32 v97, 0xffff0000, v{vB1}")
    fg(f"v_lshlrev_b32 v98, 16, v{vB1+1}"); fg(f"v_and_b32 v99, 0xffff0000, v{vB1+1}")
    for mi in range(5):
        d = acc(0, mi)
        for h in range(2):
            fg(f"v_pk_add_f32 {P(d+2*h)}, {P(d+2*h)}, {P(96+2*h)}")
    T = 16
    for mi in range(5):
        d = acc(0, mi)
        for h in range(2):
            u = d + 2*h; t = T + 4*mi + 2*h
            fg(f"v_pk_mul_f32 {P(t)}, {P(u)}, {P(u)}")
            fg(f"v_pk_fma_f32 {P(t)}, {P(t)}, {P(vC+2)}, {P(vC)}")
            fg(f"v_pk_mul_f32 {P(t)}, {P(t)}, {P(u)}")
        t = T + 4*mi
        for k in range(4): a(f"v_exp_f32 v{t+k}, v{t+k}")
        bg.tick(8)
        for h in range(2): a(f"v_pk_add_f32 {P(t+2*h)}, {P(t+2*h)}, {P(vC+4)}")
        for k in range(4): a(f"v_rcp_f32 v{t+k}, v{t+k}")
        a("s_nop 0")
        bg.tick(10)
        for h in range(2): fg(f"v_pk_mul_f32 {P(d+2*h)}, {P(d+2*h)}, {P(t+2*h)}")
    bg.flush()
    pack_swap()
    a(f"s_add_u32 s{sT1}, s{sGST}, 4096")
    a(f"buffer_store_dwordx4 v[{PK}:{PK+3}], v{vGO}, s[{srdWS}:{srdWS+3}], s{sGST} offen{SC}")
    a(f"buffer_store_dwordx4 v[{PK+4}:{PK+7}], v{vGO}, s[{srdWS}:{srdWS+3}], s{sGST} offen offset:2048{SC}")
    a(f"buffer_store_dwordx4 v[{PK+8}:{PK+11}], v{vGL}, s[{srdWS}:{srdWS+3}], s{sT1} offen{SC}")
    for _ in range(3): vm.issue("gst")

def epilogue2():
    reduce_waves()
    a(f"v_lshlrev_b32 v96, 16, v{vB2}")
    a("v_mov_b32 v97, v96")
    for mi in range(5):
        d = acc(0, mi)
        for h in range(2):
            a(f"v_pk_add_f32 {P(d+2*h)}, {P(d+2*h)}, {P(96)}")
    pack_swap()
    o = fl(args.ofl)
    a(f"buffer_store_dwordx4 v[{PK}:{PK+3}], v{vOO}, s[{srdOUT}:{srdOUT+3}], s{sOST} offen{o}")
    a(f"buffer_store_dwordx4 v[{PK+4}:{PK+7}], v{vOO}, s[{srdOUT}:{srdOUT+3}], s{sOST} offen offset:64{o}")
    a(f"buffer_store_dwordx4 v[{PK+8}:{PK+11}], v{vOL}, s[{srdOUT}:{srdOUT+3}], s{sOST} offen offset:128{o}")

file_begin(a, [(MAIN, 256, 256, LDS_BYTES)])
prologue(MAIN, "L_end")
stamp("kernarg")
set_w1_base()
W1 = Stager(srdW1, vD, sWOFF, sWBASE, sWEND, W1_KS, 16, False, fl(args.w1fl), "w1")
W1.start()
publish_nonce()
W1.dma_bg(args.npre)
bg.every = 6
ln_addresses()
tr_addresses()
bg.flush()
vm.wait("x")
stamp("x landed")
W1.dma_bg(args.nln)
W1.tr_bg(args.lntr)
bg.every = args.lnevery; bg.cnt = 0
ln_compute()
bg.flush()
ln_store()
nonce_issue()
stamp("h stores issued")
W1.fill()
W1.refill(settled=True)
a(f"s_lshl_b32 s{sT0}, s{sFT}, 7")
a(f"s_lshl_b32 s{sT1}, s{sWV}, 5")
a(f"s_add_u32 s{sT0}, s{sT0}, s{sT1}")
a(f"v_lshrrev_b32 v12, 4, v{vLANE}")
a("v_lshlrev_b32 v12, 3, v12")
a(f"buffer_load_dwordx2 v[{vB1}:{vB1+1}], v12, s[{srdB1}:{srdB1+3}], s{sT0} offen")
vm.issue("b1")
for _ in range(args.kpre): W1.tr()
vm.wait("nonce")
nonce_finish("L_nonce")
a("s_barrier")
a(f"s_lshl_b32 s{sT2}, s{sB}, 6")
a(f"s_add_u32 s{sT2}, s{sT2}, {FL_LN}")
store_flag("L_flag_ln", sT2)
stamp("LN flag stored")
a(f"s_cmp_eq_u32 s{sROLE}, 0")
a("s_cbranch_scc1 L_idle")
i_branch = nstamp[0]
set_h_base()
a(f"s_lshl_b32 s{sT2}, s{sWV}, 12")
a(f"s_add_u32 s{sGST}, s{sT2}, {FL_LN}")
a(f"v_lshlrev_b32 v{vPOLL+2}, 6, v{vLANE}")
while W1.nd < args.pollat: W1.step()
poll_issue(sGST)
W1.request_all()
stamp("w1 requested")
poll_check("L_poll_ln", sGST)
stamp("LN flags seen")
main_prefill(1, 16, False)
W1.finish()
stamp("w1 in regs")
W2 = Stager(srdW2, vD2, sW2R, sW2B, sW2E, W2_KS, 14, True, fl(args.w2fl), "w2")
queue_lines(epilogue_addresses)
bg.every = args.addrevery; bg.cnt = 0
tailq = []
def tail():
    if not W2.started: W2.start()
    if tailq: tailq.pop(0)()
ntail = 5 if args.tailpieces else 0
for pos in range(ntail):
    for q in range(4): tailq.append(lambda pos=pos, q=q: W2.piece(pos, q, False))
W2.nd = ntail
main_loop(1, 16, False, tail if ntail else None)
assert not tailq
if not W2.started: W2.start()
stamp("main1 done")
W2.dma_bg(args.n2pre - W2.nd)
bg.every = args.epevery; bg.cnt = 0
def after_reduce():
    W2.dma_bg(args.ep3)
    W2.tr_bg(args.eptr)
epilogue1(after_reduce)
stamp("G stores issued")
a("s_waitcnt lgkmcnt(0)")
assert W2.nd + args.n2fill - NSLOT <= W2.nt
W2.fill(W2.nd + args.n2fill)
for _ in range(args.k2pre): W2.tr()
vm.wait("gst")
a("s_barrier")
a(f"s_lshl_b32 s{sT2}, s{sDT1}, 5")
a(f"s_add_u32 s{sT2}, s{sT2}, s{sFT}")
a(f"s_lshl_b32 s{sT2}, s{sT2}, 6")
a(f"s_add_u32 s{sT2}, s{sT2}, {FL_G}")
store_flag("L_flag_g", sT2)
stamp("G flag stored")
def g_poll_setup():
    set_g_base()
    a(f"s_mul_i32 s{sT2}, s{sWV}, 7")
    a(f"s_cmp_eq_u32 s{sWV}, 3")
    a(f"s_cselect_b32 s{sT3}, 1, 0")
    a(f"s_sub_u32 s{sT2}, s{sT2}, s{sT3}")
    a(f"s_lshl_b32 s{sT3}, s{sDT}, 5")
    a(f"s_add_u32 s{sT2}, s{sT2}, s{sT3}")
    a(f"s_lshl_b32 s{sT2}, s{sT2}, 6")
    a(f"s_add_u32 s{sGST}, s{sT2}, {FL_G}")
    a(f"v_min_u32 v{vPOLL+2}, 6, v{vLANE}")
    a(f"v_lshlrev_b32 v{vPOLL+2}, 6, v{vPOLL+2}")
g_poll_setup()
W2.fill()
W2.finish()
stamp("w2 in regs")
i_join = nstamp[0]
a("s_branch L_gemm2")
a("L_idle:")
nstamp[0] = i_branch
a("s_waitcnt vmcnt(0)")
vm.drained()
epilogue_addresses()
if args.w2pf:
    a(f"s_lshr_b32 s{sT0}, s{sB}, 5")
    a(f"s_cmp_lg_u32 s{sT0}, 7")
    a("s_cbranch_scc1 L_pf_done")
    a(f"s_bfe_u32 s{sT0}, s{sB}, 0x20003")
    a(f"s_lshl_b32 s{sT0}, s{sT0}, 2")
    a(f"s_add_u32 s{sT0}, s{sT0}, s{sWV}")
    a(f"s_mul_i32 s{sT0}, s{sT0}, {108*W2_ROW}")
    a(f"s_bfe_u32 s{sT1}, s{sB}, 0x20001")
    a(f"s_lshl_b32 s{sT1}, s{sT1}, 10")
    a(f"s_add_u32 s{sT0}, s{sT0}, s{sT1}")
    a(f"s_mov_b32 s{sT1}, 108")
    a("L_pf_loop:")
    a(f"buffer_load_dwordx4 v[20:23], v{vA}, s[{srdW2}:{srdW2+3}], s{sT0} offen")
    a(f"s_add_u32 s{sT0}, s{sT0}, {W2_ROW}")
    a(f"s_sub_u32 s{sT1}, s{sT1}, 1")
    a(f"s_cmp_lg_u32 s{sT1}, 0")
    a("s_cbranch_scc1 L_pf_loop")
    a("s_waitcnt vmcnt(0)")
    a("L_pf_done:")
vm.drained()
W2i = Stager(srdW2, vD2, sW2R, sW2B, sW2E, W2_KS, 14, True, fl(args.w2fl), "w2i")
W2i.start()
W2i.fill()
W2i.finish()
g_poll_setup()
while nstamp[0] < i_join and args.stamps: stamp("idle")
a("L_gemm2:")
vm.drained()
poll_issue(sGST)
poll_check("L_poll_g", sGST)
stamp("G flags seen")
bg.every = 0
main_prefill(2, 14, True)
main_loop(2, 14, True)
stamp("main2 done")
epilogue2()
stamp("end")
write_stamps("L_st", STAMP)
if args.padto:
    a("s_waitcnt vmcnt(0)")
    a("L_pad:")
    a("s_memrealtime s[88:89]")
    a("s_waitcnt lgkmcnt(0)")
    a("s_sub_u32 s88, s88, s90")
    a(f"s_cmp_lt_u32 s88, {args.padto}")
    a("s_cbranch_scc1 L_pad")
a("L_end:")
a("s_endpgm")
a("L_code_end:")
kernel_desc(a, MAIN, 512, 102, 256)
print(a.text())
```

```python
import sys, argparse, struct
sys.path.insert(0, "tools")
from asmlib import *

ap = argparse.ArgumentParser()
ap.add_argument("--stamps", type=int, default=0)
ap.add_argument("--mstamps", type=int, default=0)
ap.add_argument("--cyc", type=int, default=0)
ap.add_argument("--light", type=int, default=0)
ap.add_argument("--padto", type=int, default=0)
ap.add_argument("--probe", default="")
ap.add_argument("--exact", type=int, default=1)
ap.add_argument("--na", type=int, default=4)
ap.add_argument("--pfwait", type=int, default=1)
ap.add_argument("--npre", type=int, default=0)
ap.add_argument("--nln", type=int, default=0)
ap.add_argument("--w2pf", type=int, default=1)
ap.add_argument("--lnevery", type=int, default=10)
ap.add_argument("--kpre", type=int, default=3)
ap.add_argument("--n2pre", type=int, default=6)
ap.add_argument("--epevery", type=int, default=12)
ap.add_argument("--pf1", type=int, default=0)
ap.add_argument("--pf1rot", default="qd:8")
ap.add_argument("--npost", type=int, default=2)
ap.add_argument("--pre1", default="11:2")
ap.add_argument("--pre1b", default="12:3")
ap.add_argument("--join2", default="14:5")
ap.add_argument("--pfmode", default="mall")
ap.add_argument("--pollat", type=int, default=13)
ap.add_argument("--pollat2", type=int, default=12)
ap.add_argument("--eptr", type=int, default=3)
ap.add_argument("--tailpieces", type=int, default=1)
ap.add_argument("--ep3", type=int, default=3)
ap.add_argument("--lntr", type=int, default=2)
ap.add_argument("--addrevery", type=int, default=3)
ap.add_argument("--n2fill", type=int, default=2)
ap.add_argument("--k2pre", type=int, default=2)
ap.add_argument("--sleep", type=int, default=1)
ap.add_argument("--rot1", default="qd:8")
ap.add_argument("--rot2", default="none:2")
ap.add_argument("--xfl", default="none")
ap.add_argument("--w1fl", default="none")
ap.add_argument("--w2fl", default="none")
ap.add_argument("--ofl", default="none")
ap.add_argument("--pre2", default="")
ap.add_argument("--bglate", type=int, default=0)
ap.add_argument("--wsame", type=int, default=0)
ap.add_argument("--nomfma", type=int, default=0)
ap.add_argument("--stswap", type=int, default=3)
ap.add_argument("--map1", default="2d")
ap.add_argument("--astride", type=int, default=5120)
ap.add_argument("--asc", default="sc1")
ap.add_argument("--touch", type=int, default=0)
args = ap.parse_args()

def fl(s): return "" if s == "none" else " " + s.replace("+", " ")
def f32hex(x): return "0x%08x" % struct.unpack("<I", struct.pack("<f", x))[0]

S, D, F = 2048, 640, 1728
H_OFF   = 0
G_OFF   = 0x280000
FL_LN   = 0x500000
FL_G    = 0x508000
STAMP   = 0x8000000
W1_ROW, W2_ROW = 3456, 4096
W1_KS, W2_KS = 32 * W1_ROW, 32 * W2_ROW
RING = 36864
NSLOT = 9
T_OFF = 147456
LDS_BYTES = 163840
SPIN_MAX = 200000
SC = " sc1"
OOB = 0x10000000

sB, sWV = 2, 3
sDT, sFT, sST, sROLE = 4, 5, 6, 7
srdX, srdW1, srdW2, srdB1, srdB2, srdOUT, srdDBG, srdWS = 8, 12, 16, 20, 24, 28, 32, 36
sNON = 40
sT0, sT1, sT2, sT3 = 42, 43, 44, 45
sRING, sOFF = 46, 47
sKARG = 48
sSTAMP = 64
sDT1 = 94
sW2B, sW2R = 95, 99
sWOFF, sAOFF, sSPIN = 96, 97, 98
sEXEC = 100
sWBASE, sWEND, sABASE, sAEND, sROT, sW2E, sGST, sOST = 48, 49, 50, 51, 52, 53, 54, 55
sKX = 56

vTID, vLANE, vA, vA2 = 0, 1, 2, 3
vD, vT = 4, 8
vB1 = 14
ABUF, NA = 16, args.na
assert NA <= 5
vD2 = 128
vB2 = 132
vGO, vGL = 133, 134
vOO, vOL = 135, 136
vRW = 137
vRR = 141
vC = 144
ACC = 176
def acc(c, mi): return ACC + (c * 5 + mi) * 4
def abuf(slot, mi): return ABUF + slot * 20 + mi * 4
P = lambda r: f"v[{r}:{r+1}]"

a = Asm()

class VM:
    def __init__(self): self.ops = []
    def issue(self, tag, optional=False): self.ops.append((tag, optional))
    def has(self, tag): return any(t == tag for t, o in self.ops)
    def wait(self, tag):
        idx = max(i for i, (t, o) in enumerate(self.ops) if t == tag)
        n = sum(1 for t, o in self.ops[idx+1:] if not o)
        assert n <= 63, (tag, n)
        a(f"s_waitcnt vmcnt({n})")
        self.ops = self.ops[idx+1:]
    def drained(self): self.ops = []
vm = VM()

class BG:
    def __init__(self): self.q = []; self.cnt = 0; self.every = 0
    def add(self, fn): self.q.append(fn)
    def step(self):
        if self.q: self.q.pop(0)()
    def flush(self):
        while self.q: self.step()
    def tick(self, n=1):
        self.cnt += n
        while self.every and self.cnt >= self.every and self.q:
            self.cnt -= self.every; self.step()
bg = BG()
def fg(s):
    a(s); bg.tick()
def queue_lines(fn):
    save = a.lines; a.lines = []
    ops_before = len(vm.ops)
    fn()
    lines = a.lines; a.lines = save
    vmops = vm.ops[ops_before:]; del vm.ops[ops_before:]
    groups = []
    for l in lines:
        op = l.split()[0] if l.split() else ""
        if groups and op in ("s_cselect_b32", "s_addc_u32", "s_cbranch_scc0", "s_cbranch_scc1"): groups[-1].append(l)
        else: groups.append([l])
    def emit(g):
        for l in g:
            a(l)
            if l.startswith("buffer_"): vm.issue(*vmops.pop(0))
    for g in groups: bg.add(lambda g=g: emit(g))

nstamp = [0]
NSTAMPS = 28
stamp_names = {}
def stamp(name):
    if args.light:
        if name == "start": a("s_memrealtime s[90:91]")
        return
    if args.probe:
        if name == "start":
            a("s_memrealtime s[90:91]")
        elif name == args.probe.replace("_", " "):
            a("s_memrealtime s[92:93]"); a("s_waitcnt lgkmcnt(0)"); a("s_mov_b32 s89, s92")
        return
    if not args.stamps: return
    i = nstamp[0]; nstamp[0] += 1
    assert i < NSTAMPS
    stamp_names.setdefault(i, name)
    a(("s_memtime" if args.cyc else "s_memrealtime") + " s[92:93]")
    a("s_waitcnt lgkmcnt(0)")
    a(f"s_mov_b32 s{sSTAMP+i}, s92")

def write_stamps(label, base):
    if not args.stamps: return
    a(f"s_cmp_lg_u32 s{sWV}, {args.stamps - 1}")
    a(f"s_cbranch_scc1 {label}_nostamp")
    a(f"s_mul_i32 s{sT0}, s{sB}, 128")
    a(f"s_add_u32 s{sT0}, s{sT0}, {base}")
    a("v_mov_b32 v12, 0")
    a("s_mov_b64 exec, 1")
    for i in range(0, NSTAMPS, 4):
        for k in range(4):
            if i + k < nstamp[0]: a(f"v_mov_b32 v{16+k}, s{sSTAMP + i + k}")
            else:                 a(f"v_mov_b32 v{16+k}, 0")
        a(f"buffer_store_dwordx4 v[16:19], v12, s[{srdWS}:{srdWS+3}], s{sT0} offen offset:{i*4}")
        a("s_nop 2")
    a(f"{label}_nostamp:")
    for i in sorted(stamp_names): a(f"; STAMPNAME {i} {stamp_names[i]}")

def mk_srd(d, p, nbytes):
    a(f"s_mov_b32 s{d}, s{p}")
    a(f"s_and_b32 s{d+1}, s{p+1}, 0xffff")
    a(f"s_mov_b32 s{d+2}, {nbytes}")
    a(f"s_mov_b32 s{d+3}, 0x00020000")

def prologue(name, endlabel):
    kernel_begin(a, name)
    stamp("start")
    if args.padto: a("s_memrealtime s[90:91]")
    a(f"s_cmp_ge_u32 s{sB}, 256")
    a(f"s_cbranch_scc1 {endlabel}")
    a(f"s_load_dwordx16 s[{sKARG}:{sKARG+15}], s[0:1], 0")
    a(f"v_and_b32 v{vLANE}, 63, v{vTID}")
    a(f"v_lshrrev_b32 v12, 6, v{vTID}")
    a(f"v_lshlrev_b32 v{vA}, 4, v{vLANE}")
    a(f"v_readfirstlane_b32 s{sWV}, v12")
    a(f"v_add_u32 v{vA2}, 0x1000, v{vA}")
    a(f"s_getpc_b64 s[{sT0}:{sT0+1}]")
    a("L_pf_base:")
    a("s_nop 2")
    a(f"s_lshr_b32 s{sT2}, s{sB}, 3")
    a(f"s_and_b32 s{sT2}, s{sT2}, 7")
    a(f"s_lshl_b32 s{sT2}, s{sT2}, 2")
    a(f"s_add_u32 s{sT2}, s{sT2}, s{sWV}")
    a(f"s_min_u32 s{sT2}, s{sT2}, (L_code_end - L_pf_base) / 1024 - 1")
    a(f"s_lshl_b32 s{sT2}, s{sT2}, 10")
    a(f"s_add_u32 s{sT0}, s{sT0}, s{sT2}")
    a(f"s_addc_u32 s{sT1}, s{sT1}, 0")
    a(f"global_load_dwordx4 v[124:127], v{vA}, s[{sT0}:{sT0+1}]")
    a(f"s_and_b32 s{sT0}, s{sB}, 1")
    a(f"s_lshl_b32 s{sT0}, s{sT0}, 2")
    a(f"s_bfe_u32 s{sT2}, s{sB}, 0x20003")
    a(f"s_add_u32 s{sDT}, s{sT0}, s{sT2}")
    a(f"s_lshr_b32 s{sT1}, s{sB}, 5")
    a(f"s_bfe_u32 s{sT3}, s{sB}, 0x20001")
    a(f"s_lshl_b32 s{sT2}, s{sT3}, 3")
    if args.stswap >= 0:
        a(f"s_cmp_eq_u32 s{sT1}, 7")
        a(f"s_cselect_b32 s{sT0}, {args.stswap}, s{sT1}")
        a(f"s_cmp_eq_u32 s{sT1}, {args.stswap}")
        a(f"s_cselect_b32 s{sT0}, 7, s{sT0}")
        a(f"s_add_u32 s{sST}, s{sT2}, s{sT0}")
    else:
        a(f"s_add_u32 s{sST}, s{sT2}, s{sT1}")
    if args.map1 == "2d":
        a(f"s_mov_b32 s{sDT1}, s{sDT}")
        a(f"s_mul_i32 s{sT2}, s{sT3}, 7")
        a(f"s_add_u32 s{sFT}, s{sT2}, s{sT1}")
        a(f"s_cmp_eq_u32 s{sT3}, 3")
        a(f"s_cselect_b32 s{sT2}, 6, 7")
        a(f"s_cmp_lt_u32 s{sT1}, s{sT2}")
        a(f"s_cselect_b32 s{sROLE}, 1, 0")
    else:
        a(f"s_bfe_u32 s{sDT1}, s{sB}, 0x30003")
        a(f"s_lshr_b32 s{sT0}, s{sB}, 6")
        a(f"s_lshl_b32 s{sT0}, s{sT0}, 3")
        a(f"s_and_b32 s{sT2}, s{sB}, 7")
        a(f"s_add_u32 s{sFT}, s{sT0}, s{sT2}")
        a(f"s_cmp_lt_u32 s{sFT}, 27")
        a(f"s_cselect_b32 s{sROLE}, 1, 0")
    a(f"s_mul_i32 s{sRING}, s{sWV}, {RING}")
    a(f"v_lshrrev_b32 v12, 5, v{vLANE}")
    a(f"v_mul_u32_u24 v12, 1280, v12")
    a(f"v_and_b32 v13, 31, v{vLANE}")
    a(f"v_lshl_add_u32 v14, v13, 4, v12")
    a(f"v_lshl_add_u32 v15, v13, 3, v12")
    dma_offsets(vD, W1_ROW)
    a(f"s_lshl_b32 s{sT0}, s{sB}, 3")
    a(f"s_lshl_b32 s{sT1}, s{sWV}, 1")
    a(f"s_add_u32 s{sT0}, s{sT0}, s{sT1}")
    a(f"s_mul_i32 s{sOFF}, s{sT0}, 1280")
    a("s_waitcnt lgkmcnt(0)")
    mk_srd(srdX, sKARG+0, S*D*2)
    a(f"buffer_load_dwordx4 v[{XR}:{XR+3}], v14, s[{srdX}:{srdX+3}], s{sOFF} offen{fl(args.xfl)}")
    a(f"buffer_load_dwordx4 v[{XR+4}:{XR+7}], v14, s[{srdX}:{srdX+3}], s{sOFF} offen offset:512{fl(args.xfl)}")
    a(f"buffer_load_dwordx2 v[{XR+8}:{XR+9}], v15, s[{srdX}:{srdX+3}], s{sOFF} offen offset:1024{fl(args.xfl)}")
    for _ in range(3): vm.issue("x")
    mk_srd(srdW1,  sKARG+2,  S*F*2)
    mk_srd(srdB1,  sKARG+4,  F*2)
    mk_srd(srdW2,  sKARG+6,  F*S*2)
    mk_srd(srdDBG, sKARG+12, 256)
    mk_srd(srdWS,  sKARG+14, 268435456)
    mk_srd(srdB2,  sKARG+8,  S*2)
    mk_srd(srdOUT, sKARG+10, S*D*2)

def dma_offsets(dst, row):
    a(f"v_lshrrev_b32 v12, 3, v{vLANE}")
    a(f"v_and_b32 v13, 2, v12")
    a(f"v_mul_u32_u24 v12, {row}, v12")
    a(f"v_and_b32 v{dst+2}, 7, v{vLANE}")
    a(f"v_xor_b32 v13, v13, v{dst+2}")
    a(f"v_lshl_add_u32 v{dst}, v13, 4, v12")
    a(f"v_xor_b32 v13, 4, v13")
    a(f"v_lshl_add_u32 v{dst+1}, v13, 4, v12")
    a(f"v_add_u32 v{dst+1}, {8*row}, v{dst+1}")
    a(f"v_add_u32 v{dst+2}, {16*row}, v{dst}")
    a(f"v_add_u32 v{dst+3}, {16*row}, v{dst+1}")

def tr_addresses():
    t0, t1, t2, t3 = 112, 113, 114, 115
    fg(f"v_lshrrev_b32 v{t0}, 4, v{vLANE}")
    fg(f"v_bfe_u32 v{t1}, v{vLANE}, 2, 2")
    fg(f"v_lshl_add_u32 v{t2}, v{t0}, 3, v{t1}")
    fg(f"v_lshlrev_b32 v{t2}, 7, v{t2}")
    fg(f"v_and_b32 v{t3}, 1, v{vLANE}")
    fg(f"v_lshl_add_u32 v{t2}, v{t3}, 3, v{t2}")
    fg(f"v_add_u32 v{t2}, s{sRING}, v{t2}")
    fg(f"v_and_b32 v{t0}, 1, v{t0}")
    fg(f"v_lshlrev_b32 v{t0}, 2, v{t0}")
    fg(f"v_and_b32 v{t1}, 2, v{t1}")
    fg(f"v_or_b32 v{t0}, v{t0}, v{t1}")
    fg(f"v_bfe_u32 v{t1}, v{vLANE}, 1, 1")
    fg(f"v_xor_b32 v{t0}, v{t0}, v{t1}")
    for c in range(4):
        a(f"s_add_u32 s{sT0}, s{sWV}, {c}")
        a(f"s_and_b32 s{sT0}, s{sT0}, 3")
        a(f"s_lshl_b32 s{sT0}, s{sT0}, 1")
        fg(f"v_xor_b32 v{t1}, s{sT0}, v{t0}")
        fg(f"v_lshl_add_u32 v{vT+c}, v{t1}, 4, v{t2}")

def m0_gap():
    if a.lines[-1].startswith("s_add_u32 m0"): a("s_nop 0")

class Stager:
    def __init__(self, srd, dreg, run, base, end, kstride, nks, optional_last, flags, tag):
        self.srd, self.dreg, self.run, self.base, self.end = srd, dreg, run, base, end
        self.kstride, self.nks, self.opt, self.flags, self.tag = kstride, nks, optional_last, flags, tag
        self.nd = 0; self.nt = 0; self.uid = 0; self.started = False
    def lds(self, pos, q): return (pos % NSLOT)*4096 + q*1024
    def start(self):
        a(f"s_add_u32 m0, s{sRING}, {self.lds(0, 0)}")
        a("s_nop 0")
        self.started = True
    def piece(self, pos, q, burst):
        assert self.started
        opt = self.is_opt(pos)
        off = self.run
        if opt:
            off = sOFF
            if q == 0: a(f"s_add_u32 s{sOFF}, s{self.base}, {pos*self.kstride}")
        m0_gap()
        a(f"buffer_load_dwordx4 v{self.dreg+q}, s[{self.srd}:{self.srd+3}], s{off} offen{self.flags} lds")
        vm.issue((self.tag, pos), opt)
        npos, nq = (pos, q+1) if q < 3 else (pos+1, 0)
        last = npos >= self.nks
        if not last: a(f"s_add_u32 m0, s{sRING}, {self.lds(npos, nq)}")
        if q == 3 and not opt:
            a(f"s_add_u32 s{self.run}, s{self.run}, {self.kstride}")
            a(f"s_cmp_eq_u32 s{self.run}, s{self.end}")
            a(f"s_cselect_b32 s{self.run}, s{self.base}, s{self.run}")
        elif burst and not last:
            a("s_nop 0")
    def is_opt(self, pos): return self.opt and pos == self.nks - 1
    def dma(self):
        pos = self.nd; self.nd += 1
        body = lambda: [self.piece(pos, q, True) for q in range(4)]
        if self.is_opt(pos): guarded(f"L_{self.tag}_d{self.uid}", body); self.uid += 1
        else: body()
    def dma_bg(self, n):
        for _ in range(n):
            pos = self.nd; self.nd += 1
            assert not self.is_opt(pos)
            for q in range(4): bg.add(lambda pos=pos, q=q: self.piece(pos, q, False))
    def tr_body(self, pos):
        if vm.has((self.tag, pos)): vm.wait((self.tag, pos))
        for c in range(4):
            for t in range(2):
                r = 16*pos + 4*c + 2*t
                a(f"ds_read_b64_tr_b16 a[{r}:{r+1}], v{vT+c} offset:{(pos % NSLOT)*4096 + t*512}")
    def tr(self):
        pos = self.nt; self.nt += 1
        if self.is_opt(pos): guarded(f"L_{self.tag}_t{self.uid}", lambda: self.tr_body(pos)); self.uid += 1
        else: self.tr_body(pos)
    def tr_bg(self, n):
        for _ in range(n):
            pos = self.nt; self.nt += 1
            assert not self.is_opt(pos)
            bg.add(lambda pos=pos: self.tr_body(pos))
    def refill(self, settled=False):
        waited = settled
        lim = self.nt if settled else self.nt - 1
        while self.nd < self.nks and self.nd - NSLOT < lim:
            if self.nd >= NSLOT and not waited: a("s_waitcnt lgkmcnt(8)"); waited = True
            self.dma()
    def step(self):
        self.refill()
        if self.nt < self.nks: self.tr()
        self.refill()
    def fill(self, limit=NSLOT):
        while self.nd < min(limit, self.nks): self.dma()
    def advance_to(self, nd, nt):
        assert nd - NSLOT <= nt
        while self.nd < nd or self.nt < nt:
            if self.nd < nd and self.nd < NSLOT: self.dma()
            elif self.nd < nd and self.nd - NSLOT < self.nt - 1:
                a("s_waitcnt lgkmcnt(8)"); self.dma()
            elif self.nt < nt: self.tr()
            else:
                a("s_waitcnt lgkmcnt(0)"); self.dma()
    def request_all(self):
        while self.nd < self.nks: self.step()
    def finish(self):
        while self.nt < self.nks or self.nd < self.nks: self.step()
        a("s_waitcnt lgkmcnt(0)")

def guarded(label, fn):
    a(f"s_cmp_ge_u32 s{sWV}, 2")
    a(f"s_cbranch_scc1 {label}")
    fn()
    a(f"{label}:")

def set_rot(n, spec, dreg):
    mode, g = spec.split(":"); g = int(g)
    if mode == "none":
        a(f"s_mov_b32 s{sROT}, 0"); return
    if mode == "d": a(f"s_mov_b32 s{sT0}, s{dreg}")
    else:
        a(f"s_lshr_b32 s{sT0}, s{sB}, 5")
        if mode == "qd": a(f"s_add_u32 s{sT0}, s{sT0}, s{dreg}")
    a(f"s_and_b32 s{sT0}, s{sT0}, {g-1}")
    a(f"s_mul_i32 s{sT0}, s{sT0}, {n}")
    a(f"s_lshr_b32 s{sROT}, s{sT0}, {g.bit_length()-1}")
def set_run(run, base, end, n, stride):
    a(f"s_add_u32 s{end}, s{base}, {n*stride}")
    a(f"s_mul_i32 s{run}, s{sROT}, {stride}")
    a(f"s_add_u32 s{run}, s{run}, s{base}")
def set_w1_base():
    set_rot(16, args.rot1, sDT1)
    a(f"s_lshl_b32 s{sT0}, s{sWV}, 4")
    a(f"s_mul_i32 s{sWBASE}, s{sT0}, {W1_KS}")
    a(f"s_lshl_b32 s{sT0}, s{sFT}, 7")
    if args.wsame & 1: a(f"s_mov_b32 s{sT0}, 0")
    a(f"s_add_u32 s{sWBASE}, s{sWBASE}, s{sT0}")
    a(f"s_cmp_eq_u32 s{sROLE}, 0")
    a(f"s_cselect_b32 s{sWBASE}, {OOB}, s{sWBASE}")
    set_run(sWOFF, sWBASE, sWEND, 16, W1_KS)
def set_h_base():
    set_rot(16, args.rot1, sDT1)
    a(f"s_lshl_b32 s{sT0}, s{sDT1}, 6")
    a(f"s_lshl_b32 s{sT1}, s{sWV}, 4")
    a(f"s_add_u32 s{sT0}, s{sT0}, s{sT1}")
    a(f"s_mul_i32 s{sABASE}, s{sT0}, 5120")
    if H_OFF: a(f"s_add_u32 s{sABASE}, s{sABASE}, {H_OFF}")
    set_run(sAOFF, sABASE, sAEND, 16, 5120)
def k2_start(dst):
    a(f"s_mul_i32 s{dst}, s{sWV}, 14")
    a(f"s_cmp_eq_u32 s{sWV}, 3")
    a(f"s_cselect_b32 s{sT3}, 1, 0")
    a(f"s_sub_u32 s{dst}, s{dst}, s{sT3}")
def set_w2_base():
    set_rot(13, args.rot2, sDT)
    k2_start(sT0)
    a(f"s_mul_i32 s{sW2B}, s{sT0}, {W2_KS}")
    a(f"s_lshl_b32 s{sT0}, s{sST}, 7")
    if args.wsame & 2: a(f"s_mov_b32 s{sT0}, 0")
    a(f"s_add_u32 s{sW2B}, s{sW2B}, s{sT0}")
    set_run(sW2R, sW2B, sW2E, 13, W2_KS)
def set_g_base():
    set_rot(13, args.rot2, sDT)
    k2_start(sT0)
    a(f"s_mul_i32 s{sT1}, s{sDT}, 54")
    a(f"s_add_u32 s{sT0}, s{sT0}, s{sT1}")
    a(f"s_mul_i32 s{sABASE}, s{sT0}, 5120")
    a(f"s_add_u32 s{sABASE}, s{sABASE}, {G_OFF}")
    set_run(sAOFF, sABASE, sAEND, 13, 5120)

XR = 16
FV = 28
DV = 48
HP = 68
WA = 80
GA = 92
TV = 100
def ln_addresses():
    fg(f"v_and_b32 v{TV}, 31, v{vLANE}")
    fg(f"v_lshrrev_b32 v{TV+1}, 5, v{vLANE}")
    fg(f"v_lshlrev_b32 v{TV+1}, 1, v{TV+1}")
    a(f"s_lshl_b32 s{sT0}, s{sWV}, 2")
    a(f"s_add_u32 s{sT0}, s{sT0}, {T_OFF}")
    fg(f"v_and_b32 v{TV+2}, 7, v{TV}")
    fg(f"v_xor_b32 v{TV+2}, v{TV+2}, v{TV+1}")
    fg(f"v_lshlrev_b32 v{TV+3}, 7, v{TV}")
    a(f"v_add_u32 v{TV+3}, s{sT0}, v{TV+3}")
    a(f"v_lshrrev_b32 v{TV+7}, 1, v{TV}")
    a(f"v_lshlrev_b32 v{TV+8}, 7, v{TV+7}")
    fg(f"v_add_u32 v{TV+8}, s{sT0}, v{TV+8}")
    for k in range(4):
        base = 4096 if k >= 2 else 0
        e = 4 if (k & 1) else 0
        for o in range(2):
            fg(f"v_xor_b32 v{TV+4}, {e + o}, v{TV+2}")
            fg(f"v_lshl_add_u32 v{WA + 2*k + o}, v{TV+4}, 4, v{TV+3}")
            if base: fg(f"v_add_u32 v{WA + 2*k + o}, {base}, v{WA + 2*k + o}")
    fg(f"v_and_b32 v{TV+5}, 1, v{TV}")
    fg(f"v_lshl_add_u32 v{TV+5}, v{TV+5}, 2, v{TV+1}")
    fg(f"v_and_b32 v{TV+6}, 7, v{TV+7}")
    fg(f"v_xor_b32 v{TV+5}, v{TV+5}, v{TV+6}")
    fg(f"v_add_u32 v{TV+8}, 8192, v{TV+8}")
    fg(f"v_lshl_add_u32 v{WA+8}, v{TV+5}, 4, v{TV+8}")
    fg(f"v_xor_b32 v{TV+5}, 1, v{TV+5}")
    fg(f"v_lshl_add_u32 v{WA+9}, v{TV+5}, 4, v{TV+8}")
    for i in range(3):
        fg(f"v_add_u32 v{TV}, {256*i}, v{vTID}")
        fg(f"v_lshrrev_b32 v{TV+1}, 3, v{TV}")
        fg(f"v_xor_b32 v{TV+1}, v{TV+1}, v{TV}")
        fg(f"v_and_b32 v{TV+1}, 7, v{TV+1}")
        fg(f"v_and_b32 v{TV+2}, 0x3f8, v{TV}")
        fg(f"v_or_b32 v{TV+1}, v{TV+1}, v{TV+2}")
        fg(f"v_lshrrev_b32 v{TV+2}, 4, v{TV+1}")
        fg(f"v_mul_u32_u24 v{TV+3}, 205, v{TV+2}")
        fg(f"v_lshrrev_b32 v{TV+3}, 10, v{TV+3}")
        fg(f"v_mul_u32_u24 v{TV+3}, 315, v{TV+3}")
        fg(f"v_add_u32 v{TV+3}, v{TV+3}, v{TV+2}")
        fg(f"v_lshlrev_b32 v{TV+3}, 10, v{TV+3}")
        fg(f"v_and_b32 v{TV+1}, 15, v{TV+1}")
        fg(f"v_lshl_add_u32 v{GA+i}, v{TV+1}, 4, v{TV+3}")
    fg(f"v_lshlrev_b32 v95, 4, v{vTID}")
    fg(f"v_add_u32 v95, {T_OFF}, v95")
    a(f"s_lshr_b32 s{sT0}, s{sB}, 2")
    a(f"s_mul_i32 s{sT0}, s{sT0}, 5120")
    a(f"s_and_b32 s{sT1}, s{sB}, 3")
    a(f"s_lshl_b32 s{sT1}, s{sT1}, 8")
    a(f"s_add_u32 s{sGST}, s{sT0}, s{sT1}")
    if H_OFF: a(f"s_add_u32 s{sGST}, s{sGST}, {H_OFF}")

def reduce32(r, t):
    for dpp in ("quad_perm:[1,0,3,2]", "quad_perm:[2,3,0,1]", "row_half_mirror", "row_mirror"):
        a("s_nop 1")
        a(f"v_add_f32_dpp v{r}, v{r}, v{r} {dpp} row_mask:0xf bank_mask:0xf")
    a(f"v_mov_b32 v{t}, v{r}")
    a("s_nop 1")
    a(f"v_permlane16_swap_b32 v{r}, v{t}")
    a("s_nop 1")
    fg(f"v_add_f32 v{r}, v{r}, v{t}")

def rne_bf16(dst, src):
    a(f"v_cvt_pk_bf16_f32 v{dst}, v{src}, v{src}")
    a(f"v_and_b32 v{dst}, 0xffff0000, v{dst}")

def ln_compute():
    for m in range(10):
        fg(f"v_lshlrev_b32 v{FV+2*m}, 16, v{XR+m}")
        fg(f"v_and_b32 v{FV+2*m+1}, 0xffff0000, v{XR+m}")
    s0, s1 = TV, TV+2
    fg(f"v_pk_add_f32 {P(s0)}, {P(FV)}, {P(FV+2)}")
    fg(f"v_pk_add_f32 {P(s1)}, {P(FV+4)}, {P(FV+6)}")
    for m in range(4, 10):
        s = s0 if m % 2 == 0 else s1
        fg(f"v_pk_add_f32 {P(s)}, {P(s)}, {P(FV+2*m)}")
    fg(f"v_pk_add_f32 {P(s0)}, {P(s0)}, {P(s1)}")
    mean = TV+4
    fg(f"v_add_f32 v{mean}, v{s0}, v{s0+1}")
    reduce32(mean, TV+6)
    fg(f"v_mul_f32 v{mean}, {f32hex(1.0/640)}, v{mean}")
    fg(f"v_mov_b32 v{mean+1}, v{mean}")
    for m in range(10):
        fg(f"v_pk_add_f32 {P(DV+2*m)}, {P(FV+2*m)}, {P(mean)} neg_lo:[0,1] neg_hi:[0,1]")
    fg(f"v_pk_mul_f32 {P(s0)}, {P(DV)}, {P(DV)}")
    fg(f"v_pk_mul_f32 {P(s1)}, {P(DV+2)}, {P(DV+2)}")
    for m in range(2, 10):
        s = s0 if m % 2 == 0 else s1
        fg(f"v_pk_fma_f32 {P(s)}, {P(DV+2*m)}, {P(DV+2*m)}, {P(s)}")
    fg(f"v_pk_add_f32 {P(s0)}, {P(s0)}, {P(s1)}")
    var = TV+8
    fg(f"v_add_f32 v{var}, v{s0}, v{s0+1}")
    reduce32(var, TV+6)
    fg(f"v_mul_f32 v{var}, {f32hex(1.0/640)}, v{var}")
    rs = TV+10
    if args.exact:
        rne_bf16(var, var)
        a(f"v_add_f32 v{var}, {f32hex(1e-5)}, v{var}")
        rne_bf16(var, var)
        a(f"v_sqrt_f32 v{var}, v{var}")
        a("s_nop 0")
        rne_bf16(var, var)
        a(f"v_rcp_f32 v{rs}, v{var}")
        rne_bf16(mean, mean)
        a(f"v_mov_b32 v{mean+1}, v{mean}")
        fg(f"v_mov_b32 v{rs+1}, v{rs}")
        for m in range(10):
            fg(f"v_pk_add_f32 {P(DV+2*m)}, {P(FV+2*m)}, {P(mean)} neg_lo:[0,1] neg_hi:[0,1]")
        for m in range(10):
            fg(f"v_cvt_pk_bf16_f32 v{HP+m}, v{DV+2*m}, v{DV+2*m+1}")
        for m in range(10):
            fg(f"v_lshlrev_b32 v{DV+2*m}, 16, v{HP+m}")
            fg(f"v_and_b32 v{DV+2*m+1}, 0xffff0000, v{HP+m}")
    else:
        a(f"v_add_f32 v{var}, {f32hex(1e-5)}, v{var}")
        a(f"v_rsq_f32 v{rs}, v{var}")
        a("s_nop 0")
        fg(f"v_mov_b32 v{rs+1}, v{rs}")
    for m in range(10):
        fg(f"v_pk_mul_f32 {P(DV+2*m)}, {P(DV+2*m)}, {P(rs)}")
    for m in range(10):
        fg(f"v_cvt_pk_bf16_f32 v{HP+m}, v{DV+2*m}, v{DV+2*m+1}")
    a(f"s_mov_b32 s{sT0}, 0x05040100")
    a(f"s_mov_b32 s{sT1}, 0x07060302")
    for k in range(5):
        a(f"v_permlane32_swap_b32 v{HP+2*k}, v{HP+2*k+1}")
    a("s_nop 1")
    for k in range(5):
        a(f"v_perm_b32 v{DV+2*k}, v{HP+2*k+1}, v{HP+2*k}, s{sT0}")
        a(f"v_perm_b32 v{DV+2*k+1}, v{HP+2*k+1}, v{HP+2*k}, s{sT1}")
    for k in range(10):
        a(f"ds_write_b32 v{WA+k}, v{DV+k}")

def ln_store():
    a("s_waitcnt lgkmcnt(0)")
    a("s_barrier")
    a(f"ds_read_b128 v[{FV}:{FV+3}], v95")
    a(f"ds_read_b128 v[{FV+4}:{FV+7}], v95 offset:4096")
    a(f"s_cmp_ge_u32 s{sWV}, 2")
    a("s_cbranch_scc1 L_ln_two")
    a(f"ds_read_b128 v[{FV+8}:{FV+11}], v95 offset:8192")
    a("s_waitcnt lgkmcnt(0)")
    a(f"buffer_store_dwordx4 v[{FV+8}:{FV+11}], v{GA+2}, s[{srdWS}:{srdWS+3}], s{sGST} offen{SC}")
    vm.issue("hst3", True)
    a("L_ln_two:")
    a("s_waitcnt lgkmcnt(0)")
    a(f"buffer_store_dwordx4 v[{FV}:{FV+3}], v{GA}, s[{srdWS}:{srdWS+3}], s{sGST} offen{SC}")
    a(f"buffer_store_dwordx4 v[{FV+4}:{FV+7}], v{GA+1}, s[{srdWS}:{srdWS+3}], s{sGST} offen{SC}")
    vm.issue("hst"); vm.issue("hst")

def publish_nonce():
    a(f"s_or_b32 s{sT0}, s{sB}, s{sWV}")
    a(f"s_cmp_lg_u32 s{sT0}, 0")
    a("s_cbranch_scc1 L_no_nonce")
    a(f"s_memrealtime s[{sT0}:{sT0+1}]")
    a("s_waitcnt lgkmcnt(0)")
    a(f"s_or_b32 s{sT1}, s{sT1}, 0x40000000")
    a(f"v_mov_b32 v12, s{sT0}")
    a(f"v_mov_b32 v13, s{sT1}")
    a("v_mov_b32 v112, 0")
    a(f"buffer_store_dwordx2 v[12:13], v112, s[{srdDBG}:{srdDBG+3}], 0 offen sc1")
    a("L_no_nonce:")
    vm.issue("noncest", True)

def nonce_issue():
    a("v_mov_b32 v18, 0")
    a(f"buffer_load_dwordx2 v[16:17], v18, s[{srdDBG}:{srdDBG+3}], 0 offen sc1")
    vm.issue("nonce")

def nonce_finish(label):
    a(f"s_mov_b32 s{sSPIN}, {SPIN_MAX}")
    a(f"{label}:")
    a(f"v_readfirstlane_b32 s{sNON}, v16")
    a(f"v_readfirstlane_b32 s{sNON+1}, v17")
    a("s_nop 3")
    a(f"s_sub_u32 s{sSPIN}, s{sSPIN}, 1")
    a(f"s_cselect_b32 s{sT0}, 1, s{sNON+1}")
    a(f"s_cmp_lg_u32 s{sT0}, 0")
    a(f"s_cbranch_scc1 {label}_ok")
    a(f"buffer_load_dwordx2 v[16:17], v18, s[{srdDBG}:{srdDBG+3}], 0 offen sc1")
    a("s_waitcnt vmcnt(0)")
    a(f"s_branch {label}")
    a(f"{label}_ok:")

def store_flag(label, off_sreg):
    a(f"s_cmp_lg_u32 s{sWV}, 0")
    a(f"s_cbranch_scc1 {label}")
    a(f"v_mov_b32 v16, s{sNON}")
    a(f"v_mov_b32 v17, s{sNON+1}")
    a("v_mov_b32 v18, 0")
    a(f"s_mov_b64 s[{sEXEC}:{sEXEC+1}], exec")
    a("s_mov_b64 exec, 1")
    a(f"buffer_store_dwordx2 v[16:17], v18, s[{srdWS}:{srdWS+3}], s{off_sreg} offen sc1")
    a(f"s_mov_b64 exec, s[{sEXEC}:{sEXEC+1}]")
    a("s_nop 1")
    a(f"{label}:")
    vm.issue("flag", True)

vPOLL = 120
def poll_issue(off_sreg):
    a(f"buffer_load_dwordx2 v[{vPOLL}:{vPOLL+1}], v{vPOLL+2}, s[{srdWS}:{srdWS+3}], s{off_sreg} offen sc1")
    vm.issue("poll")
def poll_check(label, off_sreg):
    vm.wait("poll")
    a(f"s_mov_b32 s{sSPIN}, {SPIN_MAX}")
    a(f"{label}:")
    a(f"v_cmp_ne_u32 vcc, s{sNON}, v{vPOLL}")
    a(f"v_cmp_ne_u32 s[{sT0}:{sT0+1}], s{sNON+1}, v{vPOLL+1}")
    a("s_nop 3")
    a(f"s_or_b64 vcc, vcc, s[{sT0}:{sT0+1}]")
    a(f"s_cbranch_vccz {label}_ok")
    if args.sleep: a(f"s_sleep {args.sleep}")
    a(f"buffer_load_dwordx2 v[{vPOLL}:{vPOLL+1}], v{vPOLL+2}, s[{srdWS}:{srdWS+3}], s{off_sreg} offen sc1")
    a("s_waitcnt vmcnt(0)")
    a(f"s_sub_u32 s{sSPIN}, s{sSPIN}, 1")
    a(f"s_cbranch_scc0 {label}")
    a(f"{label}_ok:")

def a_load(slot, mi, ks, fixed=False):
    r = abuf(slot, mi)
    off = sAOFF
    if fixed:
        off = sOFF
        if mi == 0: a(f"s_add_u32 s{sOFF}, s{sABASE}, {ks*5120}")
    if mi < 4:
        a(f"buffer_load_dwordx4 v[{r}:{r+3}], v{vA}, s[{srdWS}:{srdWS+3}], s{off} offen offset:{mi*1024}{fl(args.asc)}")
    else:
        a(f"buffer_load_dwordx4 v[{r}:{r+3}], v{vA2}, s[{srdWS}:{srdWS+3}], s{off} offen{fl(args.asc)}")
        if not fixed:
            a(f"s_add_u32 s{sAOFF}, s{sAOFF}, {args.astride}")
            a(f"s_cmp_eq_u32 s{sAOFF}, s{sAEND}")
            a(f"s_cselect_b32 s{sAOFF}, s{sABASE}, s{sAOFF}")
    vm.issue(("A", ks), fixed)

def mfma(first, ks, slot, c, mi, gemm):
    if args.nomfma and not first: return
    d = acc(c, mi); wr = 16*ks + 4*c; ar = abuf(slot, mi)
    cin = "0" if first else f"v[{d}:{d+3}]"
    if gemm == 1: a(f"v_mfma_f32_16x16x32_bf16 v[{d}:{d+3}], a[{wr}:{wr+3}], v[{ar}:{ar+3}], {cin}")
    else:         a(f"v_mfma_f32_16x16x32_bf16 v[{d}:{d+3}], v[{ar}:{ar+3}], a[{wr}:{wr+3}], {cin}")

def main_prefill(gemm, nks, optional_last):
    for ks in range(min(NA, nks)):
        for mi in range(5): a_load(ks % NA, mi, ks, optional_last and ks == nks - 1)

def main_loop(gemm, nks, optional_last, W, tail=None):
    depth = min(NA, nks)
    nreal = nks - 1 if optional_last else nks
    def loads(ks):
        for mi in range(5): a_load(ks % NA, mi, ks, optional_last and ks == nks - 1)
    while W.nt < 2: W.tr()
    pending_tr = True
    for ks in range(nks):
        opt = optional_last and ks == nks - 1
        def body():
            nonlocal pending_tr
            vm.wait(("A", ks))
            if pending_tr: a("s_waitcnt lgkmcnt(0)"); pending_tr = False
            if args.mstamps and ks in (0, 4, 8, 12): stamp(f"g{gemm} step {ks} data")
            settled = W.nt
            pieces = []
            if W.nd < W.nks and W.nd - NSLOT < settled and not W.is_opt(W.nd):
                pos = W.nd; W.nd += 1
                pieces = [lambda q=q, pos=pos: W.piece(pos, q, False) for q in range(4)]
            nxt = ks + depth
            for mi in range(5):
                for c in range(4):
                    mfma(ks == 0, ks, ks % NA, c, mi, gemm)
                    if nxt < nreal: bg.tick()
                    if c == 1 and pieces: pieces.pop(0)()
                if mi == 0 and W.nt <= ks + 1 and W.nt < W.nks and not W.is_opt(W.nt):
                    W.tr(); pending_tr = True
                if nxt < nreal: a_load(nxt % NA, mi, nxt)
                elif tail is not None: tail()
        if opt: guarded(f"L_g{gemm}_mm", body)
        else: body()
        nxt = ks + depth
        if optional_last and nxt == nks - 1:
            guarded(f"L_g{gemm}_ld", lambda: loads(nxt))
        if W.nd < W.nks and W.is_opt(W.nd) and W.nd - NSLOT < W.nt - 1:
            a("s_waitcnt lgkmcnt(0)"); W.dma()
        if W.nt < W.nks and W.is_opt(W.nt) and W.nt <= ks + 1 and W.nd > W.nt:
            W.tr(); pending_tr = True
        if nxt == nreal - 1: bg.flush()
    assert W.nd == W.nks and W.nt == W.nks

RT = 16
PK = 80
def epilogue_addresses():
    for c in range(1, 4):
        a(f"s_add_u32 s{sT0}, s{sWV}, {c}")
        a(f"s_and_b32 s{sT0}, s{sT0}, 3")
        a(f"s_mul_i32 s{sT1}, s{sT0}, {RING}")
        a(f"s_add_u32 s{sT1}, s{sT1}, {6*4096}")
        a(f"v_add_u32 v{vRW+c-1}, s{sT1}, v{vA}")
        if c == 3:
            a(f"s_mul_i32 s{sT1}, s{sT0}, 3072")
            a(f"s_add_u32 s{sT1}, s{sT1}, {T_OFF}")
            a(f"v_add_u32 v{vRW+3}, s{sT1}, v{vA}")
    a(f"s_add_u32 s{sT1}, s{sRING}, {6*4096}")
    a(f"v_add_u32 v{vRR}, s{sT1}, v{vA}")
    a(f"s_mul_i32 s{sT1}, s{sWV}, 3072")
    a(f"s_add_u32 s{sT1}, s{sT1}, {T_OFF}")
    a(f"v_add_u32 v{vRR+1}, s{sT1}, v{vA}")
    a(f"v_lshrrev_b32 v12, 4, v{vLANE}")
    a("v_and_b32 v13, 1, v12")
    a(f"v_lshlrev_b32 v{vGO}, 10, v13")
    a(f"v_lshlrev_b32 v{vOO}, 5, v13")
    a("v_lshrrev_b32 v12, 1, v12")
    a(f"v_lshl_add_u32 v{vGL}, v12, 8, 0")
    a(f"v_lshlrev_b32 v{vOL}, 4, v12")
    a(f"v_and_b32 v12, 15, v{vLANE}")
    a(f"v_lshl_add_u32 v{vGL}, v12, 4, v{vGL}")
    a(f"v_add_u32 v{vGO}, v{vGO}, v{vGL}")
    a("v_mul_u32_u24 v12, 1280, v12")
    a(f"v_add_u32 v{vOL}, v{vOL}, v12")
    a(f"v_add_u32 v{vOO}, v{vOO}, v{vOL}")
    a(f"s_mul_i32 s{sT0}, s{sDT1}, 54")
    a(f"s_lshl_b32 s{sT1}, s{sFT}, 1")
    a(f"s_add_u32 s{sT0}, s{sT0}, s{sT1}")
    a(f"s_lshr_b32 s{sT1}, s{sWV}, 1")
    a(f"s_add_u32 s{sT0}, s{sT0}, s{sT1}")
    a(f"s_mul_i32 s{sT0}, s{sT0}, 5120")
    a(f"s_and_b32 s{sT1}, s{sWV}, 1")
    a(f"s_lshl_b32 s{sT1}, s{sT1}, 9")
    a(f"s_add_u32 s{sT0}, s{sT0}, s{sT1}")
    a(f"s_add_u32 s{sGST}, s{sT0}, {G_OFF}")
    a(f"s_lshl_b32 s{sT0}, s{sST}, 2")
    a(f"s_add_u32 s{sT0}, s{sT0}, s{sWV}")
    a(f"s_mul_i32 s{sT0}, s{sT0}, {16*1280}")
    a(f"s_mul_i32 s{sT1}, s{sDT}, 160")
    a(f"s_add_u32 s{sOST}, s{sT0}, s{sT1}")
    c1 = -2.0 * 0.7978845608028654 * 1.4426950408889634
    a(f"v_mov_b32 v{vC}, {f32hex(c1)}"); a(f"v_mov_b32 v{vC+1}, {f32hex(c1)}")
    a(f"v_mov_b32 v{vC+2}, {f32hex(c1*0.044715)}"); a(f"v_mov_b32 v{vC+3}, {f32hex(c1*0.044715)}")
    a(f"v_mov_b32 v{vC+4}, 1.0"); a(f"v_mov_b32 v{vC+5}, 1.0")
    dma_offsets(vD2, W2_ROW)
    set_w2_base()
    a(f"s_lshl_b32 s{sT0}, s{sST}, 7")
    a(f"s_lshl_b32 s{sT1}, s{sWV}, 5")
    a(f"s_add_u32 s{sT0}, s{sT0}, s{sT1}")
    a(f"v_and_b32 v12, 15, v{vLANE}")
    a("v_lshlrev_b32 v12, 1, v12")
    a(f"buffer_load_ushort v{vB2}, v12, s[{srdB2}:{srdB2+3}], s{sT0} offen")
    vm.issue("b2")

def reduce_write():
    a("s_nop 6")
    a("s_barrier")
    for c in range(1, 4):
        for mi in range(5):
            blk = (c-1)*5 + mi
            r = acc(c, mi)
            if blk < 12: a(f"ds_write_b128 v{vRW+c-1}, v[{r}:{r+3}] offset:{blk*1024}")
            else:        a(f"ds_write_b128 v{vRW+3}, v[{r}:{r+3}] offset:{(blk-12)*1024}")
            bg.tick(3)
    a("s_waitcnt lgkmcnt(0)")
    a("s_barrier")
    for mi in range(5):
        for c in range(1, 4):
            blk = (c-1)*5 + mi
            r = RT + 4*blk
            if blk < 12: a(f"ds_read_b128 v[{r}:{r+3}], v{vRR} offset:{blk*1024}")
            else:        a(f"ds_read_b128 v[{r}:{r+3}], v{vRR+1} offset:{(blk-12)*1024}")

def reduce_sum(mi, counted=True):
    if counted: a(f"s_waitcnt lgkmcnt({12 - 3*mi})")
    for c in range(1, 4):
        for h in range(2):
            d = acc(0, mi) + 2*h; s = RT + 4*((c-1)*5 + mi) + 2*h
            fg(f"v_pk_add_f32 {P(d)}, {P(d)}, {P(s)}")

def pack_swap():
    for mi in range(5):
        d = acc(0, mi); r = PK + 2*mi
        a(f"v_cvt_pk_bf16_f32 v{r}, v{d}, v{d+1}")
        a(f"v_cvt_pk_bf16_f32 v{r+1}, v{d+2}, v{d+3}")
    a(f"v_mov_b32 v{PK+10}, v{PK+8}")
    a(f"v_mov_b32 v{PK+11}, v{PK+9}")
    a("s_nop 1")
    for p in range(3):
        b = PK + 4*p
        a(f"v_permlane16_swap_b32 v{b}, v{b+2}")
        a(f"v_permlane16_swap_b32 v{b+1}, v{b+3}")

def epilogue1(after_reduce):
    reduce_write()
    a(f"v_lshlrev_b32 v96, 16, v{vB1}");   a(f"v_and_b32 v97, 0xffff0000, v{vB1}")
    a(f"v_lshlrev_b32 v98, 16, v{vB1+1}"); a(f"v_and_b32 v99, 0xffff0000, v{vB1+1}")
    T = 100
    for mi in range(5):
        d = acc(0, mi)
        reduce_sum(mi)
        if mi == 4: after_reduce()
        for h in range(2):
            fg(f"v_pk_add_f32 {P(d+2*h)}, {P(d+2*h)}, {P(96+2*h)}")
        t = T + 4*(mi % 2)
        for h in range(2):
            u = d + 2*h
            fg(f"v_pk_mul_f32 {P(t+2*h)}, {P(u)}, {P(u)}")
        for h in range(2):
            fg(f"v_pk_fma_f32 {P(t+2*h)}, {P(t+2*h)}, {P(vC+2)}, {P(vC)}")
        for h in range(2):
            u = d + 2*h
            fg(f"v_pk_mul_f32 {P(t+2*h)}, {P(t+2*h)}, {P(u)}")
        for k in range(4): a(f"v_exp_f32 v{t+k}, v{t+k}")
        bg.tick(8)
        for h in range(2): a(f"v_pk_add_f32 {P(t+2*h)}, {P(t+2*h)}, {P(vC+4)}")
        for k in range(4): a(f"v_rcp_f32 v{t+k}, v{t+k}")
        a("s_nop 0")
        bg.tick(10)
        for h in range(2): fg(f"v_pk_mul_f32 {P(d+2*h)}, {P(d+2*h)}, {P(t+2*h)}")
        r = PK + 2*mi
        a(f"v_cvt_pk_bf16_f32 v{r}, v{d}, v{d+1}")
        a(f"v_cvt_pk_bf16_f32 v{r+1}, v{d+2}, v{d+3}")
        if mi in (1, 3):
            p = mi // 2; b = PK + 4*p
            a("s_nop 1")
            a(f"v_permlane16_swap_b32 v{b}, v{b+2}")
            a(f"v_permlane16_swap_b32 v{b+1}, v{b+3}")
            if not args.bglate:
                a(f"buffer_store_dwordx4 v[{b}:{b+3}], v{vGO}, s[{srdWS}:{srdWS+3}], s{sGST} offen offset:{2048*p}{SC}")
                vm.issue("gst")
    bg.flush()
    a(f"v_mov_b32 v{PK+10}, v{PK+8}")
    a(f"v_mov_b32 v{PK+11}, v{PK+9}")
    a(f"s_add_u32 s{sT1}, s{sGST}, 4096")
    a("s_nop 0")
    a(f"v_permlane16_swap_b32 v{PK+8}, v{PK+10}")
    a(f"v_permlane16_swap_b32 v{PK+9}, v{PK+11}")
    if args.bglate:
        for p in range(2):
            b = PK + 4*p
            a(f"buffer_store_dwordx4 v[{b}:{b+3}], v{vGO}, s[{srdWS}:{srdWS+3}], s{sGST} offen offset:{2048*p}{SC}")
            vm.issue("gst")
    a(f"buffer_store_dwordx4 v[{PK+8}:{PK+11}], v{vGL}, s[{srdWS}:{srdWS+3}], s{sT1} offen{SC}")
    vm.issue("gst")

def epilogue2():
    reduce_write()
    a(f"v_lshlrev_b32 v96, 16, v{vB2}")
    a("v_mov_b32 v97, v96")
    o = fl(args.ofl)
    for mi in range(5):
        d = acc(0, mi)
        reduce_sum(mi)
        for h in range(2):
            a(f"v_pk_add_f32 {P(d+2*h)}, {P(d+2*h)}, {P(96)}")
        r = PK + 2*mi
        a(f"v_cvt_pk_bf16_f32 v{r}, v{d}, v{d+1}")
        a(f"v_cvt_pk_bf16_f32 v{r+1}, v{d+2}, v{d+3}")
        if mi in (1, 3):
            p = mi // 2; b = PK + 4*p
            a("s_nop 1")
            a(f"v_permlane16_swap_b32 v{b}, v{b+2}")
            a(f"v_permlane16_swap_b32 v{b+1}, v{b+3}")
            a(f"buffer_store_dwordx4 v[{b}:{b+3}], v{vOO}, s[{srdOUT}:{srdOUT+3}], s{sOST} offen offset:{64*p}{o}")
    a(f"v_mov_b32 v{PK+10}, v{PK+8}")
    a(f"v_mov_b32 v{PK+11}, v{PK+9}")
    a("s_nop 1")
    a(f"v_permlane16_swap_b32 v{PK+8}, v{PK+10}")
    a(f"v_permlane16_swap_b32 v{PK+9}, v{PK+11}")
    a(f"buffer_store_dwordx4 v[{PK+8}:{PK+11}], v{vOL}, s[{srdOUT}:{srdOUT+3}], s{sOST} offen offset:128{o}")

pair = lambda s: tuple(int(x) for x in s.split(":"))
file_begin(a, [(MAIN, 256, 256, LDS_BYTES)])
prologue(MAIN, "L_end")
stamp("kernarg")
set_w1_base()
W1 = Stager(srdW1, vD, sWOFF, sWBASE, sWEND, W1_KS, 16, False, fl(args.w1fl), "w1")
W1.start()
publish_nonce()
if args.pf1:
    set_rot(16, args.pf1rot, sDT1)
    a(f"s_mul_i32 s{sT2}, s{sROT}, {W1_KS}")
    a(f"s_add_u32 s{sW2E}, s{sT2}, s{sWBASE}")
    def pf_piece(i, q):
        a(f"buffer_load_dwordx4 v[{128+4*((4*i+q)%8)}:{131+4*((4*i+q)%8)}], v{vD+q}, s[{srdW1}:{srdW1+3}], s{sW2E} offen{fl(args.w1fl)}")
        vm.issue("pf1")
        if q == 3:
            a(f"s_add_u32 s{sW2E}, s{sW2E}, {W1_KS}")
            a(f"s_cmp_eq_u32 s{sW2E}, s{sWEND}")
            a(f"s_cselect_b32 s{sW2E}, s{sWBASE}, s{sW2E}")
    for i in range(args.pf1):
        for q in range(4): bg.add(lambda i=i, q=q: pf_piece(i, q))
if args.npre: W1.dma_bg(args.npre)
bg.every = 6
ln_addresses()
tr_addresses()
bg.flush()
vm.wait("x")
stamp("x landed")
if args.nln: W1.dma_bg(args.nln)
bg.every = args.lnevery; bg.cnt = 0
ln_compute()
bg.flush()
ln_store()
nonce_issue()
stamp("h stores issued")
W1.fill(W1.nd + args.npost)
a(f"s_lshl_b32 s{sT0}, s{sFT}, 7")
a(f"s_lshl_b32 s{sT1}, s{sWV}, 5")
a(f"s_add_u32 s{sT0}, s{sT0}, s{sT1}")
a(f"v_lshrrev_b32 v12, 4, v{vLANE}")
a("v_lshlrev_b32 v12, 3, v12")
a(f"buffer_load_dwordx2 v[{vB1}:{vB1+1}], v12, s[{srdB1}:{srdB1+3}], s{sT0} offen")
vm.issue("b1")
vm.wait("nonce")
nonce_finish("L_nonce")
a("s_barrier")
a(f"s_lshl_b32 s{sT2}, s{sB}, 6")
a(f"s_add_u32 s{sT2}, s{sT2}, {FL_LN}")
store_flag("L_flag_ln", sT2)
stamp("LN flag stored")
a(f"s_cmp_eq_u32 s{sROLE}, 0")
a("s_cbranch_scc1 L_idle")
i_branch = nstamp[0]
set_h_base()
a(f"s_lshl_b32 s{sT2}, s{sWV}, 12")
a(f"s_add_u32 s{sGST}, s{sT2}, {FL_LN}")
a(f"v_lshlrev_b32 v{vPOLL+2}, 6, v{vLANE}")
W1.advance_to(*pair(args.pre1))
poll_issue(sGST)
W1.advance_to(*pair(args.pre1b))
stamp("poll check")
poll_check("L_poll_ln", sGST)
stamp("LN flags seen")
main_prefill(1, 16, False)
W2 = Stager(srdW2, vD2, sW2R, sW2B, sW2E, W2_KS, 14, True, fl(args.w2fl), "w2")
queue_lines(epilogue_addresses)
bg.every = args.addrevery; bg.cnt = 0
tailq = []
def tail():
    assert W1.nd == W1.nks
    if not W2.started: W2.start()
    if tailq: tailq.pop(0)()
ntail = 5 if args.tailpieces else 0
for pos in range(ntail):
    for q in range(4): tailq.append(lambda pos=pos, q=q: W2.piece(pos, q, False))
W2.nd = ntail
main_loop(1, 16, False, W1, tail if ntail else None)
assert not tailq
if not W2.started: W2.start()
stamp("main1 done")
W2.dma_bg(args.n2pre - W2.nd)
bg.every = args.epevery; bg.cnt = 0
def after_reduce():
    W2.dma_bg(args.ep3)
    W2.tr_bg(args.eptr)
epilogue1(after_reduce)
stamp("G stores issued")
a("s_waitcnt lgkmcnt(0)")
def g_poll_setup():
    set_g_base()
    a(f"s_mul_i32 s{sT2}, s{sWV}, 7")
    a(f"s_cmp_eq_u32 s{sWV}, 3")
    a(f"s_cselect_b32 s{sT3}, 1, 0")
    a(f"s_sub_u32 s{sT2}, s{sT2}, s{sT3}")
    a(f"s_lshl_b32 s{sT3}, s{sDT}, 5")
    a(f"s_add_u32 s{sT2}, s{sT2}, s{sT3}")
    a(f"s_lshl_b32 s{sT2}, s{sT2}, 6")
    a(f"s_add_u32 s{sGST}, s{sT2}, {FL_G}")
    a(f"v_min_u32 v{vPOLL+2}, 6, v{vLANE}")
    a(f"v_lshlrev_b32 v{vPOLL+2}, 6, v{vPOLL+2}")
g_poll_setup()
if args.pre2:
    W2.advance_to(*pair(args.pre2))
else:
    assert W2.nd + args.n2fill - NSLOT <= W2.nt
    W2.fill(W2.nd + args.n2fill)
    for _ in range(args.k2pre): W2.tr()
vm.wait("gst")
a("s_barrier")
a(f"s_lshl_b32 s{sT2}, s{sDT1}, 5")
a(f"s_add_u32 s{sT2}, s{sT2}, s{sFT}")
a(f"s_lshl_b32 s{sT2}, s{sT2}, 6")
a(f"s_add_u32 s{sT2}, s{sT2}, {FL_G}")
store_flag("L_flag_g", sT2)
stamp("G flag stored")
j_nd, j_nt = pair(args.join2)
poll_issue(sGST)
W2.advance_to(j_nd, j_nt)
stamp("w2 staged")
vm_join = list(vm.ops)
i_join = nstamp[0]
a("s_branch L_gemm2")
a("L_idle:")
nstamp[0] = i_branch
a("s_waitcnt vmcnt(0)")
vm.drained()
epilogue_addresses()
if args.pfmode != "none":
    a(f"s_lshl_b32 s{sT2}, s{sWV}, 12")
    a(f"s_add_u32 s{sGST}, s{sT2}, {FL_LN}")
    a(f"v_lshlrev_b32 v{vPOLL+2}, 6, v{vLANE}")
    if args.pfwait:
        poll_issue(sGST)
        poll_check("L_poll_idle", sGST)
    a(f"s_and_b32 s{sT0}, s{sB}, 7")
    a(f"s_and_b32 s{sT1}, s{sB}, 1")
    a(f"s_add_u32 s{sT1}, s{sT1}, 8")
    a(f"s_lshr_b32 s{sT2}, s{sB}, 5")
    a(f"s_cmp_eq_u32 s{sT2}, 7")
    a(f"s_cselect_b32 s{sT0}, s{sT0}, s{sT1}")
    a(f"s_lshl_b32 s{sT0}, s{sT0}, 2")
    a(f"s_bfe_u32 s{sT1}, s{sB}, 0x20003")
    a(f"s_add_u32 s{sT0}, s{sT0}, s{sT1}")
    a(f"s_lshl_b32 s{sT0}, s{sT0}, 2")
    a(f"s_add_u32 s{sT0}, s{sT0}, s{sWV}")
    a(f"s_mul_i32 s{sT0}, s{sT0}, {44*1024}")
    a(f"s_mov_b32 s{sT1}, 44")
    a("L_pf_loop:")
    a(f"buffer_load_dwordx4 v[20:23], v{vA}, s[{srdW2}:{srdW2+3}], s{sT0} offen")
    a(f"s_add_u32 s{sT0}, s{sT0}, 1024")
    a(f"s_sub_u32 s{sT1}, s{sT1}, 1")
    a(f"s_cmp_lg_u32 s{sT1}, 0")
    a("s_cbranch_scc1 L_pf_loop")
    a("s_waitcnt vmcnt(0)")
vm.drained()
stamp("idle: prefetch done")
W2i = Stager(srdW2, vD2, sW2R, sW2B, sW2E, W2_KS, 14, True, fl(args.w2fl), "w2i")
W2i.start()
W2i.advance_to(j_nd, j_nt)
assert (W2i.nd, W2i.nt) == (W2.nd, W2.nt), ((W2i.nd, W2i.nt), (W2.nd, W2.nt))
g_poll_setup()
poll_issue(sGST)
a("s_waitcnt vmcnt(0)")
while nstamp[0] < i_join and args.stamps: stamp("idle")
if args.probe in ("poll_check", "LN_flags_seen", "main1_done", "G_stores_issued", "G_flag_stored", "w2_staged"):
    a("s_mov_b32 s89, s90")
a("L_gemm2:")
vm.ops = vm_join
poll_check("L_poll_g", sGST)
stamp("G flags seen")
bg.every = 0
main_prefill(2, 14, True)
main_loop(2, 14, True, W2)
stamp("main2 done")
epilogue2()
stamp("end")
write_stamps("L_st", STAMP)
if args.light:
    a("s_waitcnt vmcnt(0)")
    a("s_memrealtime s[92:93]")
    a("s_waitcnt lgkmcnt(0)")
    a(f"s_lshl_b32 s{sT0}, s{sB}, 2")
    a(f"s_add_u32 s{sT0}, s{sT0}, s{sWV}")
    a(f"s_lshl_b32 s{sT0}, s{sT0}, 3")
    a(f"s_add_u32 s{sT0}, s{sT0}, {STAMP}")
    a("v_mov_b32 v16, s90"); a("v_mov_b32 v17, s92"); a("v_mov_b32 v12, 0")
    a("s_mov_b64 exec, 1")
    a(f"buffer_store_dwordx2 v[16:17], v12, s[{srdWS}:{srdWS+3}], s{sT0} offen")
if args.probe:
    a("s_waitcnt vmcnt(0)")
    a("s_sub_u32 s89, s89, s90")
    a("s_lshl_b32 s89, s89, 2")
    a("s_add_u32 s89, s89, 3000")
    a("L_probe:")
    a("s_memrealtime s[86:87]")
    a("s_waitcnt lgkmcnt(0)")
    a("s_sub_u32 s86, s86, s90")
    a("s_cmp_lt_u32 s86, s89")
    a("s_cbranch_scc1 L_probe")
if args.padto:
    a("s_waitcnt vmcnt(0)")
    a("L_pad:")
    a("s_memrealtime s[88:89]")
    a("s_waitcnt lgkmcnt(0)")
    a("s_sub_u32 s88, s88, s90")
    a(f"s_cmp_lt_u32 s88, {args.padto}")
    a("s_cbranch_scc1 L_pad")
a("L_end:")
a("s_endpgm")
a("L_code_end:")
kernel_desc(a, MAIN, 512, 102, 256)
print(a.text())
```

```python
import sys, argparse, struct
sys.path.insert(0, "tools")
from asmlib import *

ap = argparse.ArgumentParser()
ap.add_argument("--stamps", type=int, default=0)
ap.add_argument("--mstamps", type=int, default=0)
ap.add_argument("--cyc", type=int, default=0)
ap.add_argument("--light", type=int, default=0)
ap.add_argument("--padto", type=int, default=0)
ap.add_argument("--probe", default="")
ap.add_argument("--exact", type=int, default=1)
ap.add_argument("--na", type=int, default=4)
ap.add_argument("--pfwait", type=int, default=1)
ap.add_argument("--npre", type=int, default=0)
ap.add_argument("--nln", type=int, default=0)
ap.add_argument("--w2pf", type=int, default=1)
ap.add_argument("--lnevery", type=int, default=10)
ap.add_argument("--kpre", type=int, default=3)
ap.add_argument("--n2pre", type=int, default=6)
ap.add_argument("--epevery", type=int, default=12)
ap.add_argument("--pf1", type=int, default=0)
ap.add_argument("--pf1rot", default="qd:8")
ap.add_argument("--npost", type=int, default=2)
ap.add_argument("--pre1", default="11:2")
ap.add_argument("--pre1b", default="12:3")
ap.add_argument("--join2", default="14:5")
ap.add_argument("--pfmode", default="mall")
ap.add_argument("--pollat", type=int, default=13)
ap.add_argument("--pollat2", type=int, default=12)
ap.add_argument("--eptr", type=int, default=3)
ap.add_argument("--tailpieces", type=int, default=1)
ap.add_argument("--ep3", type=int, default=3)
ap.add_argument("--lntr", type=int, default=2)
ap.add_argument("--addrevery", type=int, default=3)
ap.add_argument("--n2fill", type=int, default=2)
ap.add_argument("--k2pre", type=int, default=2)
ap.add_argument("--sleep", type=int, default=1)
ap.add_argument("--rot1", default="qd:8")
ap.add_argument("--rot2", default="none:2")
ap.add_argument("--xfl", default="none")
ap.add_argument("--w1fl", default="none")
ap.add_argument("--w2fl", default="none")
ap.add_argument("--ofl", default="none")
ap.add_argument("--pre2", default="")
ap.add_argument("--bglate", type=int, default=0)
ap.add_argument("--wsame", type=int, default=0)
ap.add_argument("--nomfma", type=int, default=0)
ap.add_argument("--stswap", type=int, default=3)
ap.add_argument("--map1", default="2d")
ap.add_argument("--astride", type=int, default=5120)
ap.add_argument("--asc", default="sc1")
ap.add_argument("--touch", type=int, default=0)
args = ap.parse_args()

def fl(s): return "" if s == "none" else " " + s.replace("+", " ")
def f32hex(x): return "0x%08x" % struct.unpack("<I", struct.pack("<f", x))[0]

S, D, F = 2048, 640, 1728
H_OFF   = 0
G_OFF   = 0x280000
FL_LN   = 0x500000
FL_G    = 0x508000
STAMP   = 0x8000000
W1_ROW, W2_ROW = 3456, 4096
W1_KS, W2_KS = 32 * W1_ROW, 32 * W2_ROW
RING = 36864
NSLOT = 9
T_OFF = 147456
LDS_BYTES = 163840
SPIN_MAX = 200000
SC = " sc1"
OOB = 0x10000000

sB, sWV = 2, 3
sDT, sFT, sST, sROLE = 4, 5, 6, 7
srdX, srdW1, srdW2, srdB1, srdB2, srdOUT, srdDBG, srdWS = 8, 12, 16, 20, 24, 28, 32, 36
sNON = 40
sT0, sT1, sT2, sT3 = 42, 43, 44, 45
sRING, sOFF = 46, 47
sKARG = 48
sSTAMP = 64
sDT1 = 94
sW2B, sW2R = 95, 99
sWOFF, sAOFF, sSPIN = 96, 97, 98
sEXEC = 100
sWBASE, sWEND, sABASE, sAEND, sROT, sW2E, sGST, sOST = 48, 49, 50, 51, 52, 53, 54, 55
sKX = 56

vTID, vLANE, vA, vA2 = 0, 1, 2, 3
vD, vT = 4, 8
vB1 = 14
ABUF, NA = 16, args.na
assert NA <= 5
vD2 = 128
vB2 = 132
vGO, vGL = 133, 134
vOO, vOL = 135, 136
vRW = 137
vRR = 141
vC = 144
ACC = 176
def acc(c, mi): return ACC + (c * 5 + mi) * 4
def abuf(slot, mi): return ABUF + slot * 20 + mi * 4
P = lambda r: f"v[{r}:{r+1}]"

a = Asm()

class VM:
    def __init__(self): self.ops = []
    def issue(self, tag, optional=False): self.ops.append((tag, optional))
    def has(self, tag): return any(t == tag for t, o in self.ops)
    def wait(self, tag):
        idx = max(i for i, (t, o) in enumerate(self.ops) if t == tag)
        n = sum(1 for t, o in self.ops[idx+1:] if not o)
        assert n <= 63, (tag, n)
        a(f"s_waitcnt vmcnt({n})")
        self.ops = self.ops[idx+1:]
    def drained(self): self.ops = []
vm = VM()

class BG:
    def __init__(self): self.q = []; self.cnt = 0; self.every = 0
    def add(self, fn): self.q.append(fn)
    def step(self):
        if self.q: self.q.pop(0)()
    def flush(self):
        while self.q: self.step()
    def tick(self, n=1):
        self.cnt += n
        while self.every and self.cnt >= self.every and self.q:
            self.cnt -= self.every; self.step()
bg = BG()
def fg(s):
    a(s); bg.tick()
def queue_lines(fn):
    save = a.lines; a.lines = []
    ops_before = len(vm.ops)
    fn()
    lines = a.lines; a.lines = save
    vmops = vm.ops[ops_before:]; del vm.ops[ops_before:]
    groups = []
    for l in lines:
        op = l.split()[0] if l.split() else ""
        if groups and op in ("s_cselect_b32", "s_addc_u32", "s_cbranch_scc0", "s_cbranch_scc1"): groups[-1].append(l)
        else: groups.append([l])
    def emit(g):
        for l in g:
            a(l)
            if l.startswith("buffer_"): vm.issue(*vmops.pop(0))
    for g in groups: bg.add(lambda g=g: emit(g))

nstamp = [0]
NSTAMPS = 28
stamp_names = {}
def stamp(name):
    if args.light:
        if name == "start": a("s_memrealtime s[90:91]")
        return
    if args.probe:
        if name == "start":
            a("s_memrealtime s[90:91]")
        elif name == args.probe.replace("_", " "):
            a("s_memrealtime s[92:93]"); a("s_waitcnt lgkmcnt(0)"); a("s_mov_b32 s89, s92")
        return
    if not args.stamps: return
    i = nstamp[0]; nstamp[0] += 1
    assert i < NSTAMPS
    stamp_names.setdefault(i, name)
    a(("s_memtime" if args.cyc else "s_memrealtime") + " s[92:93]")
    a("s_waitcnt lgkmcnt(0)")
    a(f"s_mov_b32 s{sSTAMP+i}, s92")

def write_stamps(label, base):
    if not args.stamps: return
    a(f"s_cmp_lg_u32 s{sWV}, {args.stamps - 1}")
    a(f"s_cbranch_scc1 {label}_nostamp")
    a(f"s_mul_i32 s{sT0}, s{sB}, 128")
    a(f"s_add_u32 s{sT0}, s{sT0}, {base}")
    a("v_mov_b32 v12, 0")
    a("s_mov_b64 exec, 1")
    for i in range(0, NSTAMPS, 4):
        for k in range(4):
            if i + k < nstamp[0]: a(f"v_mov_b32 v{16+k}, s{sSTAMP + i + k}")
            else:                 a(f"v_mov_b32 v{16+k}, 0")
        a(f"buffer_store_dwordx4 v[16:19], v12, s[{srdWS}:{srdWS+3}], s{sT0} offen offset:{i*4}")
        a("s_nop 2")
    a(f"{label}_nostamp:")
    for i in sorted(stamp_names): a(f"; STAMPNAME {i} {stamp_names[i]}")

def mk_srd(d, p, nbytes):
    a(f"s_mov_b32 s{d}, s{p}")
    a(f"s_and_b32 s{d+1}, s{p+1}, 0xffff")
    a(f"s_mov_b32 s{d+2}, {nbytes}")
    a(f"s_mov_b32 s{d+3}, 0x00020000")

def prologue(name, endlabel):
    kernel_begin(a, name)
    stamp("start")
    if args.padto: a("s_memrealtime s[90:91]")
    a(f"s_cmp_ge_u32 s{sB}, 256")
    a(f"s_cbranch_scc1 {endlabel}")
    a(f"s_load_dwordx16 s[{sKARG}:{sKARG+15}], s[0:1], 0")
    a(f"v_and_b32 v{vLANE}, 63, v{vTID}")
    a(f"v_lshrrev_b32 v12, 6, v{vTID}")
    a(f"v_lshlrev_b32 v{vA}, 4, v{vLANE}")
    a(f"v_readfirstlane_b32 s{sWV}, v12")
    a(f"v_add_u32 v{vA2}, 0x1000, v{vA}")
    a(f"s_getpc_b64 s[{sT0}:{sT0+1}]")
    a("L_pf_base:")
    a("s_nop 2")
    a(f"s_lshr_b32 s{sT2}, s{sB}, 3")
    a(f"s_and_b32 s{sT2}, s{sT2}, 7")
    a(f"s_lshl_b32 s{sT2}, s{sT2}, 2")
    a(f"s_add_u32 s{sT2}, s{sT2}, s{sWV}")
    a(f"s_min_u32 s{sT2}, s{sT2}, (L_code_end - L_pf_base) / 1024 - 1")
    a(f"s_lshl_b32 s{sT2}, s{sT2}, 10")
    a(f"s_add_u32 s{sT0}, s{sT0}, s{sT2}")
    a(f"s_addc_u32 s{sT1}, s{sT1}, 0")
    a(f"global_load_dwordx4 v[124:127], v{vA}, s[{sT0}:{sT0+1}]")
    a(f"s_and_b32 s{sT0}, s{sB}, 1")
    a(f"s_lshl_b32 s{sT0}, s{sT0}, 2")
    a(f"s_bfe_u32 s{sT2}, s{sB}, 0x20003")
    a(f"s_add_u32 s{sDT}, s{sT0}, s{sT2}")
    a(f"s_lshr_b32 s{sT1}, s{sB}, 5")
    a(f"s_bfe_u32 s{sT3}, s{sB}, 0x20001")
    a(f"s_lshl_b32 s{sT2}, s{sT3}, 3")
    if args.stswap >= 0:
        a(f"s_cmp_eq_u32 s{sT1}, 7")
        a(f"s_cselect_b32 s{sT0}, {args.stswap}, s{sT1}")
        a(f"s_cmp_eq_u32 s{sT1}, {args.stswap}")
        a(f"s_cselect_b32 s{sT0}, 7, s{sT0}")
        a(f"s_add_u32 s{sST}, s{sT2}, s{sT0}")
    else:
        a(f"s_add_u32 s{sST}, s{sT2}, s{sT1}")
    if args.map1 == "2d":
        a(f"s_mov_b32 s{sDT1}, s{sDT}")
        a(f"s_mul_i32 s{sT2}, s{sT3}, 7")
        a(f"s_add_u32 s{sFT}, s{sT2}, s{sT1}")
        a(f"s_cmp_eq_u32 s{sT3}, 3")
        a(f"s_cselect_b32 s{sT2}, 6, 7")
        a(f"s_cmp_lt_u32 s{sT1}, s{sT2}")
        a(f"s_cselect_b32 s{sROLE}, 1, 0")
    else:
        a(f"s_bfe_u32 s{sDT1}, s{sB}, 0x30003")
        a(f"s_lshr_b32 s{sT0}, s{sB}, 6")
        a(f"s_lshl_b32 s{sT0}, s{sT0}, 3")
        a(f"s_and_b32 s{sT2}, s{sB}, 7")
        a(f"s_add_u32 s{sFT}, s{sT0}, s{sT2}")
        a(f"s_cmp_lt_u32 s{sFT}, 27")
        a(f"s_cselect_b32 s{sROLE}, 1, 0")
    a(f"s_mul_i32 s{sRING}, s{sWV}, {RING}")
    a(f"v_lshrrev_b32 v12, 5, v{vLANE}")
    a(f"v_mul_u32_u24 v12, 1280, v12")
    a(f"v_and_b32 v13, 31, v{vLANE}")
    a(f"v_lshl_add_u32 v14, v13, 4, v12")
    a(f"v_lshl_add_u32 v15, v13, 3, v12")
    dma_offsets(vD, W1_ROW)
    a(f"s_lshl_b32 s{sT0}, s{sB}, 3")
    a(f"s_lshl_b32 s{sT1}, s{sWV}, 1")
    a(f"s_add_u32 s{sT0}, s{sT0}, s{sT1}")
    a(f"s_mul_i32 s{sOFF}, s{sT0}, 1280")
    a("s_waitcnt lgkmcnt(0)")
    mk_srd(srdX, sKARG+0, S*D*2)
    a(f"buffer_load_dwordx4 v[{XR}:{XR+3}], v14, s[{srdX}:{srdX+3}], s{sOFF} offen{fl(args.xfl)}")
    a(f"buffer_load_dwordx4 v[{XR+4}:{XR+7}], v14, s[{srdX}:{srdX+3}], s{sOFF} offen offset:512{fl(args.xfl)}")
    a(f"buffer_load_dwordx2 v[{XR+8}:{XR+9}], v15, s[{srdX}:{srdX+3}], s{sOFF} offen offset:1024{fl(args.xfl)}")
    for _ in range(3): vm.issue("x")
    mk_srd(srdW1,  sKARG+2,  S*F*2)
    mk_srd(srdB1,  sKARG+4,  F*2)
    mk_srd(srdW2,  sKARG+6,  F*S*2)
    mk_srd(srdDBG, sKARG+12, 256)
    mk_srd(srdWS,  sKARG+14, 268435456)
    mk_srd(srdB2,  sKARG+8,  S*2)
    mk_srd(srdOUT, sKARG+10, S*D*2)

def dma_offsets(dst, row):
    a(f"v_lshrrev_b32 v12, 3, v{vLANE}")
    a(f"v_and_b32 v13, 2, v12")
    a(f"v_mul_u32_u24 v12, {row}, v12")
    a(f"v_and_b32 v{dst+2}, 7, v{vLANE}")
    a(f"v_xor_b32 v13, v13, v{dst+2}")
    a(f"v_lshl_add_u32 v{dst}, v13, 4, v12")
    a(f"v_xor_b32 v13, 4, v13")
    a(f"v_lshl_add_u32 v{dst+1}, v13, 4, v12")
    a(f"v_add_u32 v{dst+1}, {8*row}, v{dst+1}")
    a(f"v_add_u32 v{dst+2}, {16*row}, v{dst}")
    a(f"v_add_u32 v{dst+3}, {16*row}, v{dst+1}")

def tr_addresses():
    t0, t1, t2, t3 = 112, 113, 114, 115
    fg(f"v_lshrrev_b32 v{t0}, 4, v{vLANE}")
    fg(f"v_bfe_u32 v{t1}, v{vLANE}, 2, 2")
    fg(f"v_lshl_add_u32 v{t2}, v{t0}, 3, v{t1}")
    fg(f"v_lshlrev_b32 v{t2}, 7, v{t2}")
    fg(f"v_and_b32 v{t3}, 1, v{vLANE}")
    fg(f"v_lshl_add_u32 v{t2}, v{t3}, 3, v{t2}")
    fg(f"v_add_u32 v{t2}, s{sRING}, v{t2}")
    fg(f"v_and_b32 v{t0}, 1, v{t0}")
    fg(f"v_lshlrev_b32 v{t0}, 2, v{t0}")
    fg(f"v_and_b32 v{t1}, 2, v{t1}")
    fg(f"v_or_b32 v{t0}, v{t0}, v{t1}")
    fg(f"v_bfe_u32 v{t1}, v{vLANE}, 1, 1")
    fg(f"v_xor_b32 v{t0}, v{t0}, v{t1}")
    for c in range(4):
        a(f"s_add_u32 s{sT0}, s{sWV}, {c}")
        a(f"s_and_b32 s{sT0}, s{sT0}, 3")
        a(f"s_lshl_b32 s{sT0}, s{sT0}, 1")
        fg(f"v_xor_b32 v{t1}, s{sT0}, v{t0}")
        fg(f"v_lshl_add_u32 v{vT+c}, v{t1}, 4, v{t2}")

def m0_gap():
    if a.lines[-1].startswith("s_add_u32 m0"): a("s_nop 0")

class Stager:
    def __init__(self, srd, dreg, run, base, end, kstride, nks, optional_last, flags, tag):
        self.srd, self.dreg, self.run, self.base, self.end = srd, dreg, run, base, end
        self.kstride, self.nks, self.opt, self.flags, self.tag = kstride, nks, optional_last, flags, tag
        self.nd = 0; self.nt = 0; self.uid = 0; self.started = False
    def lds(self, pos, q): return (pos % NSLOT)*4096 + q*1024
    def start(self):
        a(f"s_add_u32 m0, s{sRING}, {self.lds(0, 0)}")
        a("s_nop 0")
        self.started = True
    def piece(self, pos, q, burst):
        assert self.started
        opt = self.is_opt(pos)
        off = self.run
        if opt:
            off = sOFF
            if q == 0: a(f"s_add_u32 s{sOFF}, s{self.base}, {pos*self.kstride}")
        m0_gap()
        a(f"buffer_load_dwordx4 v{self.dreg+q}, s[{self.srd}:{self.srd+3}], s{off} offen{self.flags} lds")
        vm.issue((self.tag, pos), opt)
        npos, nq = (pos, q+1) if q < 3 else (pos+1, 0)
        last = npos >= self.nks
        if not last: a(f"s_add_u32 m0, s{sRING}, {self.lds(npos, nq)}")
        if q == 3 and not opt:
            a(f"s_add_u32 s{self.run}, s{self.run}, {self.kstride}")
            a(f"s_cmp_eq_u32 s{self.run}, s{self.end}")
            a(f"s_cselect_b32 s{self.run}, s{self.base}, s{self.run}")
        elif burst and not last:
            a("s_nop 0")
    def is_opt(self, pos): return self.opt and pos == self.nks - 1
    def dma(self):
        pos = self.nd; self.nd += 1
        body = lambda: [self.piece(pos, q, True) for q in range(4)]
        if self.is_opt(pos): guarded(f"L_{self.tag}_d{self.uid}", body); self.uid += 1
        else: body()
    def dma_bg(self, n):
        for _ in range(n):
            pos = self.nd; self.nd += 1
            assert not self.is_opt(pos)
            for q in range(4): bg.add(lambda pos=pos, q=q: self.piece(pos, q, False))
    def tr_body(self, pos):
        if vm.has((self.tag, pos)): vm.wait((self.tag, pos))
        for c in range(4):
            for t in range(2):
                r = 16*pos + 4*c + 2*t
                a(f"ds_read_b64_tr_b16 a[{r}:{r+1}], v{vT+c} offset:{(pos % NSLOT)*4096 + t*512}")
    def tr(self):
        pos = self.nt; self.nt += 1
        if self.is_opt(pos): guarded(f"L_{self.tag}_t{self.uid}", lambda: self.tr_body(pos)); self.uid += 1
        else: self.tr_body(pos)
    def tr_bg(self, n):
        for _ in range(n):
            pos = self.nt; self.nt += 1
            assert not self.is_opt(pos)
            bg.add(lambda pos=pos: self.tr_body(pos))
    def refill(self, settled=False):
        waited = settled
        lim = self.nt if settled else self.nt - 1
        while self.nd < self.nks and self.nd - NSLOT < lim:
            if self.nd >= NSLOT and not waited: a("s_waitcnt lgkmcnt(8)"); waited = True
            self.dma()
    def step(self):
        self.refill()
        if self.nt < self.nks: self.tr()
        self.refill()
    def fill(self, limit=NSLOT):
        while self.nd < min(limit, self.nks): self.dma()
    def advance_to(self, nd, nt):
        assert nd - NSLOT <= nt
        while self.nd < nd or self.nt < nt:
            if self.nd < nd and self.nd < NSLOT: self.dma()
            elif self.nd < nd and self.nd - NSLOT < self.nt - 1:
                a("s_waitcnt lgkmcnt(8)"); self.dma()
            elif self.nt < nt: self.tr()
            else:
                a("s_waitcnt lgkmcnt(0)"); self.dma()
    def request_all(self):
        while self.nd < self.nks: self.step()
    def finish(self):
        while self.nt < self.nks or self.nd < self.nks: self.step()
        a("s_waitcnt lgkmcnt(0)")

def guarded(label, fn):
    a(f"s_cmp_ge_u32 s{sWV}, 2")
    a(f"s_cbranch_scc1 {label}")
    fn()
    a(f"{label}:")

def set_rot(n, spec, dreg):
    mode, g = spec.split(":"); g = int(g)
    if mode == "none":
        a(f"s_mov_b32 s{sROT}, 0"); return
    if mode == "d": a(f"s_mov_b32 s{sT0}, s{dreg}")
    else:
        a(f"s_lshr_b32 s{sT0}, s{sB}, 5")
        if mode == "qd": a(f"s_add_u32 s{sT0}, s{sT0}, s{dreg}")
    a(f"s_and_b32 s{sT0}, s{sT0}, {g-1}")
    a(f"s_mul_i32 s{sT0}, s{sT0}, {n}")
    a(f"s_lshr_b32 s{sROT}, s{sT0}, {g.bit_length()-1}")
def set_run(run, base, end, n, stride):
    a(f"s_add_u32 s{end}, s{base}, {n*stride}")
    a(f"s_mul_i32 s{run}, s{sROT}, {stride}")
    a(f"s_add_u32 s{run}, s{run}, s{base}")
def set_w1_base():
    set_rot(16, args.rot1, sDT1)
    a(f"s_lshl_b32 s{sT0}, s{sWV}, 4")
    a(f"s_mul_i32 s{sWBASE}, s{sT0}, {W1_KS}")
    a(f"s_lshl_b32 s{sT0}, s{sFT}, 7")
    if args.wsame & 1: a(f"s_mov_b32 s{sT0}, 0")
    a(f"s_add_u32 s{sWBASE}, s{sWBASE}, s{sT0}")
    a(f"s_cmp_eq_u32 s{sROLE}, 0")
    a(f"s_cselect_b32 s{sWBASE}, {OOB}, s{sWBASE}")
    set_run(sWOFF, sWBASE, sWEND, 16, W1_KS)
def set_h_base():
    set_rot(16, args.rot1, sDT1)
    a(f"s_lshl_b32 s{sT0}, s{sDT1}, 6")
    a(f"s_lshl_b32 s{sT1}, s{sWV}, 4")
    a(f"s_add_u32 s{sT0}, s{sT0}, s{sT1}")
    a(f"s_mul_i32 s{sABASE}, s{sT0}, 5120")
    if H_OFF: a(f"s_add_u32 s{sABASE}, s{sABASE}, {H_OFF}")
    set_run(sAOFF, sABASE, sAEND, 16, 5120)
def k2_start(dst):
    a(f"s_mul_i32 s{dst}, s{sWV}, 14")
    a(f"s_cmp_eq_u32 s{sWV}, 3")
    a(f"s_cselect_b32 s{sT3}, 1, 0")
    a(f"s_sub_u32 s{dst}, s{dst}, s{sT3}")
def set_w2_base():
    set_rot(13, args.rot2, sDT)
    k2_start(sT0)
    a(f"s_mul_i32 s{sW2B}, s{sT0}, {W2_KS}")
    a(f"s_lshl_b32 s{sT0}, s{sST}, 7")
    if args.wsame & 2: a(f"s_mov_b32 s{sT0}, 0")
    a(f"s_add_u32 s{sW2B}, s{sW2B}, s{sT0}")
    set_run(sW2R, sW2B, sW2E, 13, W2_KS)
def set_g_base():
    set_rot(13, args.rot2, sDT)
    k2_start(sT0)
    a(f"s_mul_i32 s{sT1}, s{sDT}, 54")
    a(f"s_add_u32 s{sT0}, s{sT0}, s{sT1}")
    a(f"s_mul_i32 s{sABASE}, s{sT0}, 5120")
    a(f"s_add_u32 s{sABASE}, s{sABASE}, {G_OFF}")
    set_run(sAOFF, sABASE, sAEND, 13, 5120)

XR = 16
FV = 28
DV = 48
HP = 68
WA = 80
GA = 92
TV = 100
def ln_addresses():
    fg(f"v_and_b32 v{TV}, 31, v{vLANE}")
    fg(f"v_lshrrev_b32 v{TV+1}, 5, v{vLANE}")
    fg(f"v_lshlrev_b32 v{TV+1}, 1, v{TV+1}")
    a(f"s_lshl_b32 s{sT0}, s{sWV}, 2")
    a(f"s_add_u32 s{sT0}, s{sT0}, {T_OFF}")
    fg(f"v_and_b32 v{TV+2}, 7, v{TV}")
    fg(f"v_xor_b32 v{TV+2}, v{TV+2}, v{TV+1}")
    fg(f"v_lshlrev_b32 v{TV+3}, 7, v{TV}")
    a(f"v_add_u32 v{TV+3}, s{sT0}, v{TV+3}")
    a(f"v_lshrrev_b32 v{TV+7}, 1, v{TV}")
    a(f"v_lshlrev_b32 v{TV+8}, 7, v{TV+7}")
    fg(f"v_add_u32 v{TV+8}, s{sT0}, v{TV+8}")
    for k in range(4):
        base = 4096 if k >= 2 else 0
        e = 4 if (k & 1) else 0
        for o in range(2):
            fg(f"v_xor_b32 v{TV+4}, {e + o}, v{TV+2}")
            fg(f"v_lshl_add_u32 v{WA + 2*k + o}, v{TV+4}, 4, v{TV+3}")
            if base: fg(f"v_add_u32 v{WA + 2*k + o}, {base}, v{WA + 2*k + o}")
    fg(f"v_and_b32 v{TV+5}, 1, v{TV}")
    fg(f"v_lshl_add_u32 v{TV+5}, v{TV+5}, 2, v{TV+1}")
    fg(f"v_and_b32 v{TV+6}, 7, v{TV+7}")
    fg(f"v_xor_b32 v{TV+5}, v{TV+5}, v{TV+6}")
    fg(f"v_add_u32 v{TV+8}, 8192, v{TV+8}")
    fg(f"v_lshl_add_u32 v{WA+8}, v{TV+5}, 4, v{TV+8}")
    fg(f"v_xor_b32 v{TV+5}, 1, v{TV+5}")
    fg(f"v_lshl_add_u32 v{WA+9}, v{TV+5}, 4, v{TV+8}")
    for i in range(3):
        fg(f"v_add_u32 v{TV}, {256*i}, v{vTID}")
        fg(f"v_lshrrev_b32 v{TV+1}, 3, v{TV}")
        fg(f"v_xor_b32 v{TV+1}, v{TV+1}, v{TV}")
        fg(f"v_and_b32 v{TV+1}, 7, v{TV+1}")
        fg(f"v_and_b32 v{TV+2}, 0x3f8, v{TV}")
        fg(f"v_or_b32 v{TV+1}, v{TV+1}, v{TV+2}")
        fg(f"v_lshrrev_b32 v{TV+2}, 4, v{TV+1}")
        fg(f"v_mul_u32_u24 v{TV+3}, 205, v{TV+2}")
        fg(f"v_lshrrev_b32 v{TV+3}, 10, v{TV+3}")
        fg(f"v_mul_u32_u24 v{TV+3}, 315, v{TV+3}")
        fg(f"v_add_u32 v{TV+3}, v{TV+3}, v{TV+2}")
        fg(f"v_lshlrev_b32 v{TV+3}, 10, v{TV+3}")
        fg(f"v_and_b32 v{TV+1}, 15, v{TV+1}")
        fg(f"v_lshl_add_u32 v{GA+i}, v{TV+1}, 4, v{TV+3}")
    fg(f"v_lshlrev_b32 v95, 4, v{vTID}")
    fg(f"v_add_u32 v95, {T_OFF}, v95")
    a(f"s_lshr_b32 s{sT0}, s{sB}, 2")
    a(f"s_mul_i32 s{sT0}, s{sT0}, 5120")
    a(f"s_and_b32 s{sT1}, s{sB}, 3")
    a(f"s_lshl_b32 s{sT1}, s{sT1}, 8")
    a(f"s_add_u32 s{sGST}, s{sT0}, s{sT1}")
    if H_OFF: a(f"s_add_u32 s{sGST}, s{sGST}, {H_OFF}")

def reduce32(r, t):
    for dpp in ("quad_perm:[1,0,3,2]", "quad_perm:[2,3,0,1]", "row_half_mirror", "row_mirror"):
        a("s_nop 1")
        a(f"v_add_f32_dpp v{r}, v{r}, v{r} {dpp} row_mask:0xf bank_mask:0xf")
    a(f"v_mov_b32 v{t}, v{r}")
    a("s_nop 1")
    a(f"v_permlane16_swap_b32 v{r}, v{t}")
    a("s_nop 1")
    fg(f"v_add_f32 v{r}, v{r}, v{t}")

def rne_bf16(dst, src):
    a(f"v_cvt_pk_bf16_f32 v{dst}, v{src}, v{src}")
    a(f"v_and_b32 v{dst}, 0xffff0000, v{dst}")

def ln_compute():
    for m in range(10):
        fg(f"v_lshlrev_b32 v{FV+2*m}, 16, v{XR+m}")
        fg(f"v_and_b32 v{FV+2*m+1}, 0xffff0000, v{XR+m}")
    s0, s1 = TV, TV+2
    fg(f"v_pk_add_f32 {P(s0)}, {P(FV)}, {P(FV+2)}")
    fg(f"v_pk_add_f32 {P(s1)}, {P(FV+4)}, {P(FV+6)}")
    for m in range(4, 10):
        s = s0 if m % 2 == 0 else s1
        fg(f"v_pk_add_f32 {P(s)}, {P(s)}, {P(FV+2*m)}")
    fg(f"v_pk_add_f32 {P(s0)}, {P(s0)}, {P(s1)}")
    mean = TV+4
    fg(f"v_add_f32 v{mean}, v{s0}, v{s0+1}")
    reduce32(mean, TV+6)
    fg(f"v_mul_f32 v{mean}, {f32hex(1.0/640)}, v{mean}")
    fg(f"v_mov_b32 v{mean+1}, v{mean}")
    for m in range(10):
        fg(f"v_pk_add_f32 {P(DV+2*m)}, {P(FV+2*m)}, {P(mean)} neg_lo:[0,1] neg_hi:[0,1]")
    fg(f"v_pk_mul_f32 {P(s0)}, {P(DV)}, {P(DV)}")
    fg(f"v_pk_mul_f32 {P(s1)}, {P(DV+2)}, {P(DV+2)}")
    for m in range(2, 10):
        s = s0 if m % 2 == 0 else s1
        fg(f"v_pk_fma_f32 {P(s)}, {P(DV+2*m)}, {P(DV+2*m)}, {P(s)}")
    fg(f"v_pk_add_f32 {P(s0)}, {P(s0)}, {P(s1)}")
    var = TV+8
    fg(f"v_add_f32 v{var}, v{s0}, v{s0+1}")
    reduce32(var, TV+6)
    fg(f"v_mul_f32 v{var}, {f32hex(1.0/640)}, v{var}")
    rs = TV+10
    if args.exact:
        rne_bf16(var, var)
        a(f"v_add_f32 v{var}, {f32hex(1e-5)}, v{var}")
        rne_bf16(var, var)
        a(f"v_sqrt_f32 v{var}, v{var}")
        a("s_nop 0")
        rne_bf16(var, var)
        a(f"v_rcp_f32 v{rs}, v{var}")
        rne_bf16(mean, mean)
        a(f"v_mov_b32 v{mean+1}, v{mean}")
        fg(f"v_mov_b32 v{rs+1}, v{rs}")
        for m in range(10):
            fg(f"v_pk_add_f32 {P(DV+2*m)}, {P(FV+2*m)}, {P(mean)} neg_lo:[0,1] neg_hi:[0,1]")
        for m in range(10):
            fg(f"v_cvt_pk_bf16_f32 v{HP+m}, v{DV+2*m}, v{DV+2*m+1}")
        for m in range(10):
            fg(f"v_lshlrev_b32 v{DV+2*m}, 16, v{HP+m}")
            fg(f"v_and_b32 v{DV+2*m+1}, 0xffff0000, v{HP+m}")
    else:
        a(f"v_add_f32 v{var}, {f32hex(1e-5)}, v{var}")
        a(f"v_rsq_f32 v{rs}, v{var}")
        a("s_nop 0")
        fg(f"v_mov_b32 v{rs+1}, v{rs}")
    for m in range(10):
        fg(f"v_pk_mul_f32 {P(DV+2*m)}, {P(DV+2*m)}, {P(rs)}")
    for m in range(10):
        fg(f"v_cvt_pk_bf16_f32 v{HP+m}, v{DV+2*m}, v{DV+2*m+1}")
    a(f"s_mov_b32 s{sT0}, 0x05040100")
    a(f"s_mov_b32 s{sT1}, 0x07060302")
    for k in range(5):
        a(f"v_permlane32_swap_b32 v{HP+2*k}, v{HP+2*k+1}")
    a("s_nop 1")
    for k in range(5):
        a(f"v_perm_b32 v{DV+2*k}, v{HP+2*k+1}, v{HP+2*k}, s{sT0}")
        a(f"v_perm_b32 v{DV+2*k+1}, v{HP+2*k+1}, v{HP+2*k}, s{sT1}")
    for k in range(10):
        a(f"ds_write_b32 v{WA+k}, v{DV+k}")

def ln_store():
    a("s_waitcnt lgkmcnt(0)")
    a("s_barrier")
    a(f"ds_read_b128 v[{FV}:{FV+3}], v95")
    a(f"ds_read_b128 v[{FV+4}:{FV+7}], v95 offset:4096")
    a(f"s_cmp_ge_u32 s{sWV}, 2")
    a("s_cbranch_scc1 L_ln_two")
    a(f"ds_read_b128 v[{FV+8}:{FV+11}], v95 offset:8192")
    a("s_waitcnt lgkmcnt(0)")
    a(f"buffer_store_dwordx4 v[{FV+8}:{FV+11}], v{GA+2}, s[{srdWS}:{srdWS+3}], s{sGST} offen{SC}")
    vm.issue("hst3", True)
    a("L_ln_two:")
    a("s_waitcnt lgkmcnt(0)")
    a(f"buffer_store_dwordx4 v[{FV}:{FV+3}], v{GA}, s[{srdWS}:{srdWS+3}], s{sGST} offen{SC}")
    a(f"buffer_store_dwordx4 v[{FV+4}:{FV+7}], v{GA+1}, s[{srdWS}:{srdWS+3}], s{sGST} offen{SC}")
    vm.issue("hst"); vm.issue("hst")

def publish_nonce():
    a(f"s_or_b32 s{sT0}, s{sB}, s{sWV}")
    a(f"s_cmp_lg_u32 s{sT0}, 0")
    a("s_cbranch_scc1 L_no_nonce")
    a(f"s_memrealtime s[{sT0}:{sT0+1}]")
    a("s_waitcnt lgkmcnt(0)")
    a(f"s_or_b32 s{sT1}, s{sT1}, 0x40000000")
    a(f"v_mov_b32 v12, s{sT0}")
    a(f"v_mov_b32 v13, s{sT1}")
    a("v_mov_b32 v112, 0")
    a(f"buffer_store_dwordx2 v[12:13], v112, s[{srdDBG}:{srdDBG+3}], 0 offen sc1")
    a("L_no_nonce:")
    vm.issue("noncest", True)

def nonce_issue():
    a("v_mov_b32 v18, 0")
    a(f"buffer_load_dwordx2 v[16:17], v18, s[{srdDBG}:{srdDBG+3}], 0 offen sc1")
    vm.issue("nonce")

def nonce_finish(label):
    a(f"s_mov_b32 s{sSPIN}, {SPIN_MAX}")
    a(f"{label}:")
    a(f"v_readfirstlane_b32 s{sNON}, v16")
    a(f"v_readfirstlane_b32 s{sNON+1}, v17")
    a("s_nop 3")
    a(f"s_sub_u32 s{sSPIN}, s{sSPIN}, 1")
    a(f"s_cselect_b32 s{sT0}, 1, s{sNON+1}")
    a(f"s_cmp_lg_u32 s{sT0}, 0")
    a(f"s_cbranch_scc1 {label}_ok")
    a(f"buffer_load_dwordx2 v[16:17], v18, s[{srdDBG}:{srdDBG+3}], 0 offen sc1")
    a("s_waitcnt vmcnt(0)")
    a(f"s_branch {label}")
    a(f"{label}_ok:")

def store_flag(label, off_sreg):
    a(f"s_cmp_lg_u32 s{sWV}, 0")
    a(f"s_cbranch_scc1 {label}")
    a(f"v_mov_b32 v16, s{sNON}")
    a(f"v_mov_b32 v17, s{sNON+1}")
    a("v_mov_b32 v18, 0")
    a(f"s_mov_b64 s[{sEXEC}:{sEXEC+1}], exec")
    a("s_mov_b64 exec, 1")
    a(f"buffer_store_dwordx2 v[16:17], v18, s[{srdWS}:{srdWS+3}], s{off_sreg} offen sc1")
    a(f"s_mov_b64 exec, s[{sEXEC}:{sEXEC+1}]")
    a("s_nop 1")
    a(f"{label}:")
    vm.issue("flag", True)

vPOLL = 120
def poll_issue(off_sreg):
    a(f"buffer_load_dwordx2 v[{vPOLL}:{vPOLL+1}], v{vPOLL+2}, s[{srdWS}:{srdWS+3}], s{off_sreg} offen sc1")
    vm.issue("poll")
def poll_check(label, off_sreg):
    vm.wait("poll")
    a(f"s_mov_b32 s{sSPIN}, {SPIN_MAX}")
    a(f"{label}:")
    a(f"v_cmp_ne_u32 vcc, s{sNON}, v{vPOLL}")
    a(f"v_cmp_ne_u32 s[{sT0}:{sT0+1}], s{sNON+1}, v{vPOLL+1}")
    a("s_nop 3")
    a(f"s_or_b64 vcc, vcc, s[{sT0}:{sT0+1}]")
    a(f"s_cbranch_vccz {label}_ok")
    if args.sleep: a(f"s_sleep {args.sleep}")
    a(f"buffer_load_dwordx2 v[{vPOLL}:{vPOLL+1}], v{vPOLL+2}, s[{srdWS}:{srdWS+3}], s{off_sreg} offen sc1")
    a("s_waitcnt vmcnt(0)")
    a(f"s_sub_u32 s{sSPIN}, s{sSPIN}, 1")
    a(f"s_cbranch_scc0 {label}")
    a(f"{label}_ok:")

def a_load(slot, mi, ks, fixed=False):
    r = abuf(slot, mi)
    off = sAOFF
    if fixed:
        off = sOFF
        if mi == 0: a(f"s_add_u32 s{sOFF}, s{sABASE}, {ks*5120}")
    if mi < 4:
        a(f"buffer_load_dwordx4 v[{r}:{r+3}], v{vA}, s[{srdWS}:{srdWS+3}], s{off} offen offset:{mi*1024}{fl(args.asc)}")
    else:
        a(f"buffer_load_dwordx4 v[{r}:{r+3}], v{vA2}, s[{srdWS}:{srdWS+3}], s{off} offen{fl(args.asc)}")
        if not fixed:
            a(f"s_add_u32 s{sAOFF}, s{sAOFF}, {args.astride}")
            a(f"s_cmp_eq_u32 s{sAOFF}, s{sAEND}")
            a(f"s_cselect_b32 s{sAOFF}, s{sABASE}, s{sAOFF}")
    vm.issue(("A", ks), fixed)

def mfma(first, ks, slot, c, mi, gemm):
    if args.nomfma and not first: return
    d = acc(c, mi); wr = 16*ks + 4*c; ar = abuf(slot, mi)
    cin = "0" if first else f"v[{d}:{d+3}]"
    if gemm == 1: a(f"v_mfma_f32_16x16x32_bf16 v[{d}:{d+3}], a[{wr}:{wr+3}], v[{ar}:{ar+3}], {cin}")
    else:         a(f"v_mfma_f32_16x16x32_bf16 v[{d}:{d+3}], v[{ar}:{ar+3}], a[{wr}:{wr+3}], {cin}")

def main_prefill(gemm, nks, optional_last):
    for ks in range(min(NA, nks)):
        for mi in range(5): a_load(ks % NA, mi, ks, optional_last and ks == nks - 1)

def main_loop(gemm, nks, optional_last, W, tail=None):
    depth = min(NA, nks)
    nreal = nks - 1 if optional_last else nks
    def loads(ks):
        for mi in range(5): a_load(ks % NA, mi, ks, optional_last and ks == nks - 1)
    while W.nt < 2: W.tr()
    pending_tr = True
    for ks in range(nks):
        opt = optional_last and ks == nks - 1
        def body():
            nonlocal pending_tr
            vm.wait(("A", ks))
            if pending_tr: a("s_waitcnt lgkmcnt(0)"); pending_tr = False
            if args.mstamps and ks in (0, 4, 8, 12): stamp(f"g{gemm} step {ks} data")
            settled = W.nt
            pieces = []
            if W.nd < W.nks and W.nd - NSLOT < settled and not W.is_opt(W.nd):
                pos = W.nd; W.nd += 1
                pieces = [lambda q=q, pos=pos: W.piece(pos, q, False) for q in range(4)]
            nxt = ks + depth
            for mi in range(5):
                for c in range(4):
                    mfma(ks == 0, ks, ks % NA, c, mi, gemm)
                    if nxt < nreal: bg.tick()
                    if c == 1 and pieces: pieces.pop(0)()
                if mi == 0 and W.nt <= ks + 1 and W.nt < W.nks and not W.is_opt(W.nt):
                    W.tr(); pending_tr = True
                if nxt < nreal: a_load(nxt % NA, mi, nxt)
                elif tail is not None: tail()
        if opt: guarded(f"L_g{gemm}_mm", body)
        else: body()
        nxt = ks + depth
        if optional_last and nxt == nks - 1:
            guarded(f"L_g{gemm}_ld", lambda: loads(nxt))
        if W.nd < W.nks and W.is_opt(W.nd) and W.nd - NSLOT < W.nt - 1:
            a("s_waitcnt lgkmcnt(0)"); W.dma()
        if W.nt < W.nks and W.is_opt(W.nt) and W.nt <= ks + 1 and W.nd > W.nt:
            W.tr(); pending_tr = True
        if nxt == nreal - 1: bg.flush()
    assert W.nd == W.nks and W.nt == W.nks

RT = 16
PK = 80
def epilogue_addresses():
    for c in range(1, 4):
        a(f"s_add_u32 s{sT0}, s{sWV}, {c}")
        a(f"s_and_b32 s{sT0}, s{sT0}, 3")
        a(f"s_mul_i32 s{sT1}, s{sT0}, {RING}")
        a(f"s_add_u32 s{sT1}, s{sT1}, {6*4096}")
        a(f"v_add_u32 v{vRW+c-1}, s{sT1}, v{vA}")
        if c == 3:
            a(f"s_mul_i32 s{sT1}, s{sT0}, 3072")
            a(f"s_add_u32 s{sT1}, s{sT1}, {T_OFF}")
            a(f"v_add_u32 v{vRW+3}, s{sT1}, v{vA}")
    a(f"s_add_u32 s{sT1}, s{sRING}, {6*4096}")
    a(f"v_add_u32 v{vRR}, s{sT1}, v{vA}")
    a(f"s_mul_i32 s{sT1}, s{sWV}, 3072")
    a(f"s_add_u32 s{sT1}, s{sT1}, {T_OFF}")
    a(f"v_add_u32 v{vRR+1}, s{sT1}, v{vA}")
    a(f"v_lshrrev_b32 v12, 4, v{vLANE}")
    a("v_and_b32 v13, 1, v12")
    a(f"v_lshlrev_b32 v{vGO}, 10, v13")
    a(f"v_lshlrev_b32 v{vOO}, 5, v13")
    a("v_lshrrev_b32 v12, 1, v12")
    a(f"v_lshl_add_u32 v{vGL}, v12, 8, 0")
    a(f"v_lshlrev_b32 v{vOL}, 4, v12")
    a(f"v_and_b32 v12, 15, v{vLANE}")
    a(f"v_lshl_add_u32 v{vGL}, v12, 4, v{vGL}")
    a(f"v_add_u32 v{vGO}, v{vGO}, v{vGL}")
    a("v_mul_u32_u24 v12, 1280, v12")
    a(f"v_add_u32 v{vOL}, v{vOL}, v12")
    a(f"v_add_u32 v{vOO}, v{vOO}, v{vOL}")
    a(f"s_mul_i32 s{sT0}, s{sDT1}, 54")
    a(f"s_lshl_b32 s{sT1}, s{sFT}, 1")
    a(f"s_add_u32 s{sT0}, s{sT0}, s{sT1}")
    a(f"s_lshr_b32 s{sT1}, s{sWV}, 1")
    a(f"s_add_u32 s{sT0}, s{sT0}, s{sT1}")
    a(f"s_mul_i32 s{sT0}, s{sT0}, 5120")
    a(f"s_and_b32 s{sT1}, s{sWV}, 1")
    a(f"s_lshl_b32 s{sT1}, s{sT1}, 9")
    a(f"s_add_u32 s{sT0}, s{sT0}, s{sT1}")
    a(f"s_add_u32 s{sGST}, s{sT0}, {G_OFF}")
    a(f"s_lshl_b32 s{sT0}, s{sST}, 2")
    a(f"s_add_u32 s{sT0}, s{sT0}, s{sWV}")
    a(f"s_mul_i32 s{sT0}, s{sT0}, {16*1280}")
    a(f"s_mul_i32 s{sT1}, s{sDT}, 160")
    a(f"s_add_u32 s{sOST}, s{sT0}, s{sT1}")
    c1 = -2.0 * 0.7978845608028654 * 1.4426950408889634
    a(f"v_mov_b32 v{vC}, {f32hex(c1)}"); a(f"v_mov_b32 v{vC+1}, {f32hex(c1)}")
    a(f"v_mov_b32 v{vC+2}, {f32hex(c1*0.044715)}"); a(f"v_mov_b32 v{vC+3}, {f32hex(c1*0.044715)}")
    a(f"v_mov_b32 v{vC+4}, 1.0"); a(f"v_mov_b32 v{vC+5}, 1.0")
    dma_offsets(vD2, W2_ROW)
    set_w2_base()
    a(f"s_lshl_b32 s{sT0}, s{sST}, 7")
    a(f"s_lshl_b32 s{sT1}, s{sWV}, 5")
    a(f"s_add_u32 s{sT0}, s{sT0}, s{sT1}")
    a(f"v_and_b32 v12, 15, v{vLANE}")
    a("v_lshlrev_b32 v12, 1, v12")
    a(f"buffer_load_ushort v{vB2}, v12, s[{srdB2}:{srdB2+3}], s{sT0} offen")
    vm.issue("b2")

def reduce_write():
    a("s_nop 6")
    a("s_barrier")
    for c in range(1, 4):
        for mi in range(5):
            blk = (c-1)*5 + mi
            r = acc(c, mi)
            if blk < 12: a(f"ds_write_b128 v{vRW+c-1}, v[{r}:{r+3}] offset:{blk*1024}")
            else:        a(f"ds_write_b128 v{vRW+3}, v[{r}:{r+3}] offset:{(blk-12)*1024}")
            bg.tick(3)
    a("s_waitcnt lgkmcnt(0)")
    a("s_barrier")
    for mi in range(5):
        for c in range(1, 4):
            blk = (c-1)*5 + mi
            r = RT + 4*blk
            if blk < 12: a(f"ds_read_b128 v[{r}:{r+3}], v{vRR} offset:{blk*1024}")
            else:        a(f"ds_read_b128 v[{r}:{r+3}], v{vRR+1} offset:{(blk-12)*1024}")

def reduce_sum(mi, counted=True):
    if counted: a(f"s_waitcnt lgkmcnt({12 - 3*mi})")
    for c in range(1, 4):
        for h in range(2):
            d = acc(0, mi) + 2*h; s = RT + 4*((c-1)*5 + mi) + 2*h
            fg(f"v_pk_add_f32 {P(d)}, {P(d)}, {P(s)}")

def pack_swap():
    for mi in range(5):
        d = acc(0, mi); r = PK + 2*mi
        a(f"v_cvt_pk_bf16_f32 v{r}, v{d}, v{d+1}")
        a(f"v_cvt_pk_bf16_f32 v{r+1}, v{d+2}, v{d+3}")
    a(f"v_mov_b32 v{PK+10}, v{PK+8}")
    a(f"v_mov_b32 v{PK+11}, v{PK+9}")
    a("s_nop 1")
    for p in range(3):
        b = PK + 4*p
        a(f"v_permlane16_swap_b32 v{b}, v{b+2}")
        a(f"v_permlane16_swap_b32 v{b+1}, v{b+3}")

def epilogue1(after_reduce):
    reduce_write()
    a(f"v_lshlrev_b32 v96, 16, v{vB1}");   a(f"v_and_b32 v97, 0xffff0000, v{vB1}")
    a(f"v_lshlrev_b32 v98, 16, v{vB1+1}"); a(f"v_and_b32 v99, 0xffff0000, v{vB1+1}")
    T = 100
    for mi in range(5):
        d = acc(0, mi)
        reduce_sum(mi)
        if mi == 4: after_reduce()
        for h in range(2):
            fg(f"v_pk_add_f32 {P(d+2*h)}, {P(d+2*h)}, {P(96+2*h)}")
        t = T + 4*(mi % 2)
        for h in range(2):
            u = d + 2*h
            fg(f"v_pk_mul_f32 {P(t+2*h)}, {P(u)}, {P(u)}")
        for h in range(2):
            fg(f"v_pk_fma_f32 {P(t+2*h)}, {P(t+2*h)}, {P(vC+2)}, {P(vC)}")
        for h in range(2):
            u = d + 2*h
            fg(f"v_pk_mul_f32 {P(t+2*h)}, {P(t+2*h)}, {P(u)}")
        for k in range(4): a(f"v_exp_f32 v{t+k}, v{t+k}")
        bg.tick(8)
        for h in range(2): a(f"v_pk_add_f32 {P(t+2*h)}, {P(t+2*h)}, {P(vC+4)}")
        for k in range(4): a(f"v_rcp_f32 v{t+k}, v{t+k}")
        a("s_nop 0")
        bg.tick(10)
        for h in range(2): fg(f"v_pk_mul_f32 {P(d+2*h)}, {P(d+2*h)}, {P(t+2*h)}")
        r = PK + 2*mi
        a(f"v_cvt_pk_bf16_f32 v{r}, v{d}, v{d+1}")
        a(f"v_cvt_pk_bf16_f32 v{r+1}, v{d+2}, v{d+3}")
        if mi in (1, 3):
            p = mi // 2; b = PK + 4*p
            a("s_nop 1")
            a(f"v_permlane16_swap_b32 v{b}, v{b+2}")
            a(f"v_permlane16_swap_b32 v{b+1}, v{b+3}")
            if not args.bglate:
                a(f"buffer_store_dwordx4 v[{b}:{b+3}], v{vGO}, s[{srdWS}:{srdWS+3}], s{sGST} offen offset:{2048*p}{SC}")
                vm.issue("gst")
    bg.flush()
    a(f"v_mov_b32 v{PK+10}, v{PK+8}")
    a(f"v_mov_b32 v{PK+11}, v{PK+9}")
    a(f"s_add_u32 s{sT1}, s{sGST}, 4096")
    a("s_nop 0")
    a(f"v_permlane16_swap_b32 v{PK+8}, v{PK+10}")
    a(f"v_permlane16_swap_b32 v{PK+9}, v{PK+11}")
    if args.bglate:
        for p in range(2):
            b = PK + 4*p
            a(f"buffer_store_dwordx4 v[{b}:{b+3}], v{vGO}, s[{srdWS}:{srdWS+3}], s{sGST} offen offset:{2048*p}{SC}")
            vm.issue("gst")
    a(f"buffer_store_dwordx4 v[{PK+8}:{PK+11}], v{vGL}, s[{srdWS}:{srdWS+3}], s{sT1} offen{SC}")
    vm.issue("gst")

def epilogue2():
    reduce_write()
    a(f"v_lshlrev_b32 v96, 16, v{vB2}")
    a("v_mov_b32 v97, v96")
    o = fl(args.ofl)
    for mi in range(5):
        d = acc(0, mi)
        reduce_sum(mi)
        for h in range(2):
            a(f"v_pk_add_f32 {P(d+2*h)}, {P(d+2*h)}, {P(96)}")
        r = PK + 2*mi
        a(f"v_cvt_pk_bf16_f32 v{r}, v{d}, v{d+1}")
        a(f"v_cvt_pk_bf16_f32 v{r+1}, v{d+2}, v{d+3}")
        if mi in (1, 3):
            p = mi // 2; b = PK + 4*p
            a("s_nop 1")
            a(f"v_permlane16_swap_b32 v{b}, v{b+2}")
            a(f"v_permlane16_swap_b32 v{b+1}, v{b+3}")
            a(f"buffer_store_dwordx4 v[{b}:{b+3}], v{vOO}, s[{srdOUT}:{srdOUT+3}], s{sOST} offen offset:{64*p}{o}")
    a(f"v_mov_b32 v{PK+10}, v{PK+8}")
    a(f"v_mov_b32 v{PK+11}, v{PK+9}")
    a("s_nop 1")
    a(f"v_permlane16_swap_b32 v{PK+8}, v{PK+10}")
    a(f"v_permlane16_swap_b32 v{PK+9}, v{PK+11}")
    a(f"buffer_store_dwordx4 v[{PK+8}:{PK+11}], v{vOL}, s[{srdOUT}:{srdOUT+3}], s{sOST} offen offset:128{o}")

pair = lambda s: tuple(int(x) for x in s.split(":"))
file_begin(a, [(MAIN, 256, 256, LDS_BYTES)])
prologue(MAIN, "L_end")
stamp("kernarg")
set_w1_base()
W1 = Stager(srdW1, vD, sWOFF, sWBASE, sWEND, W1_KS, 16, False, fl(args.w1fl), "w1")
W1.start()
publish_nonce()
if args.pf1:
    set_rot(16, args.pf1rot, sDT1)
    a(f"s_mul_i32 s{sT2}, s{sROT}, {W1_KS}")
    a(f"s_add_u32 s{sW2E}, s{sT2}, s{sWBASE}")
    def pf_piece(i, q):
        a(f"buffer_load_dwordx4 v[{128+4*((4*i+q)%8)}:{131+4*((4*i+q)%8)}], v{vD+q}, s[{srdW1}:{srdW1+3}], s{sW2E} offen{fl(args.w1fl)}")
        vm.issue("pf1")
        if q == 3:
            a(f"s_add_u32 s{sW2E}, s{sW2E}, {W1_KS}")
            a(f"s_cmp_eq_u32 s{sW2E}, s{sWEND}")
            a(f"s_cselect_b32 s{sW2E}, s{sWBASE}, s{sW2E}")
    for i in range(args.pf1):
        for q in range(4): bg.add(lambda i=i, q=q: pf_piece(i, q))
if args.npre: W1.dma_bg(args.npre)
bg.every = 6
ln_addresses()
tr_addresses()
bg.flush()
vm.wait("x")
stamp("x landed")
if args.nln: W1.dma_bg(args.nln)
bg.every = args.lnevery; bg.cnt = 0
ln_compute()
bg.flush()
ln_store()
nonce_issue()
stamp("h stores issued")
W1.fill(W1.nd + args.npost)
a(f"s_lshl_b32 s{sT0}, s{sFT}, 7")
a(f"s_lshl_b32 s{sT1}, s{sWV}, 5")
a(f"s_add_u32 s{sT0}, s{sT0}, s{sT1}")
a(f"v_lshrrev_b32 v12, 4, v{vLANE}")
a("v_lshlrev_b32 v12, 3, v12")
a(f"buffer_load_dwordx2 v[{vB1}:{vB1+1}], v12, s[{srdB1}:{srdB1+3}], s{sT0} offen")
vm.issue("b1")
vm.wait("nonce")
nonce_finish("L_nonce")
a("s_barrier")
a(f"s_lshl_b32 s{sT2}, s{sB}, 6")
a(f"s_add_u32 s{sT2}, s{sT2}, {FL_LN}")
store_flag("L_flag_ln", sT2)
stamp("LN flag stored")
a(f"s_cmp_eq_u32 s{sROLE}, 0")
a("s_cbranch_scc1 L_idle")
i_branch = nstamp[0]
set_h_base()
a(f"s_lshl_b32 s{sT2}, s{sWV}, 12")
a(f"s_add_u32 s{sGST}, s{sT2}, {FL_LN}")
a(f"v_lshlrev_b32 v{vPOLL+2}, 6, v{vLANE}")
W1.advance_to(*pair(args.pre1))
poll_issue(sGST)
W1.advance_to(*pair(args.pre1b))
stamp("poll check")
poll_check("L_poll_ln", sGST)
stamp("LN flags seen")
main_prefill(1, 16, False)
W2 = Stager(srdW2, vD2, sW2R, sW2B, sW2E, W2_KS, 14, True, fl(args.w2fl), "w2")
queue_lines(epilogue_addresses)
bg.every = args.addrevery; bg.cnt = 0
tailq = []
def tail():
    assert W1.nd == W1.nks
    if not W2.started: W2.start()
    if tailq: tailq.pop(0)()
ntail = 5 if args.tailpieces else 0
for pos in range(ntail):
    for q in range(4): tailq.append(lambda pos=pos, q=q: W2.piece(pos, q, False))
W2.nd = ntail
main_loop(1, 16, False, W1, tail if ntail else None)
assert not tailq
if not W2.started: W2.start()
stamp("main1 done")
W2.dma_bg(args.n2pre - W2.nd)
bg.every = args.epevery; bg.cnt = 0
def after_reduce():
    W2.dma_bg(args.ep3)
    W2.tr_bg(args.eptr)
epilogue1(after_reduce)
stamp("G stores issued")
a("s_waitcnt lgkmcnt(0)")
def g_poll_setup():
    set_g_base()
    a(f"s_mul_i32 s{sT2}, s{sWV}, 7")
    a(f"s_cmp_eq_u32 s{sWV}, 3")
    a(f"s_cselect_b32 s{sT3}, 1, 0")
    a(f"s_sub_u32 s{sT2}, s{sT2}, s{sT3}")
    a(f"s_lshl_b32 s{sT3}, s{sDT}, 5")
    a(f"s_add_u32 s{sT2}, s{sT2}, s{sT3}")
    a(f"s_lshl_b32 s{sT2}, s{sT2}, 6")
    a(f"s_add_u32 s{sGST}, s{sT2}, {FL_G}")
    a(f"v_min_u32 v{vPOLL+2}, 6, v{vLANE}")
    a(f"v_lshlrev_b32 v{vPOLL+2}, 6, v{vPOLL+2}")
g_poll_setup()
if args.pre2:
    W2.advance_to(*pair(args.pre2))
else:
    assert W2.nd + args.n2fill - NSLOT <= W2.nt
    W2.fill(W2.nd + args.n2fill)
    for _ in range(args.k2pre): W2.tr()
vm.wait("gst")
a("s_barrier")
a(f"s_lshl_b32 s{sT2}, s{sDT1}, 5")
a(f"s_add_u32 s{sT2}, s{sT2}, s{sFT}")
a(f"s_lshl_b32 s{sT2}, s{sT2}, 6")
a(f"s_add_u32 s{sT2}, s{sT2}, {FL_G}")
store_flag("L_flag_g", sT2)
stamp("G flag stored")
j_nd, j_nt = pair(args.join2)
poll_issue(sGST)
W2.advance_to(j_nd, j_nt)
stamp("w2 staged")
vm_join = list(vm.ops)
i_join = nstamp[0]
a("s_branch L_gemm2")
a("L_idle:")
nstamp[0] = i_branch
a("s_waitcnt vmcnt(0)")
vm.drained()
epilogue_addresses()
if args.pfmode != "none":
    a(f"s_lshl_b32 s{sT2}, s{sWV}, 12")
    a(f"s_add_u32 s{sGST}, s{sT2}, {FL_LN}")
    a(f"v_lshlrev_b32 v{vPOLL+2}, 6, v{vLANE}")
    if args.pfwait:
        poll_issue(sGST)
        poll_check("L_poll_idle", sGST)
    a(f"s_and_b32 s{sT0}, s{sB}, 7")
    a(f"s_and_b32 s{sT1}, s{sB}, 1")
    a(f"s_add_u32 s{sT1}, s{sT1}, 8")
    a(f"s_lshr_b32 s{sT2}, s{sB}, 5")
    a(f"s_cmp_eq_u32 s{sT2}, 7")
    a(f"s_cselect_b32 s{sT0}, s{sT0}, s{sT1}")
    a(f"s_lshl_b32 s{sT0}, s{sT0}, 2")
    a(f"s_bfe_u32 s{sT1}, s{sB}, 0x20003")
    a(f"s_add_u32 s{sT0}, s{sT0}, s{sT1}")
    a(f"s_lshl_b32 s{sT0}, s{sT0}, 2")
    a(f"s_add_u32 s{sT0}, s{sT0}, s{sWV}")
    a(f"s_mul_i32 s{sT0}, s{sT0}, {44*1024}")
    a(f"s_mov_b32 s{sT1}, 44")
    a("L_pf_loop:")
    a(f"buffer_load_dwordx4 v[20:23], v{vA}, s[{srdW2}:{srdW2+3}], s{sT0} offen")
    a(f"s_add_u32 s{sT0}, s{sT0}, 1024")
    a(f"s_sub_u32 s{sT1}, s{sT1}, 1")
    a(f"s_cmp_lg_u32 s{sT1}, 0")
    a("s_cbranch_scc1 L_pf_loop")
    a("s_waitcnt vmcnt(0)")
vm.drained()
stamp("idle: prefetch done")
W2i = Stager(srdW2, vD2, sW2R, sW2B, sW2E, W2_KS, 14, True, fl(args.w2fl), "w2i")
W2i.start()
W2i.advance_to(j_nd, j_nt)
assert (W2i.nd, W2i.nt) == (W2.nd, W2.nt), ((W2i.nd, W2i.nt), (W2.nd, W2.nt))
g_poll_setup()
poll_issue(sGST)
a("s_waitcnt vmcnt(0)")
while nstamp[0] < i_join and args.stamps: stamp("idle")
if args.probe in ("poll_check", "LN_flags_seen", "main1_done", "G_stores_issued", "G_flag_stored", "w2_staged"):
    a("s_mov_b32 s89, s90")
a("L_gemm2:")
vm.ops = vm_join
poll_check("L_poll_g", sGST)
stamp("G flags seen")
bg.every = 0
main_prefill(2, 14, True)
main_loop(2, 14, True, W2)
stamp("main2 done")
epilogue2()
stamp("end")
write_stamps("L_st", STAMP)
if args.light:
    a("s_waitcnt vmcnt(0)")
    a("s_memrealtime s[92:93]")
    a("s_waitcnt lgkmcnt(0)")
    a(f"s_lshl_b32 s{sT0}, s{sB}, 2")
    a(f"s_add_u32 s{sT0}, s{sT0}, s{sWV}")
    a(f"s_lshl_b32 s{sT0}, s{sT0}, 3")
    a(f"s_add_u32 s{sT0}, s{sT0}, {STAMP}")
    a("v_mov_b32 v16, s90"); a("v_mov_b32 v17, s92"); a("v_mov_b32 v12, 0")
    a("s_mov_b64 exec, 1")
    a(f"buffer_store_dwordx2 v[16:17], v12, s[{srdWS}:{srdWS+3}], s{sT0} offen")
if args.probe.startswith("late"):
    lo, hi = int(args.probe[4]), int(args.probe[5])
    a(f"s_sub_u32 s89, s90, s{sNON}")
    a("s_ashr_i32 s88, s89, 31"); a("s_andn2_b32 s89, s89, s88")
    a(f"s_and_b32 s88, s{sB}, 7")
    a(f"s_cmp_ge_u32 s88, {lo}"); a("s_cselect_b32 s89, s89, 0")
    a(f"s_cmp_le_u32 s88, {hi}"); a("s_cselect_b32 s89, s89, 0")
    a("s_add_u32 s89, s89, s90")
if args.probe:
    a("s_waitcnt vmcnt(0)")
    a("s_sub_u32 s89, s89, s90")
    a("s_lshl_b32 s89, s89, 2")
    a("s_add_u32 s89, s89, 3000")
    a("L_probe:")
    a("s_memrealtime s[86:87]")
    a("s_waitcnt lgkmcnt(0)")
    a("s_sub_u32 s86, s86, s90")
    a("s_cmp_lt_u32 s86, s89")
    a("s_cbranch_scc1 L_probe")
if args.padto:
    a("s_waitcnt vmcnt(0)")
    a("L_pad:")
    a("s_memrealtime s[88:89]")
    a("s_waitcnt lgkmcnt(0)")
    a("s_sub_u32 s88, s88, s90")
    a(f"s_cmp_lt_u32 s88, {args.padto}")
    a("s_cbranch_scc1 L_pad")
a("L_end:")
a("s_endpgm")
a("L_code_end:")
kernel_desc(a, MAIN, 512, 102, 256)
print(a.text())
```

```python
import sys, argparse, struct
sys.path.insert(0, "tools")
from asmlib import *

ap = argparse.ArgumentParser()
ap.add_argument("--stamps", type=int, default=0)
ap.add_argument("--mstamps", type=int, default=0)
ap.add_argument("--cyc", type=int, default=0)
ap.add_argument("--light", type=int, default=0)
ap.add_argument("--padto", type=int, default=0)
ap.add_argument("--probe", default="")
ap.add_argument("--exact", type=int, default=1)
ap.add_argument("--na", type=int, default=4)
ap.add_argument("--pfwait", type=int, default=0)
ap.add_argument("--npre", type=int, default=0)
ap.add_argument("--nln", type=int, default=0)
ap.add_argument("--w2pf", type=int, default=1)
ap.add_argument("--lnevery", type=int, default=10)
ap.add_argument("--kpre", type=int, default=3)
ap.add_argument("--n2pre", type=int, default=6)
ap.add_argument("--epevery", type=int, default=12)
ap.add_argument("--pf1", type=int, default=0)
ap.add_argument("--pf1rot", default="qd:8")
ap.add_argument("--npost", type=int, default=2)
ap.add_argument("--pre1", default="11:2")
ap.add_argument("--pre1b", default="12:3")
ap.add_argument("--join2", default="14:5")
ap.add_argument("--pfmode", default="mall")
ap.add_argument("--pollat", type=int, default=13)
ap.add_argument("--pollat2", type=int, default=12)
ap.add_argument("--eptr", type=int, default=3)
ap.add_argument("--tailpieces", type=int, default=1)
ap.add_argument("--ep3", type=int, default=3)
ap.add_argument("--lntr", type=int, default=2)
ap.add_argument("--addrevery", type=int, default=3)
ap.add_argument("--n2fill", type=int, default=2)
ap.add_argument("--k2pre", type=int, default=2)
ap.add_argument("--sleep", type=int, default=1)
ap.add_argument("--rot1", default="qd:8")
ap.add_argument("--rot2", default="none:2")
ap.add_argument("--xfl", default="none")
ap.add_argument("--w1fl", default="none")
ap.add_argument("--w2fl", default="none")
ap.add_argument("--ofl", default="none")
ap.add_argument("--pre2", default="")
ap.add_argument("--bglate", type=int, default=0)
ap.add_argument("--wsame", type=int, default=0)
ap.add_argument("--nomfma", type=int, default=0)
ap.add_argument("--align", type=int, default=0)
ap.add_argument("--shift", type=int, default=0)
ap.add_argument("--deep1", type=int, default=0)
ap.add_argument("--deep2", type=int, default=0)
ap.add_argument("--epseq", default="")
ap.add_argument("--stswap", type=int, default=3)
ap.add_argument("--map1", default="2d")
ap.add_argument("--astride", type=int, default=5120)
ap.add_argument("--asc", default="sc1")
ap.add_argument("--touch", type=int, default=0)
args = ap.parse_args()

def fl(s): return "" if s == "none" else " " + s.replace("+", " ")
def f32hex(x): return "0x%08x" % struct.unpack("<I", struct.pack("<f", x))[0]

S, D, F = 2048, 640, 1728
H_OFF   = 0
G_OFF   = 0x280000
FL_LN   = 0x500000
FL_G    = 0x508000
STAMP   = 0x8000000
W1_ROW, W2_ROW = 3456, 4096
W1_KS, W2_KS = 32 * W1_ROW, 32 * W2_ROW
RING = 36864
NSLOT = 9
T_OFF = 147456
LDS_BYTES = 163840
SPIN_MAX = 200000
SC = " sc1"
OOB = 0x10000000

sB, sWV = 2, 3
sDT, sFT, sST, sROLE = 4, 5, 6, 7
srdX, srdW1, srdW2, srdB1, srdB2, srdOUT, srdDBG, srdWS = 8, 12, 16, 20, 24, 28, 32, 36
sNON = 40
sT0, sT1, sT2, sT3 = 42, 43, 44, 45
sRING, sOFF = 46, 47
sKARG = 48
sSTAMP = 64
sDT1 = 94
sW2B, sW2R = 95, 99
sWOFF, sAOFF, sSPIN = 96, 97, 98
sEXEC = 100
sWBASE, sWEND, sABASE, sAEND, sROT, sW2E, sGST, sOST = 48, 49, 50, 51, 52, 53, 54, 55
sIDX = 56
sKX = 57

vTID, vLANE, vA, vA2 = 0, 1, 2, 3
vD, vT = 4, 8
vB1 = 14
ABUF, NA = 16, args.na
assert NA <= 5
vD2 = 128
vB2 = 132
vGO, vGL = 133, 134
vOO, vOL = 135, 136
vRW = 137
vRR = 141
vC = 144
ACC = 176
def acc(c, mi): return ACC + (c * 5 + mi) * 4
def abuf(slot, mi): return ABUF + slot * 20 + mi * 4
P = lambda r: f"v[{r}:{r+1}]"

a = Asm()

class VM:
    def __init__(self): self.ops = []
    def issue(self, tag, optional=False): self.ops.append((tag, optional))
    def has(self, tag): return any(t == tag for t, o in self.ops)
    def wait(self, tag):
        idx = max(i for i, (t, o) in enumerate(self.ops) if t == tag)
        n = sum(1 for t, o in self.ops[idx+1:] if not o)
        assert n <= 63, (tag, n)
        a(f"s_waitcnt vmcnt({n})")
        self.ops = self.ops[idx+1:]
    def drained(self): self.ops = []
vm = VM()

class BG:
    def __init__(self): self.q = []; self.cnt = 0; self.every = 0
    def add(self, fn): self.q.append(fn)
    def step(self):
        if self.q: self.q.pop(0)()
    def flush(self):
        while self.q: self.step()
    def tick(self, n=1):
        self.cnt += n
        while self.every and self.cnt >= self.every and self.q:
            self.cnt -= self.every; self.step()
bg = BG()
def fg(s):
    a(s); bg.tick()
def queue_lines(fn):
    save = a.lines; a.lines = []
    ops_before = len(vm.ops)
    fn()
    lines = a.lines; a.lines = save
    vmops = vm.ops[ops_before:]; del vm.ops[ops_before:]
    groups = []
    for l in lines:
        op = l.split()[0] if l.split() else ""
        if groups and op in ("s_cselect_b32", "s_addc_u32", "s_cbranch_scc0", "s_cbranch_scc1"): groups[-1].append(l)
        else: groups.append([l])
    def emit(g):
        for l in g:
            a(l)
            if l.startswith("buffer_"): vm.issue(*vmops.pop(0))
    for g in groups: bg.add(lambda g=g: emit(g))

nstamp = [0]
NSTAMPS = 28
stamp_names = {}
def stamp(name):
    if args.light:
        if name == "start": a("s_memrealtime s[90:91]")
        return
    if args.probe:
        if name == "start":
            a("s_memrealtime s[90:91]")
        elif name == args.probe.replace("_", " "):
            a("s_memrealtime s[92:93]"); a("s_waitcnt lgkmcnt(0)"); a("s_mov_b32 s89, s92")
        return
    if not args.stamps: return
    i = nstamp[0]; nstamp[0] += 1
    assert i < NSTAMPS
    stamp_names.setdefault(i, name)
    a(("s_memtime" if args.cyc else "s_memrealtime") + " s[92:93]")
    a("s_waitcnt lgkmcnt(0)")
    a(f"s_mov_b32 s{sSTAMP+i}, s92")

def write_stamps(label, base):
    if not args.stamps: return
    a(f"s_cmp_lg_u32 s{sWV}, {args.stamps - 1}")
    a(f"s_cbranch_scc1 {label}_nostamp")
    a(f"s_mul_i32 s{sT0}, s{sB}, 128")
    a(f"s_add_u32 s{sT0}, s{sT0}, {base}")
    a("v_mov_b32 v12, 0")
    a("s_mov_b64 exec, 1")
    for i in range(0, NSTAMPS, 4):
        for k in range(4):
            if i + k < nstamp[0]: a(f"v_mov_b32 v{16+k}, s{sSTAMP + i + k}")
            else:                 a(f"v_mov_b32 v{16+k}, 0")
        a(f"buffer_store_dwordx4 v[16:19], v12, s[{srdWS}:{srdWS+3}], s{sT0} offen offset:{i*4}")
        a("s_nop 2")
    a(f"{label}_nostamp:")
    for i in sorted(stamp_names): a(f"; STAMPNAME {i} {stamp_names[i]}")

def mk_srd(d, p, nbytes):
    a(f"s_mov_b32 s{d}, s{p}")
    a(f"s_and_b32 s{d+1}, s{p+1}, 0xffff")
    a(f"s_mov_b32 s{d+2}, {nbytes}")
    a(f"s_mov_b32 s{d+3}, 0x00020000")

def prologue(name, endlabel):
    kernel_begin(a, name)
    stamp("start")
    for _ in range(args.shift): a("s_nop 0")
    if args.padto: a("s_memrealtime s[90:91]")
    a(f"s_cmp_ge_u32 s{sB}, 256")
    a(f"s_cbranch_scc1 {endlabel}")
    a(f"s_load_dwordx16 s[{sKARG}:{sKARG+15}], s[0:1], 0")
    a(f"v_and_b32 v{vLANE}, 63, v{vTID}")
    a(f"v_lshrrev_b32 v12, 6, v{vTID}")
    a(f"v_lshlrev_b32 v{vA}, 4, v{vLANE}")
    a(f"v_readfirstlane_b32 s{sWV}, v12")
    a(f"v_add_u32 v{vA2}, 0x1000, v{vA}")
    a(f"s_getpc_b64 s[{sT0}:{sT0+1}]")
    a("L_pf_base:")
    a("s_nop 2")
    a(f"s_lshr_b32 s{sT2}, s{sB}, 3")
    a(f"s_and_b32 s{sT2}, s{sT2}, 7")
    a(f"s_lshl_b32 s{sT2}, s{sT2}, 2")
    a(f"s_add_u32 s{sT2}, s{sT2}, s{sWV}")
    a(f"s_min_u32 s{sT2}, s{sT2}, (L_code_end - L_pf_base) / 1024 - 1")
    a(f"s_lshl_b32 s{sT2}, s{sT2}, 10")
    a(f"s_add_u32 s{sT0}, s{sT0}, s{sT2}")
    a(f"s_addc_u32 s{sT1}, s{sT1}, 0")
    a(f"global_load_dwordx4 v[124:127], v{vA}, s[{sT0}:{sT0+1}]")
    a(f"s_and_b32 s{sT0}, s{sB}, 1")
    a(f"s_lshl_b32 s{sT0}, s{sT0}, 2")
    a(f"s_bfe_u32 s{sT2}, s{sB}, 0x20003")
    a(f"s_add_u32 s{sDT}, s{sT0}, s{sT2}")
    a(f"s_lshr_b32 s{sT1}, s{sB}, 5")
    a(f"s_bfe_u32 s{sT3}, s{sB}, 0x20001")
    a(f"s_lshl_b32 s{sT2}, s{sT3}, 3")
    if args.stswap >= 0:
        a(f"s_cmp_eq_u32 s{sT1}, 7")
        a(f"s_cselect_b32 s{sT0}, {args.stswap}, s{sT1}")
        a(f"s_cmp_eq_u32 s{sT1}, {args.stswap}")
        a(f"s_cselect_b32 s{sT0}, 7, s{sT0}")
        a(f"s_add_u32 s{sST}, s{sT2}, s{sT0}")
    else:
        a(f"s_add_u32 s{sST}, s{sT2}, s{sT1}")
    if args.map1 == "2d":
        a(f"s_mov_b32 s{sDT1}, s{sDT}")
        a(f"s_mul_i32 s{sT2}, s{sT3}, 7")
        a(f"s_add_u32 s{sFT}, s{sT2}, s{sT1}")
        a(f"s_cmp_eq_u32 s{sT3}, 3")
        a(f"s_cselect_b32 s{sT2}, 6, 7")
        a(f"s_cmp_lt_u32 s{sT1}, s{sT2}")
        a(f"s_cselect_b32 s{sROLE}, 1, 0")
    else:
        a(f"s_bfe_u32 s{sDT1}, s{sB}, 0x30003")
        a(f"s_lshr_b32 s{sT0}, s{sB}, 6")
        a(f"s_lshl_b32 s{sT0}, s{sT0}, 3")
        a(f"s_and_b32 s{sT2}, s{sB}, 7")
        a(f"s_add_u32 s{sFT}, s{sT0}, s{sT2}")
        a(f"s_cmp_lt_u32 s{sFT}, 27")
        a(f"s_cselect_b32 s{sROLE}, 1, 0")
    a(f"s_mul_i32 s{sRING}, s{sWV}, {RING}")
    a(f"v_lshrrev_b32 v12, 5, v{vLANE}")
    a(f"v_mul_u32_u24 v12, 1280, v12")
    a(f"v_and_b32 v13, 31, v{vLANE}")
    a(f"v_lshl_add_u32 v14, v13, 4, v12")
    a(f"v_lshl_add_u32 v15, v13, 3, v12")
    dma_offsets(vD, W1_ROW)
    a(f"s_lshl_b32 s{sT0}, s{sB}, 3")
    a(f"s_lshl_b32 s{sT1}, s{sWV}, 1")
    a(f"s_add_u32 s{sT0}, s{sT0}, s{sT1}")
    a(f"s_mul_i32 s{sOFF}, s{sT0}, 1280")
    a("s_waitcnt lgkmcnt(0)")
    mk_srd(srdX, sKARG+0, S*D*2)
    a(f"buffer_load_dwordx4 v[{XR}:{XR+3}], v14, s[{srdX}:{srdX+3}], s{sOFF} offen{fl(args.xfl)}")
    a(f"buffer_load_dwordx4 v[{XR+4}:{XR+7}], v14, s[{srdX}:{srdX+3}], s{sOFF} offen offset:512{fl(args.xfl)}")
    a(f"buffer_load_dwordx2 v[{XR+8}:{XR+9}], v15, s[{srdX}:{srdX+3}], s{sOFF} offen offset:1024{fl(args.xfl)}")
    for _ in range(3): vm.issue("x")
    mk_srd(srdW1,  sKARG+2,  S*F*2)
    mk_srd(srdB1,  sKARG+4,  F*2)
    mk_srd(srdW2,  sKARG+6,  F*S*2)
    mk_srd(srdDBG, sKARG+12, 256)
    mk_srd(srdWS,  sKARG+14, 268435456)
    mk_srd(srdB2,  sKARG+8,  S*2)
    mk_srd(srdOUT, sKARG+10, S*D*2)

def dma_offsets(dst, row):
    a(f"v_lshrrev_b32 v12, 3, v{vLANE}")
    a(f"v_and_b32 v13, 2, v12")
    a(f"v_mul_u32_u24 v12, {row}, v12")
    a(f"v_and_b32 v{dst+2}, 7, v{vLANE}")
    a(f"v_xor_b32 v13, v13, v{dst+2}")
    a(f"v_lshl_add_u32 v{dst}, v13, 4, v12")
    a(f"v_xor_b32 v13, 4, v13")
    a(f"v_lshl_add_u32 v{dst+1}, v13, 4, v12")
    a(f"v_add_u32 v{dst+1}, {8*row}, v{dst+1}")
    a(f"v_add_u32 v{dst+2}, {16*row}, v{dst}")
    a(f"v_add_u32 v{dst+3}, {16*row}, v{dst+1}")

def tr_addresses():
    t0, t1, t2, t3 = 112, 113, 114, 115
    fg(f"v_lshrrev_b32 v{t0}, 4, v{vLANE}")
    fg(f"v_bfe_u32 v{t1}, v{vLANE}, 2, 2")
    fg(f"v_lshl_add_u32 v{t2}, v{t0}, 3, v{t1}")
    fg(f"v_lshlrev_b32 v{t2}, 7, v{t2}")
    fg(f"v_and_b32 v{t3}, 1, v{vLANE}")
    fg(f"v_lshl_add_u32 v{t2}, v{t3}, 3, v{t2}")
    fg(f"v_add_u32 v{t2}, s{sRING}, v{t2}")
    fg(f"v_and_b32 v{t0}, 1, v{t0}")
    fg(f"v_lshlrev_b32 v{t0}, 2, v{t0}")
    fg(f"v_and_b32 v{t1}, 2, v{t1}")
    fg(f"v_or_b32 v{t0}, v{t0}, v{t1}")
    fg(f"v_bfe_u32 v{t1}, v{vLANE}, 1, 1")
    fg(f"v_xor_b32 v{t0}, v{t0}, v{t1}")
    for c in range(4):
        a(f"s_add_u32 s{sT0}, s{sWV}, {c}")
        a(f"s_and_b32 s{sT0}, s{sT0}, 3")
        a(f"s_lshl_b32 s{sT0}, s{sT0}, 1")
        fg(f"v_xor_b32 v{t1}, s{sT0}, v{t0}")
        fg(f"v_lshl_add_u32 v{vT+c}, v{t1}, 4, v{t2}")

def m0_gap():
    if a.lines[-1].startswith("s_add_u32 m0"): a("s_nop 0")

class Stager:
    def __init__(self, srd, dreg, run, base, end, kstride, nks, optional_last, flags, tag):
        self.srd, self.dreg, self.run, self.base, self.end = srd, dreg, run, base, end
        self.kstride, self.nks, self.opt, self.flags, self.tag = kstride, nks, optional_last, flags, tag
        self.nd = 0; self.nt = 0; self.uid = 0; self.started = False
    def lds(self, pos, q): return (pos % NSLOT)*4096 + q*1024
    def start(self):
        a(f"s_add_u32 m0, s{sRING}, {self.lds(0, 0)}")
        a("s_nop 0")
        self.started = True
    def piece(self, pos, q, burst):
        assert self.started
        opt = self.is_opt(pos)
        off = self.run
        if opt:
            off = sOFF
            if q == 0: a(f"s_add_u32 s{sOFF}, s{self.base}, {pos*self.kstride}")
        m0_gap()
        a(f"buffer_load_dwordx4 v{self.dreg+q}, s[{self.srd}:{self.srd+3}], s{off} offen{self.flags} lds")
        vm.issue((self.tag, pos), opt)
        npos, nq = (pos, q+1) if q < 3 else (pos+1, 0)
        last = npos >= self.nks
        if not last: a(f"s_add_u32 m0, s{sRING}, {self.lds(npos, nq)}")
        if q == 3 and not opt:
            a(f"s_add_u32 s{self.run}, s{self.run}, {self.kstride}")
            a(f"s_cmp_eq_u32 s{self.run}, s{self.end}")
            a(f"s_cselect_b32 s{self.run}, s{self.base}, s{self.run}")
        elif burst and not last:
            a("s_nop 0")
    def is_opt(self, pos): return self.opt and pos == self.nks - 1
    def dma(self):
        pos = self.nd; self.nd += 1
        body = lambda: [self.piece(pos, q, True) for q in range(4)]
        if self.is_opt(pos): guarded(f"L_{self.tag}_d{self.uid}", body); self.uid += 1
        else: body()
    def dma_bg(self, n):
        for _ in range(n):
            pos = self.nd; self.nd += 1
            assert not self.is_opt(pos)
            for q in range(4): bg.add(lambda pos=pos, q=q: self.piece(pos, q, False))
    def tr_body(self, pos):
        if vm.has((self.tag, pos)): vm.wait((self.tag, pos))
        for c in range(4):
            for t in range(2):
                r = 16*pos + 4*c + 2*t
                a(f"ds_read_b64_tr_b16 a[{r}:{r+1}], v{vT+c} offset:{(pos % NSLOT)*4096 + t*512}")
    def tr(self):
        pos = self.nt; self.nt += 1
        if self.is_opt(pos): guarded(f"L_{self.tag}_t{self.uid}", lambda: self.tr_body(pos)); self.uid += 1
        else: self.tr_body(pos)
    def tr_bg(self, n):
        for _ in range(n):
            pos = self.nt; self.nt += 1
            assert not self.is_opt(pos)
            bg.add(lambda pos=pos: self.tr_body(pos))
    def refill(self, settled=False):
        waited = settled
        lim = self.nt if settled else self.nt - 1
        while self.nd < self.nks and self.nd - NSLOT < lim:
            if self.nd >= NSLOT and not waited: a("s_waitcnt lgkmcnt(8)"); waited = True
            self.dma()
    def step(self):
        self.refill()
        if self.nt < self.nks: self.tr()
        self.refill()
    def fill(self, limit=NSLOT):
        while self.nd < min(limit, self.nks): self.dma()
    def advance_to(self, nd, nt):
        assert nd - NSLOT <= nt
        while self.nd < nd or self.nt < nt:
            if self.nd < nd and self.nd < NSLOT: self.dma()
            elif self.nd < nd and self.nd - NSLOT < self.nt - 1:
                a("s_waitcnt lgkmcnt(8)"); self.dma()
            elif self.nt < nt: self.tr()
            else:
                a("s_waitcnt lgkmcnt(0)"); self.dma()
    def request_all(self):
        while self.nd < self.nks: self.step()
    def finish(self):
        while self.nt < self.nks or self.nd < self.nks: self.step()
        a("s_waitcnt lgkmcnt(0)")

def guarded(label, fn):
    a(f"s_cmp_ge_u32 s{sWV}, 2")
    a(f"s_cbranch_scc1 {label}")
    fn()
    a(f"{label}:")

def set_rot(n, spec, dreg):
    mode, g = spec.split(":"); g = int(g)
    if mode == "none":
        a(f"s_mov_b32 s{sROT}, 0"); return
    if mode == "d": a(f"s_mov_b32 s{sT0}, s{dreg}")
    else:
        a(f"s_lshr_b32 s{sT0}, s{sB}, 5")
        if mode == "qd": a(f"s_add_u32 s{sT0}, s{sT0}, s{dreg}")
    a(f"s_and_b32 s{sT0}, s{sT0}, {g-1}")
    a(f"s_mul_i32 s{sT0}, s{sT0}, {n}")
    a(f"s_lshr_b32 s{sROT}, s{sT0}, {g.bit_length()-1}")
def set_run(run, base, end, n, stride):
    a(f"s_add_u32 s{end}, s{base}, {n*stride}")
    a(f"s_mul_i32 s{run}, s{sROT}, {stride}")
    a(f"s_add_u32 s{run}, s{run}, s{base}")
def set_w1_base():
    set_rot(16, args.rot1, sDT1)
    a(f"s_lshl_b32 s{sT0}, s{sWV}, 4")
    a(f"s_mul_i32 s{sWBASE}, s{sT0}, {W1_KS}")
    a(f"s_lshl_b32 s{sT0}, s{sFT}, 7")
    if args.wsame & 1: a(f"s_mov_b32 s{sT0}, 0")
    a(f"s_add_u32 s{sWBASE}, s{sWBASE}, s{sT0}")
    a(f"s_cmp_eq_u32 s{sROLE}, 0")
    a(f"s_cselect_b32 s{sWBASE}, {OOB}, s{sWBASE}")
    set_run(sWOFF, sWBASE, sWEND, 16, W1_KS)
def set_h_base():
    set_rot(16, args.rot1, sDT1)
    a(f"s_lshl_b32 s{sT0}, s{sDT1}, 6")
    a(f"s_lshl_b32 s{sT1}, s{sWV}, 4")
    a(f"s_add_u32 s{sT0}, s{sT0}, s{sT1}")
    a(f"s_mul_i32 s{sABASE}, s{sT0}, 5120")
    if H_OFF: a(f"s_add_u32 s{sABASE}, s{sABASE}, {H_OFF}")
    set_run(sAOFF, sABASE, sAEND, 16, 5120)
def k2_start(dst):
    a(f"s_mul_i32 s{dst}, s{sWV}, 14")
    a(f"s_cmp_eq_u32 s{sWV}, 3")
    a(f"s_cselect_b32 s{sT3}, 1, 0")
    a(f"s_sub_u32 s{dst}, s{dst}, s{sT3}")
def set_w2_base():
    set_rot(13, args.rot2, sDT)
    k2_start(sT0)
    a(f"s_mul_i32 s{sW2B}, s{sT0}, {W2_KS}")
    a(f"s_lshl_b32 s{sT0}, s{sST}, 7")
    if args.wsame & 2: a(f"s_mov_b32 s{sT0}, 0")
    a(f"s_add_u32 s{sW2B}, s{sW2B}, s{sT0}")
    set_run(sW2R, sW2B, sW2E, 13, W2_KS)
def set_g_base():
    set_rot(13, args.rot2, sDT)
    k2_start(sT0)
    a(f"s_mul_i32 s{sT1}, s{sDT}, 54")
    a(f"s_add_u32 s{sT0}, s{sT0}, s{sT1}")
    a(f"s_mul_i32 s{sABASE}, s{sT0}, 5120")
    a(f"s_add_u32 s{sABASE}, s{sABASE}, {G_OFF}")
    set_run(sAOFF, sABASE, sAEND, 13, 5120)

XR = 16
FV = 28
DV = 48
HP = 68
WA = 80
GA = 92
TV = 100
def ln_addresses():
    fg(f"v_and_b32 v{TV}, 31, v{vLANE}")
    fg(f"v_lshrrev_b32 v{TV+1}, 5, v{vLANE}")
    fg(f"v_lshlrev_b32 v{TV+1}, 1, v{TV+1}")
    a(f"s_lshl_b32 s{sT0}, s{sWV}, 2")
    a(f"s_add_u32 s{sT0}, s{sT0}, {T_OFF}")
    fg(f"v_and_b32 v{TV+2}, 7, v{TV}")
    fg(f"v_xor_b32 v{TV+2}, v{TV+2}, v{TV+1}")
    fg(f"v_lshlrev_b32 v{TV+3}, 7, v{TV}")
    a(f"v_add_u32 v{TV+3}, s{sT0}, v{TV+3}")
    a(f"v_lshrrev_b32 v{TV+7}, 1, v{TV}")
    a(f"v_lshlrev_b32 v{TV+8}, 7, v{TV+7}")
    fg(f"v_add_u32 v{TV+8}, s{sT0}, v{TV+8}")
    for k in range(4):
        base = 4096 if k >= 2 else 0
        e = 4 if (k & 1) else 0
        for o in range(2):
            fg(f"v_xor_b32 v{TV+4}, {e + o}, v{TV+2}")
            fg(f"v_lshl_add_u32 v{WA + 2*k + o}, v{TV+4}, 4, v{TV+3}")
            if base: fg(f"v_add_u32 v{WA + 2*k + o}, {base}, v{WA + 2*k + o}")
    fg(f"v_and_b32 v{TV+5}, 1, v{TV}")
    fg(f"v_lshl_add_u32 v{TV+5}, v{TV+5}, 2, v{TV+1}")
    fg(f"v_and_b32 v{TV+6}, 7, v{TV+7}")
    fg(f"v_xor_b32 v{TV+5}, v{TV+5}, v{TV+6}")
    fg(f"v_add_u32 v{TV+8}, 8192, v{TV+8}")
    fg(f"v_lshl_add_u32 v{WA+8}, v{TV+5}, 4, v{TV+8}")
    fg(f"v_xor_b32 v{TV+5}, 1, v{TV+5}")
    fg(f"v_lshl_add_u32 v{WA+9}, v{TV+5}, 4, v{TV+8}")
    for i in range(3):
        fg(f"v_add_u32 v{TV}, {256*i}, v{vTID}")
        fg(f"v_lshrrev_b32 v{TV+1}, 3, v{TV}")
        fg(f"v_xor_b32 v{TV+1}, v{TV+1}, v{TV}")
        fg(f"v_and_b32 v{TV+1}, 7, v{TV+1}")
        fg(f"v_and_b32 v{TV+2}, 0x3f8, v{TV}")
        fg(f"v_or_b32 v{TV+1}, v{TV+1}, v{TV+2}")
        fg(f"v_lshrrev_b32 v{TV+2}, 4, v{TV+1}")
        fg(f"v_mul_u32_u24 v{TV+3}, 205, v{TV+2}")
        fg(f"v_lshrrev_b32 v{TV+3}, 10, v{TV+3}")
        fg(f"v_mul_u32_u24 v{TV+3}, 315, v{TV+3}")
        fg(f"v_add_u32 v{TV+3}, v{TV+3}, v{TV+2}")
        fg(f"v_lshlrev_b32 v{TV+3}, 10, v{TV+3}")
        fg(f"v_and_b32 v{TV+1}, 15, v{TV+1}")
        fg(f"v_lshl_add_u32 v{GA+i}, v{TV+1}, 4, v{TV+3}")
    fg(f"v_lshlrev_b32 v95, 4, v{vTID}")
    fg(f"v_add_u32 v95, {T_OFF}, v95")
    a(f"s_lshr_b32 s{sT0}, s{sB}, 2")
    a(f"s_mul_i32 s{sT0}, s{sT0}, 5120")
    a(f"s_and_b32 s{sT1}, s{sB}, 3")
    a(f"s_lshl_b32 s{sT1}, s{sT1}, 8")
    a(f"s_add_u32 s{sGST}, s{sT0}, s{sT1}")
    if H_OFF: a(f"s_add_u32 s{sGST}, s{sGST}, {H_OFF}")

def reduce32(r, t):
    for dpp in ("quad_perm:[1,0,3,2]", "quad_perm:[2,3,0,1]", "row_half_mirror", "row_mirror"):
        a("s_nop 1")
        a(f"v_add_f32_dpp v{r}, v{r}, v{r} {dpp} row_mask:0xf bank_mask:0xf")
    a(f"v_mov_b32 v{t}, v{r}")
    a("s_nop 1")
    a(f"v_permlane16_swap_b32 v{r}, v{t}")
    a("s_nop 1")
    fg(f"v_add_f32 v{r}, v{r}, v{t}")

def rne_bf16(dst, src):
    a(f"v_cvt_pk_bf16_f32 v{dst}, v{src}, v{src}")
    a(f"v_and_b32 v{dst}, 0xffff0000, v{dst}")

def ln_compute():
    for m in range(10):
        fg(f"v_lshlrev_b32 v{FV+2*m}, 16, v{XR+m}")
        fg(f"v_and_b32 v{FV+2*m+1}, 0xffff0000, v{XR+m}")
    s0, s1 = TV, TV+2
    fg(f"v_pk_add_f32 {P(s0)}, {P(FV)}, {P(FV+2)}")
    fg(f"v_pk_add_f32 {P(s1)}, {P(FV+4)}, {P(FV+6)}")
    for m in range(4, 10):
        s = s0 if m % 2 == 0 else s1
        fg(f"v_pk_add_f32 {P(s)}, {P(s)}, {P(FV+2*m)}")
    fg(f"v_pk_add_f32 {P(s0)}, {P(s0)}, {P(s1)}")
    mean = TV+4
    fg(f"v_add_f32 v{mean}, v{s0}, v{s0+1}")
    reduce32(mean, TV+6)
    fg(f"v_mul_f32 v{mean}, {f32hex(1.0/640)}, v{mean}")
    fg(f"v_mov_b32 v{mean+1}, v{mean}")
    for m in range(10):
        fg(f"v_pk_add_f32 {P(DV+2*m)}, {P(FV+2*m)}, {P(mean)} neg_lo:[0,1] neg_hi:[0,1]")
    fg(f"v_pk_mul_f32 {P(s0)}, {P(DV)}, {P(DV)}")
    fg(f"v_pk_mul_f32 {P(s1)}, {P(DV+2)}, {P(DV+2)}")
    for m in range(2, 10):
        s = s0 if m % 2 == 0 else s1
        fg(f"v_pk_fma_f32 {P(s)}, {P(DV+2*m)}, {P(DV+2*m)}, {P(s)}")
    fg(f"v_pk_add_f32 {P(s0)}, {P(s0)}, {P(s1)}")
    var = TV+8
    fg(f"v_add_f32 v{var}, v{s0}, v{s0+1}")
    reduce32(var, TV+6)
    fg(f"v_mul_f32 v{var}, {f32hex(1.0/640)}, v{var}")
    rs = TV+10
    if args.exact:
        rne_bf16(var, var)
        a(f"v_add_f32 v{var}, {f32hex(1e-5)}, v{var}")
        rne_bf16(var, var)
        a(f"v_sqrt_f32 v{var}, v{var}")
        a("s_nop 0")
        rne_bf16(var, var)
        a(f"v_rcp_f32 v{rs}, v{var}")
        rne_bf16(mean, mean)
        a(f"v_mov_b32 v{mean+1}, v{mean}")
        fg(f"v_mov_b32 v{rs+1}, v{rs}")
        for m in range(10):
            fg(f"v_pk_add_f32 {P(DV+2*m)}, {P(FV+2*m)}, {P(mean)} neg_lo:[0,1] neg_hi:[0,1]")
        for m in range(10):
            fg(f"v_cvt_pk_bf16_f32 v{HP+m}, v{DV+2*m}, v{DV+2*m+1}")
        for m in range(10):
            fg(f"v_lshlrev_b32 v{DV+2*m}, 16, v{HP+m}")
            fg(f"v_and_b32 v{DV+2*m+1}, 0xffff0000, v{HP+m}")
    else:
        a(f"v_add_f32 v{var}, {f32hex(1e-5)}, v{var}")
        a(f"v_rsq_f32 v{rs}, v{var}")
        a("s_nop 0")
        fg(f"v_mov_b32 v{rs+1}, v{rs}")
    for m in range(10):
        fg(f"v_pk_mul_f32 {P(DV+2*m)}, {P(DV+2*m)}, {P(rs)}")
    for m in range(10):
        fg(f"v_cvt_pk_bf16_f32 v{HP+m}, v{DV+2*m}, v{DV+2*m+1}")
    a(f"s_mov_b32 s{sT0}, 0x05040100")
    a(f"s_mov_b32 s{sT1}, 0x07060302")
    for k in range(5):
        a(f"v_permlane32_swap_b32 v{HP+2*k}, v{HP+2*k+1}")
    a("s_nop 1")
    for k in range(5):
        a(f"v_perm_b32 v{DV+2*k}, v{HP+2*k+1}, v{HP+2*k}, s{sT0}")
        a(f"v_perm_b32 v{DV+2*k+1}, v{HP+2*k+1}, v{HP+2*k}, s{sT1}")
    for k in range(10):
        a(f"ds_write_b32 v{WA+k}, v{DV+k}")

def ln_store():
    a("s_waitcnt lgkmcnt(0)")
    a("s_barrier")
    a(f"ds_read_b128 v[{FV}:{FV+3}], v95")
    a(f"ds_read_b128 v[{FV+4}:{FV+7}], v95 offset:4096")
    a(f"s_cmp_ge_u32 s{sWV}, 2")
    a("s_cbranch_scc1 L_ln_two")
    a(f"ds_read_b128 v[{FV+8}:{FV+11}], v95 offset:8192")
    a("s_waitcnt lgkmcnt(0)")
    a(f"buffer_store_dwordx4 v[{FV+8}:{FV+11}], v{GA+2}, s[{srdWS}:{srdWS+3}], s{sGST} offen{SC}")
    vm.issue("hst3", True)
    a("L_ln_two:")
    a("s_waitcnt lgkmcnt(0)")
    a(f"buffer_store_dwordx4 v[{FV}:{FV+3}], v{GA}, s[{srdWS}:{srdWS+3}], s{sGST} offen{SC}")
    a(f"buffer_store_dwordx4 v[{FV+4}:{FV+7}], v{GA+1}, s[{srdWS}:{srdWS+3}], s{sGST} offen{SC}")
    vm.issue("hst"); vm.issue("hst")

def publish_nonce():
    a(f"s_or_b32 s{sT0}, s{sB}, s{sWV}")
    a(f"s_cmp_lg_u32 s{sT0}, 0")
    a("s_cbranch_scc1 L_no_nonce")
    a(f"s_memrealtime s[{sT0}:{sT0+1}]")
    a("s_waitcnt lgkmcnt(0)")
    a(f"s_or_b32 s{sT1}, s{sT1}, 0x40000000")
    a(f"v_mov_b32 v12, s{sT0}")
    a(f"v_mov_b32 v13, s{sT1}")
    a("v_mov_b32 v112, 0")
    a(f"buffer_store_dwordx2 v[12:13], v112, s[{srdDBG}:{srdDBG+3}], 0 offen sc1")
    a("L_no_nonce:")
    vm.issue("noncest", True)

def nonce_issue():
    a("v_mov_b32 v18, 0")
    a(f"buffer_load_dwordx2 v[16:17], v18, s[{srdDBG}:{srdDBG+3}], 0 offen sc1")
    vm.issue("nonce")

def nonce_finish(label):
    a(f"s_mov_b32 s{sSPIN}, {SPIN_MAX}")
    a(f"{label}:")
    a(f"v_readfirstlane_b32 s{sNON}, v16")
    a(f"v_readfirstlane_b32 s{sNON+1}, v17")
    a("s_nop 3")
    a(f"s_sub_u32 s{sSPIN}, s{sSPIN}, 1")
    a(f"s_cselect_b32 s{sT0}, 1, s{sNON+1}")
    a(f"s_cmp_lg_u32 s{sT0}, 0")
    a(f"s_cbranch_scc1 {label}_ok")
    a(f"buffer_load_dwordx2 v[16:17], v18, s[{srdDBG}:{srdDBG+3}], 0 offen sc1")
    a("s_waitcnt vmcnt(0)")
    a(f"s_branch {label}")
    a(f"{label}_ok:")

def store_flag(label, off_sreg):
    a(f"s_cmp_lg_u32 s{sWV}, 0")
    a(f"s_cbranch_scc1 {label}")
    a(f"v_mov_b32 v16, s{sNON}")
    a(f"v_mov_b32 v17, s{sNON+1}")
    a("v_mov_b32 v18, 0")
    a(f"s_mov_b64 s[{sEXEC}:{sEXEC+1}], exec")
    a("s_mov_b64 exec, 1")
    a(f"buffer_store_dwordx2 v[16:17], v18, s[{srdWS}:{srdWS+3}], s{off_sreg} offen sc1")
    a(f"s_mov_b64 exec, s[{sEXEC}:{sEXEC+1}]")
    a("s_nop 1")
    a(f"{label}:")
    vm.issue("flag", True)

vPOLL = 120
def poll_issue(off_sreg):
    a(f"buffer_load_dwordx2 v[{vPOLL}:{vPOLL+1}], v{vPOLL+2}, s[{srdWS}:{srdWS+3}], s{off_sreg} offen sc1")
    vm.issue("poll")
def poll_check(label, off_sreg, deep=0):
    vm.wait("poll")
    def check(r, ok):
        a(f"v_cmp_ne_u32 vcc, s{sNON}, v{r}")
        a(f"v_cmp_ne_u32 s[{sT0}:{sT0+1}], s{sNON+1}, v{r+1}")
        a("s_nop 3")
        a(f"s_or_b64 vcc, vcc, s[{sT0}:{sT0+1}]")
        a(f"s_cbranch_vccz {ok}")
    def load(r):
        a(f"buffer_load_dwordx2 v[{r}:{r+1}], v{vPOLL+2}, s[{srdWS}:{srdWS+3}], s{off_sreg} offen sc1")
    a(f"s_mov_b32 s{sSPIN}, {SPIN_MAX}")
    if not deep:
        a(f"{label}:")
        check(vPOLL, f"{label}_ok")
        if args.sleep: a(f"s_sleep {args.sleep}")
        load(vPOLL)
        a("s_waitcnt vmcnt(0)")
        a(f"s_sub_u32 s{sSPIN}, s{sSPIN}, 1")
        a(f"s_cbranch_scc0 {label}")
        a(f"{label}_ok:")
        return
    R = (vPOLL, 116, 118)
    check(vPOLL, f"{label}_ok")
    for r in R:
        load(r)
        a(f"s_sleep {deep}")
    a(f"{label}:")
    for r in R:
        a("s_waitcnt vmcnt(2)")
        check(r, f"{label}_ok")
        load(r)
        a(f"s_sleep {deep}")
    a(f"s_sub_u32 s{sSPIN}, s{sSPIN}, 1")
    a(f"s_cbranch_scc0 {label}")
    a(f"{label}_ok:")

def a_load(slot, mi, ks, fixed=False):
    r = abuf(slot, mi)
    off = sAOFF
    if fixed:
        off = sOFF
        if mi == 0: a(f"s_add_u32 s{sOFF}, s{sABASE}, {ks*5120}")
    if mi < 4:
        a(f"buffer_load_dwordx4 v[{r}:{r+3}], v{vA}, s[{srdWS}:{srdWS+3}], s{off} offen offset:{mi*1024}{fl(args.asc)}")
    else:
        a(f"buffer_load_dwordx4 v[{r}:{r+3}], v{vA2}, s[{srdWS}:{srdWS+3}], s{off} offen{fl(args.asc)}")
        if not fixed:
            a(f"s_add_u32 s{sAOFF}, s{sAOFF}, {args.astride}")
            a(f"s_cmp_eq_u32 s{sAOFF}, s{sAEND}")
            a(f"s_cselect_b32 s{sAOFF}, s{sABASE}, s{sAOFF}")
    vm.issue(("A", ks), fixed)

def mfma(first, ks, slot, c, mi, gemm):
    if args.nomfma and not first: return
    d = acc(c, mi); wr = 16*ks + 4*c; ar = abuf(slot, mi)
    cin = "0" if first else f"v[{d}:{d+3}]"
    if gemm == 1: a(f"v_mfma_f32_16x16x32_bf16 v[{d}:{d+3}], a[{wr}:{wr+3}], v[{ar}:{ar+3}], {cin}")
    else:         a(f"v_mfma_f32_16x16x32_bf16 v[{d}:{d+3}], v[{ar}:{ar+3}], a[{wr}:{wr+3}], {cin}")

def main_prefill(gemm, nks, optional_last):
    for ks in range(min(NA, nks)):
        for mi in range(5): a_load(ks % NA, mi, ks, optional_last and ks == nks - 1)

def main_loop(gemm, nks, optional_last, W, tail=None):
    depth = min(NA, nks)
    nreal = nks - 1 if optional_last else nks
    def loads(ks):
        for mi in range(5): a_load(ks % NA, mi, ks, optional_last and ks == nks - 1)
    while W.nt < 2: W.tr()
    pending_tr = True
    for ks in range(nks):
        opt = optional_last and ks == nks - 1
        def body():
            nonlocal pending_tr
            vm.wait(("A", ks))
            if pending_tr: a("s_waitcnt lgkmcnt(0)"); pending_tr = False
            if args.mstamps and ks in (0, 4, 8, 12): stamp(f"g{gemm} step {ks} data")
            settled = W.nt
            pieces = []
            if W.nd < W.nks and W.nd - NSLOT < settled and not W.is_opt(W.nd):
                pos = W.nd; W.nd += 1
                pieces = [lambda q=q, pos=pos: W.piece(pos, q, False) for q in range(4)]
            nxt = ks + depth
            for mi in range(5):
                if args.align == 2 or (args.align == 1 and mi == 0): a(".p2align 3")
                for c in range(4):
                    mfma(ks == 0, ks, ks % NA, c, mi, gemm)
                    if nxt < nreal: bg.tick()
                    if c == 1 and pieces: pieces.pop(0)()
                if mi == 0 and W.nt <= ks + 1 and W.nt < W.nks and not W.is_opt(W.nt):
                    W.tr(); pending_tr = True
                if nxt < nreal: a_load(nxt % NA, mi, nxt)
                elif tail is not None: tail()
        if opt: guarded(f"L_g{gemm}_mm", body)
        else: body()
        nxt = ks + depth
        if optional_last and nxt == nks - 1:
            guarded(f"L_g{gemm}_ld", lambda: loads(nxt))
        if W.nd < W.nks and W.is_opt(W.nd) and W.nd - NSLOT < W.nt - 1:
            a("s_waitcnt lgkmcnt(0)"); W.dma()
        if W.nt < W.nks and W.is_opt(W.nt) and W.nt <= ks + 1 and W.nd > W.nt:
            W.tr(); pending_tr = True
        if nxt == nreal - 1: bg.flush()
    assert W.nd == W.nks and W.nt == W.nks

RT = 16
PK = 80
def epilogue_addresses():
    for c in range(1, 4):
        a(f"s_add_u32 s{sT0}, s{sWV}, {c}")
        a(f"s_and_b32 s{sT0}, s{sT0}, 3")
        a(f"s_mul_i32 s{sT1}, s{sT0}, {RING}")
        a(f"s_add_u32 s{sT1}, s{sT1}, {6*4096}")
        a(f"v_add_u32 v{vRW+c-1}, s{sT1}, v{vA}")
        if c == 3:
            a(f"s_mul_i32 s{sT1}, s{sT0}, 3072")
            a(f"s_add_u32 s{sT1}, s{sT1}, {T_OFF}")
            a(f"v_add_u32 v{vRW+3}, s{sT1}, v{vA}")
    a(f"s_add_u32 s{sT1}, s{sRING}, {6*4096}")
    a(f"v_add_u32 v{vRR}, s{sT1}, v{vA}")
    a(f"s_mul_i32 s{sT1}, s{sWV}, 3072")
    a(f"s_add_u32 s{sT1}, s{sT1}, {T_OFF}")
    a(f"v_add_u32 v{vRR+1}, s{sT1}, v{vA}")
    a(f"v_lshrrev_b32 v12, 4, v{vLANE}")
    a("v_and_b32 v13, 1, v12")
    a(f"v_lshlrev_b32 v{vGO}, 10, v13")
    a(f"v_lshlrev_b32 v{vOO}, 5, v13")
    a("v_lshrrev_b32 v12, 1, v12")
    a(f"v_lshl_add_u32 v{vGL}, v12, 8, 0")
    a(f"v_lshlrev_b32 v{vOL}, 4, v12")
    a(f"v_and_b32 v12, 15, v{vLANE}")
    a(f"v_lshl_add_u32 v{vGL}, v12, 4, v{vGL}")
    a(f"v_add_u32 v{vGO}, v{vGO}, v{vGL}")
    a("v_mul_u32_u24 v12, 1280, v12")
    a(f"v_add_u32 v{vOL}, v{vOL}, v12")
    a(f"v_add_u32 v{vOO}, v{vOO}, v{vOL}")
    a(f"s_mul_i32 s{sT0}, s{sDT1}, 54")
    a(f"s_lshl_b32 s{sT1}, s{sFT}, 1")
    a(f"s_add_u32 s{sT0}, s{sT0}, s{sT1}")
    a(f"s_lshr_b32 s{sT1}, s{sWV}, 1")
    a(f"s_add_u32 s{sT0}, s{sT0}, s{sT1}")
    a(f"s_mul_i32 s{sT0}, s{sT0}, 5120")
    a(f"s_and_b32 s{sT1}, s{sWV}, 1")
    a(f"s_lshl_b32 s{sT1}, s{sT1}, 9")
    a(f"s_add_u32 s{sT0}, s{sT0}, s{sT1}")
    a(f"s_add_u32 s{sGST}, s{sT0}, {G_OFF}")
    a(f"s_lshl_b32 s{sT0}, s{sST}, 2")
    a(f"s_add_u32 s{sT0}, s{sT0}, s{sWV}")
    a(f"s_mul_i32 s{sT0}, s{sT0}, {16*1280}")
    a(f"s_mul_i32 s{sT1}, s{sDT}, 160")
    a(f"s_add_u32 s{sOST}, s{sT0}, s{sT1}")
    c1 = -2.0 * 0.7978845608028654 * 1.4426950408889634
    a(f"v_mov_b32 v{vC}, {f32hex(c1)}"); a(f"v_mov_b32 v{vC+1}, {f32hex(c1)}")
    a(f"v_mov_b32 v{vC+2}, {f32hex(c1*0.044715)}"); a(f"v_mov_b32 v{vC+3}, {f32hex(c1*0.044715)}")
    a(f"v_mov_b32 v{vC+4}, 1.0"); a(f"v_mov_b32 v{vC+5}, 1.0")
    dma_offsets(vD2, W2_ROW)
    set_w2_base()
    a(f"s_lshl_b32 s{sT0}, s{sST}, 7")
    a(f"s_lshl_b32 s{sT1}, s{sWV}, 5")
    a(f"s_add_u32 s{sT0}, s{sT0}, s{sT1}")
    a(f"v_and_b32 v12, 15, v{vLANE}")
    a("v_lshlrev_b32 v12, 1, v12")
    a(f"buffer_load_ushort v{vB2}, v12, s[{srdB2}:{srdB2+3}], s{sT0} offen")
    vm.issue("b2")

def reduce_write():
    a("s_nop 6")
    a("s_barrier")
    for c in range(1, 4):
        for mi in range(5):
            blk = (c-1)*5 + mi
            r = acc(c, mi)
            if blk < 12: a(f"ds_write_b128 v{vRW+c-1}, v[{r}:{r+3}] offset:{blk*1024}")
            else:        a(f"ds_write_b128 v{vRW+3}, v[{r}:{r+3}] offset:{(blk-12)*1024}")
            bg.tick(3)
    a("s_waitcnt lgkmcnt(0)")
    a("s_barrier")
    for mi in range(5):
        for c in range(1, 4):
            blk = (c-1)*5 + mi
            r = RT + 4*blk
            if blk < 12: a(f"ds_read_b128 v[{r}:{r+3}], v{vRR} offset:{blk*1024}")
            else:        a(f"ds_read_b128 v[{r}:{r+3}], v{vRR+1} offset:{(blk-12)*1024}")

def reduce_sum(mi, counted=True):
    if counted: a(f"s_waitcnt lgkmcnt({12 - 3*mi})")
    for c in range(1, 4):
        for h in range(2):
            d = acc(0, mi) + 2*h; s = RT + 4*((c-1)*5 + mi) + 2*h
            fg(f"v_pk_add_f32 {P(d)}, {P(d)}, {P(s)}")

def pack_swap():
    for mi in range(5):
        d = acc(0, mi); r = PK + 2*mi
        a(f"v_cvt_pk_bf16_f32 v{r}, v{d}, v{d+1}")
        a(f"v_cvt_pk_bf16_f32 v{r+1}, v{d+2}, v{d+3}")
    a(f"v_mov_b32 v{PK+10}, v{PK+8}")
    a(f"v_mov_b32 v{PK+11}, v{PK+9}")
    a("s_nop 1")
    for p in range(3):
        b = PK + 4*p
        a(f"v_permlane16_swap_b32 v{b}, v{b+2}")
        a(f"v_permlane16_swap_b32 v{b+1}, v{b+3}")

def epilogue1(after_reduce):
    reduce_write()
    a(f"v_lshlrev_b32 v96, 16, v{vB1}");   a(f"v_and_b32 v97, 0xffff0000, v{vB1}")
    a(f"v_lshlrev_b32 v98, 16, v{vB1+1}"); a(f"v_and_b32 v99, 0xffff0000, v{vB1+1}")
    T = 100
    for mi in range(5):
        d = acc(0, mi)
        reduce_sum(mi)
        if mi == 4: after_reduce()
        for h in range(2):
            fg(f"v_pk_add_f32 {P(d+2*h)}, {P(d+2*h)}, {P(96+2*h)}")
        t = T + 4*(mi % 2)
        for h in range(2):
            u = d + 2*h
            fg(f"v_pk_mul_f32 {P(t+2*h)}, {P(u)}, {P(u)}")
        for h in range(2):
            fg(f"v_pk_fma_f32 {P(t+2*h)}, {P(t+2*h)}, {P(vC+2)}, {P(vC)}")
        for h in range(2):
            u = d + 2*h
            fg(f"v_pk_mul_f32 {P(t+2*h)}, {P(t+2*h)}, {P(u)}")
        for k in range(4): a(f"v_exp_f32 v{t+k}, v{t+k}")
        bg.tick(8)
        for h in range(2): a(f"v_pk_add_f32 {P(t+2*h)}, {P(t+2*h)}, {P(vC+4)}")
        for k in range(4): a(f"v_rcp_f32 v{t+k}, v{t+k}")
        a("s_nop 0")
        bg.tick(10)
        for h in range(2): fg(f"v_pk_mul_f32 {P(d+2*h)}, {P(d+2*h)}, {P(t+2*h)}")
        r = PK + 2*mi
        a(f"v_cvt_pk_bf16_f32 v{r}, v{d}, v{d+1}")
        a(f"v_cvt_pk_bf16_f32 v{r+1}, v{d+2}, v{d+3}")
        if mi in (1, 3):
            p = mi // 2; b = PK + 4*p
            a("s_nop 1")
            a(f"v_permlane16_swap_b32 v{b}, v{b+2}")
            a(f"v_permlane16_swap_b32 v{b+1}, v{b+3}")
            if not args.bglate:
                a(f"buffer_store_dwordx4 v[{b}:{b+3}], v{vGO}, s[{srdWS}:{srdWS+3}], s{sGST} offen offset:{2048*p}{SC}")
                vm.issue("gst")
    bg.flush()
    a(f"v_mov_b32 v{PK+10}, v{PK+8}")
    a(f"v_mov_b32 v{PK+11}, v{PK+9}")
    a(f"s_add_u32 s{sT1}, s{sGST}, 4096")
    a("s_nop 0")
    a(f"v_permlane16_swap_b32 v{PK+8}, v{PK+10}")
    a(f"v_permlane16_swap_b32 v{PK+9}, v{PK+11}")
    if args.bglate:
        for p in range(2):
            b = PK + 4*p
            a(f"buffer_store_dwordx4 v[{b}:{b+3}], v{vGO}, s[{srdWS}:{srdWS+3}], s{sGST} offen offset:{2048*p}{SC}")
            vm.issue("gst")
    a(f"buffer_store_dwordx4 v[{PK+8}:{PK+11}], v{vGL}, s[{srdWS}:{srdWS+3}], s{sT1} offen{SC}")
    vm.issue("gst")

def epilogue2():
    reduce_write()
    a(f"v_lshlrev_b32 v96, 16, v{vB2}")
    a("v_mov_b32 v97, v96")
    o = fl(args.ofl)
    for mi in range(5):
        d = acc(0, mi)
        reduce_sum(mi)
        for h in range(2):
            a(f"v_pk_add_f32 {P(d+2*h)}, {P(d+2*h)}, {P(96)}")
        r = PK + 2*mi
        a(f"v_cvt_pk_bf16_f32 v{r}, v{d}, v{d+1}")
        a(f"v_cvt_pk_bf16_f32 v{r+1}, v{d+2}, v{d+3}")
        if mi in (1, 3):
            p = mi // 2; b = PK + 4*p
            a("s_nop 1")
            a(f"v_permlane16_swap_b32 v{b}, v{b+2}")
            a(f"v_permlane16_swap_b32 v{b+1}, v{b+3}")
            a(f"buffer_store_dwordx4 v[{b}:{b+3}], v{vOO}, s[{srdOUT}:{srdOUT+3}], s{sOST} offen offset:{64*p}{o}")
    a(f"v_mov_b32 v{PK+10}, v{PK+8}")
    a(f"v_mov_b32 v{PK+11}, v{PK+9}")
    a("s_nop 1")
    a(f"v_permlane16_swap_b32 v{PK+8}, v{PK+10}")
    a(f"v_permlane16_swap_b32 v{PK+9}, v{PK+11}")
    a(f"buffer_store_dwordx4 v[{PK+8}:{PK+11}], v{vOL}, s[{srdOUT}:{srdOUT+3}], s{sOST} offen offset:128{o}")

pair = lambda s: tuple(int(x) for x in s.split(":"))
file_begin(a, [(MAIN, 256, 256, LDS_BYTES)])
prologue(MAIN, "L_end")
stamp("kernarg")
set_w1_base()
W1 = Stager(srdW1, vD, sWOFF, sWBASE, sWEND, W1_KS, 16, False, fl(args.w1fl), "w1")
W1.start()
publish_nonce()
if args.pf1:
    set_rot(16, args.pf1rot, sDT1)
    a(f"s_mul_i32 s{sT2}, s{sROT}, {W1_KS}")
    a(f"s_add_u32 s{sW2E}, s{sT2}, s{sWBASE}")
    def pf_piece(i, q):
        a(f"buffer_load_dwordx4 v[{128+4*((4*i+q)%8)}:{131+4*((4*i+q)%8)}], v{vD+q}, s[{srdW1}:{srdW1+3}], s{sW2E} offen{fl(args.w1fl)}")
        vm.issue("pf1")
        if q == 3:
            a(f"s_add_u32 s{sW2E}, s{sW2E}, {W1_KS}")
            a(f"s_cmp_eq_u32 s{sW2E}, s{sWEND}")
            a(f"s_cselect_b32 s{sW2E}, s{sWBASE}, s{sW2E}")
    for i in range(args.pf1):
        for q in range(4): bg.add(lambda i=i, q=q: pf_piece(i, q))
if args.npre: W1.dma_bg(args.npre)
bg.every = 6
ln_addresses()
tr_addresses()
bg.flush()
vm.wait("x")
stamp("x landed")
if args.nln: W1.dma_bg(args.nln)
bg.every = args.lnevery; bg.cnt = 0
ln_compute()
bg.flush()
ln_store()
nonce_issue()
stamp("h stores issued")
W1.fill(W1.nd + args.npost)
a(f"s_lshl_b32 s{sT0}, s{sFT}, 7")
a(f"s_lshl_b32 s{sT1}, s{sWV}, 5")
a(f"s_add_u32 s{sT0}, s{sT0}, s{sT1}")
a(f"v_lshrrev_b32 v12, 4, v{vLANE}")
a("v_lshlrev_b32 v12, 3, v12")
a(f"buffer_load_dwordx2 v[{vB1}:{vB1+1}], v12, s[{srdB1}:{srdB1+3}], s{sT0} offen")
vm.issue("b1")
vm.wait("nonce")
nonce_finish("L_nonce")
a("s_barrier")
a(f"s_lshl_b32 s{sT2}, s{sB}, 6")
a(f"s_add_u32 s{sT2}, s{sT2}, {FL_LN}")
store_flag("L_flag_ln", sT2)
stamp("LN flag stored")
a(f"s_cmp_eq_u32 s{sROLE}, 0")
a("s_cbranch_scc1 L_idle")
i_branch = nstamp[0]
set_h_base()
a(f"s_lshl_b32 s{sT2}, s{sWV}, 12")
a(f"s_add_u32 s{sGST}, s{sT2}, {FL_LN}")
a(f"v_lshlrev_b32 v{vPOLL+2}, 6, v{vLANE}")
W1.advance_to(*pair(args.pre1))
poll_issue(sGST)
W1.advance_to(*pair(args.pre1b))
stamp("poll check")
poll_check("L_poll_ln", sGST, args.deep1)
stamp("LN flags seen")
main_prefill(1, 16, False)
W2 = Stager(srdW2, vD2, sW2R, sW2B, sW2E, W2_KS, 14, True, fl(args.w2fl), "w2")
queue_lines(epilogue_addresses)
bg.every = args.addrevery; bg.cnt = 0
tailq = []
def tail():
    assert W1.nd == W1.nks
    if not W2.started: W2.start()
    if tailq: tailq.pop(0)()
ntail = 5 if args.tailpieces else 0
for pos in range(ntail):
    for q in range(4): tailq.append(lambda pos=pos, q=q: W2.piece(pos, q, False))
W2.nd = ntail
main_loop(1, 16, False, W1, tail if ntail else None)
assert not tailq
if not W2.started: W2.start()
stamp("main1 done")
W2.dma_bg(args.n2pre - W2.nd)
bg.every = args.epevery; bg.cnt = 0
def after_reduce():
    if not args.epseq:
        W2.dma_bg(args.ep3)
        W2.tr_bg(args.eptr)
        return
    for ch in args.epseq:
        if ch == "T": W2.tr_bg(1)
        else:
            if W2.nd >= NSLOT:
                assert W2.nd - NSLOT < W2.nt
                bg.add(lambda: a("s_waitcnt lgkmcnt(0)"))
            W2.dma_bg(1)
epilogue1(after_reduce)
stamp("G stores issued")
a("s_waitcnt lgkmcnt(0)")
def g_poll_setup():
    set_g_base()
    a(f"s_mul_i32 s{sT2}, s{sWV}, 7")
    a(f"s_cmp_eq_u32 s{sWV}, 3")
    a(f"s_cselect_b32 s{sT3}, 1, 0")
    a(f"s_sub_u32 s{sT2}, s{sT2}, s{sT3}")
    a(f"s_lshl_b32 s{sT3}, s{sDT}, 5")
    a(f"s_add_u32 s{sT2}, s{sT2}, s{sT3}")
    a(f"s_lshl_b32 s{sT2}, s{sT2}, 6")
    a(f"s_add_u32 s{sGST}, s{sT2}, {FL_G}")
    a(f"v_min_u32 v{vPOLL+2}, 6, v{vLANE}")
    a(f"v_lshlrev_b32 v{vPOLL+2}, 6, v{vPOLL+2}")
g_poll_setup()
if args.pre2:
    W2.advance_to(*pair(args.pre2))
else:
    assert W2.nd + args.n2fill - NSLOT <= W2.nt
    W2.fill(W2.nd + args.n2fill)
    for _ in range(args.k2pre): W2.tr()
vm.wait("gst")
a("s_barrier")
a(f"s_lshl_b32 s{sT2}, s{sDT1}, 5")
a(f"s_add_u32 s{sT2}, s{sT2}, s{sFT}")
a(f"s_lshl_b32 s{sT2}, s{sT2}, 6")
a(f"s_add_u32 s{sT2}, s{sT2}, {FL_G}")
store_flag("L_flag_g", sT2)
stamp("G flag stored")
j_nd, j_nt = pair(args.join2)
poll_issue(sGST)
W2.advance_to(j_nd, j_nt)
stamp("w2 staged")
vm_join = list(vm.ops)
i_join = nstamp[0]
a("s_branch L_gemm2")
a("L_idle:")
nstamp[0] = i_branch
a("s_waitcnt vmcnt(0)")
vm.drained()
epilogue_addresses()
if args.pfmode != "none":
    a(f"s_lshl_b32 s{sT2}, s{sWV}, 12")
    a(f"s_add_u32 s{sGST}, s{sT2}, {FL_LN}")
    a(f"v_lshlrev_b32 v{vPOLL+2}, 6, v{vLANE}")
    if args.pfwait:
        poll_issue(sGST)
        poll_check("L_poll_idle", sGST)
    a(f"s_and_b32 s{sT0}, s{sB}, 7")
    a(f"s_and_b32 s{sT1}, s{sB}, 1")
    a(f"s_add_u32 s{sT1}, s{sT1}, 8")
    a(f"s_lshr_b32 s{sT2}, s{sB}, 5")
    a(f"s_cmp_eq_u32 s{sT2}, 7")
    a(f"s_cselect_b32 s{sT0}, s{sT0}, s{sT1}")
    a(f"s_lshl_b32 s{sT0}, s{sT0}, 2")
    a(f"s_bfe_u32 s{sT1}, s{sB}, 0x20003")
    a(f"s_add_u32 s{sT0}, s{sT0}, s{sT1}")
    a(f"s_lshl_b32 s{sT0}, s{sT0}, 2")
    a(f"s_add_u32 s{sIDX}, s{sT0}, s{sWV}")
    def pf_loop(label, n):
        a(f"s_mov_b32 s{sT1}, {n}")
        a(f"{label}:")
        a(f"buffer_load_dwordx4 v[20:23], v{vA}, s[{srdW2}:{srdW2+3}], s{sT0} offen")
        a(f"s_add_u32 s{sT0}, s{sT0}, 1024")
        a(f"s_sub_u32 s{sT1}, s{sT1}, 1")
        a(f"s_cmp_lg_u32 s{sT1}, 0")
        a(f"s_cbranch_scc1 {label}")
    if args.pfmode == "mall":
        a(f"s_mul_i32 s{sT0}, s{sIDX}, {44*1024}")
        pf_loop("L_pf_loop", 44)
        a("s_waitcnt vmcnt(0)")
    else:
        a(f"s_and_b32 s{sT2}, s{sIDX}, 3")
        a(f"s_mul_i32 s{sT0}, s{sT2}, 14")
        a(f"s_cmp_eq_u32 s{sT2}, 3")
        a(f"s_cselect_b32 s{sT3}, 1, 0")
        a(f"s_sub_u32 s{sT0}, s{sT0}, s{sT3}")
        a(f"s_lshl_b32 s{sT0}, s{sT0}, 5")
        a(f"s_lshr_b32 s{sT2}, s{sIDX}, 2")
        a(f"s_lshl_b32 s{sT2}, s{sT2}, 2")
        a(f"s_add_u32 s{sT0}, s{sT0}, s{sT2}")
        a(f"s_lshl_b32 s{sT0}, s{sT0}, 12")
        pf_loop("L_pf_loop", 16)
vm.drained()
stamp("idle: prefetch done")
W2i = Stager(srdW2, vD2, sW2R, sW2B, sW2E, W2_KS, 14, True, fl(args.w2fl), "w2i")
W2i.start()
W2i.advance_to(j_nd, j_nt)
if args.pfmode == "split":
    a(f"s_and_b32 s{sT2}, s{sIDX}, 3")
    a(f"s_mul_i32 s{sT0}, s{sT2}, 14")
    a(f"s_cmp_eq_u32 s{sT2}, 3")
    a(f"s_cselect_b32 s{sT3}, 1, 0")
    a(f"s_sub_u32 s{sT0}, s{sT0}, s{sT3}")
    a(f"s_add_u32 s{sT0}, s{sT0}, 5")
    a(f"s_lshl_b32 s{sT0}, s{sT0}, 17")
    a(f"s_lshr_b32 s{sT2}, s{sIDX}, 2")
    a(f"s_mul_i32 s{sT2}, s{sT2}, {29*1024}")
    a(f"s_add_u32 s{sT0}, s{sT0}, s{sT2}")
    pf_loop("L_pf_loop2", 29)
assert (W2i.nd, W2i.nt) == (W2.nd, W2.nt), ((W2i.nd, W2i.nt), (W2.nd, W2.nt))
g_poll_setup()
poll_issue(sGST)
a("s_waitcnt vmcnt(0)")
while nstamp[0] < i_join and args.stamps: stamp("idle")
if args.probe in ("poll_check", "LN_flags_seen", "main1_done", "G_stores_issued", "G_flag_stored", "w2_staged"):
    a("s_mov_b32 s89, s90")
a("L_gemm2:")
vm.ops = vm_join
poll_check("L_poll_g", sGST, args.deep2)
stamp("G flags seen")
bg.every = 0
main_prefill(2, 14, True)
main_loop(2, 14, True, W2)
stamp("main2 done")
epilogue2()
stamp("end")
write_stamps("L_st", STAMP)
if args.light:
    a("s_waitcnt vmcnt(0)")
    a("s_memrealtime s[92:93]")
    a("s_waitcnt lgkmcnt(0)")
    a(f"s_lshl_b32 s{sT0}, s{sB}, 2")
    a(f"s_add_u32 s{sT0}, s{sT0}, s{sWV}")
    a(f"s_lshl_b32 s{sT0}, s{sT0}, 3")
    a(f"s_add_u32 s{sT0}, s{sT0}, {STAMP}")
    a("v_mov_b32 v16, s90"); a("v_mov_b32 v17, s92"); a("v_mov_b32 v12, 0")
    a("s_mov_b64 exec, 1")
    a(f"buffer_store_dwordx2 v[16:17], v12, s[{srdWS}:{srdWS+3}], s{sT0} offen")
if args.probe.startswith("late"):
    lo, hi = int(args.probe[4]), int(args.probe[5])
    a(f"s_sub_u32 s89, s90, s{sNON}")
    a("s_ashr_i32 s88, s89, 31"); a("s_andn2_b32 s89, s89, s88")
    a(f"s_and_b32 s88, s{sB}, 7")
    a(f"s_cmp_ge_u32 s88, {lo}"); a("s_cselect_b32 s89, s89, 0")
    a(f"s_cmp_le_u32 s88, {hi}"); a("s_cselect_b32 s89, s89, 0")
    a("s_add_u32 s89, s89, s90")
if args.probe:
    a("s_waitcnt vmcnt(0)")
    a("s_sub_u32 s89, s89, s90")
    a("s_lshl_b32 s89, s89, 2")
    a("s_add_u32 s89, s89, 3000")
    a("L_probe:")
    a("s_memrealtime s[86:87]")
    a("s_waitcnt lgkmcnt(0)")
    a("s_sub_u32 s86, s86, s90")
    a("s_cmp_lt_u32 s86, s89")
    a("s_cbranch_scc1 L_probe")
if args.padto:
    a("s_waitcnt vmcnt(0)")
    a("L_pad:")
    a("s_memrealtime s[88:89]")
    a("s_waitcnt lgkmcnt(0)")
    a("s_sub_u32 s88, s88, s90")
    a(f"s_cmp_lt_u32 s88, {args.padto}")
    a("s_cbranch_scc1 L_pad")
a("L_end:")
a("s_endpgm")
a("L_code_end:")
kernel_desc(a, MAIN, 512, 102, 256)
print(a.text())
```

```python
import sys, argparse, struct
sys.path.insert(0, "tools")
from asmlib import *

ap = argparse.ArgumentParser()
ap.add_argument("--stamps", type=int, default=0)
ap.add_argument("--mstamps", type=int, default=0)
ap.add_argument("--cyc", type=int, default=0)
ap.add_argument("--light", type=int, default=0)
ap.add_argument("--padto", type=int, default=0)
ap.add_argument("--probe", default="")
ap.add_argument("--exact", type=int, default=1)
ap.add_argument("--na", type=int, default=4)
ap.add_argument("--pfwait", type=int, default=0)
ap.add_argument("--npre", type=int, default=0)
ap.add_argument("--nln", type=int, default=0)
ap.add_argument("--w2pf", type=int, default=1)
ap.add_argument("--lnevery", type=int, default=10)
ap.add_argument("--kpre", type=int, default=3)
ap.add_argument("--n2pre", type=int, default=6)
ap.add_argument("--epevery", type=int, default=12)
ap.add_argument("--pf1", type=int, default=0)
ap.add_argument("--pf1rot", default="qd:8")
ap.add_argument("--npost", type=int, default=2)
ap.add_argument("--pre1", default="11:2")
ap.add_argument("--pre1b", default="12:3")
ap.add_argument("--join2", default="14:5")
ap.add_argument("--pfmode", default="mall")
ap.add_argument("--pollat", type=int, default=13)
ap.add_argument("--pollat2", type=int, default=12)
ap.add_argument("--eptr", type=int, default=3)
ap.add_argument("--tailpieces", type=int, default=1)
ap.add_argument("--ep3", type=int, default=3)
ap.add_argument("--lntr", type=int, default=2)
ap.add_argument("--addrevery", type=int, default=3)
ap.add_argument("--n2fill", type=int, default=2)
ap.add_argument("--k2pre", type=int, default=2)
ap.add_argument("--sleep", type=int, default=1)
ap.add_argument("--rot1", default="qd:8")
ap.add_argument("--rot2", default="none:2")
ap.add_argument("--xfl", default="none")
ap.add_argument("--w1fl", default="none")
ap.add_argument("--w2fl", default="none")
ap.add_argument("--ofl", default="none")
ap.add_argument("--pre2", default="")
ap.add_argument("--bglate", type=int, default=0)
ap.add_argument("--wsame", type=int, default=0)
ap.add_argument("--nomfma", type=int, default=0)
ap.add_argument("--align", type=int, default=0)
ap.add_argument("--shift", type=int, default=0)
ap.add_argument("--deep1", type=int, default=0)
ap.add_argument("--deep2", type=int, default=0)
ap.add_argument("--epseq", default="")
ap.add_argument("--pfn", type=int, default=14)
ap.add_argument("--pfmask", type=int, default=1)
ap.add_argument("--pfown", type=int, default=0)
ap.add_argument("--pfskip", type=int, default=0)
ap.add_argument("--pfskip0", type=int, default=0)
ap.add_argument("--estamps", type=int, default=0)
ap.add_argument("--nlast", type=int, default=0)
ap.add_argument("--stswap", type=int, default=3)
ap.add_argument("--map1", default="2d")
ap.add_argument("--astride", type=int, default=5120)
ap.add_argument("--asc", default="sc1")
ap.add_argument("--touch", type=int, default=0)
args = ap.parse_args()

def fl(s): return "" if s == "none" else " " + s.replace("+", " ")
def f32hex(x): return "0x%08x" % struct.unpack("<I", struct.pack("<f", x))[0]

S, D, F = 2048, 640, 1728
H_OFF   = 0
G_OFF   = 0x280000
FL_LN   = 0x500000
FL_G    = 0x508000
STAMP   = 0x8000000
W1_ROW, W2_ROW = 3456, 4096
W1_KS, W2_KS = 32 * W1_ROW, 32 * W2_ROW
RING = 36864
NSLOT = 9
T_OFF = 147456
LDS_BYTES = 163840
SPIN_MAX = 200000
SC = " sc1"
OOB = 0x10000000

sB, sWV = 2, 3
sDT, sFT, sST, sROLE = 4, 5, 6, 7
srdX, srdW1, srdW2, srdB1, srdB2, srdOUT, srdDBG, srdWS = 8, 12, 16, 20, 24, 28, 32, 36
sNON = 40
sT0, sT1, sT2, sT3 = 42, 43, 44, 45
sRING, sOFF = 46, 47
sKARG = 48
sSTAMP = 64
sDT1 = 94
sW2B, sW2R = 95, 99
sWOFF, sAOFF, sSPIN = 96, 97, 98
sEXEC = 100
sWBASE, sWEND, sABASE, sAEND, sROT, sW2E, sGST, sOST = 48, 49, 50, 51, 52, 53, 54, 55
sIDX = 56
sKX = 57

vTID, vLANE, vA, vA2 = 0, 1, 2, 3
vD, vT = 4, 8
vB1 = 14
ABUF, NA = 16, args.na
assert NA <= 5
vD2 = 128
vB2 = 132
vGO, vGL = 133, 134
vOO, vOL = 135, 136
vRW = 137
vRR = 141
vC = 144
ACC = 176
def acc(c, mi): return ACC + (c * 5 + mi) * 4
def abuf(slot, mi): return ABUF + slot * 20 + mi * 4
P = lambda r: f"v[{r}:{r+1}]"

a = Asm()

class VM:
    def __init__(self): self.ops = []
    def issue(self, tag, optional=False): self.ops.append((tag, optional))
    def has(self, tag): return any(t == tag for t, o in self.ops)
    def wait(self, tag):
        idx = max(i for i, (t, o) in enumerate(self.ops) if t == tag)
        n = sum(1 for t, o in self.ops[idx+1:] if not o)
        assert n <= 63, (tag, n)
        a(f"s_waitcnt vmcnt({n})")
        self.ops = self.ops[idx+1:]
    def drained(self): self.ops = []
vm = VM()

class BG:
    def __init__(self): self.q = []; self.cnt = 0; self.every = 0
    def add(self, fn): self.q.append(fn)
    def step(self):
        if self.q: self.q.pop(0)()
    def flush(self):
        while self.q: self.step()
    def tick(self, n=1):
        self.cnt += n
        while self.every and self.cnt >= self.every and self.q:
            self.cnt -= self.every; self.step()
bg = BG()
def fg(s):
    a(s); bg.tick()
def queue_lines(fn):
    save = a.lines; a.lines = []
    ops_before = len(vm.ops)
    fn()
    lines = a.lines; a.lines = save
    vmops = vm.ops[ops_before:]; del vm.ops[ops_before:]
    groups = []
    for l in lines:
        op = l.split()[0] if l.split() else ""
        if groups and op in ("s_cselect_b32", "s_addc_u32", "s_cbranch_scc0", "s_cbranch_scc1"): groups[-1].append(l)
        else: groups.append([l])
    def emit(g):
        for l in g:
            a(l)
            if l.startswith("buffer_"): vm.issue(*vmops.pop(0))
    for g in groups: bg.add(lambda g=g: emit(g))

nstamp = [0]
NSTAMPS = 28
stamp_names = {}
def stamp(name):
    if args.light:
        if name == "start": a("s_memrealtime s[90:91]")
        return
    if args.probe:
        if name == "start":
            a("s_memrealtime s[90:91]")
        elif name == args.probe.replace("_", " "):
            a("s_memrealtime s[92:93]"); a("s_waitcnt lgkmcnt(0)"); a("s_mov_b32 s89, s92")
        return
    if not args.stamps: return
    i = nstamp[0]; nstamp[0] += 1
    assert i < NSTAMPS
    stamp_names.setdefault(i, name)
    a(("s_memtime" if args.cyc else "s_memrealtime") + " s[92:93]")
    a("s_waitcnt lgkmcnt(0)")
    a(f"s_mov_b32 s{sSTAMP+i}, s92")

def write_stamps(label, base):
    if not args.stamps: return
    a(f"s_cmp_lg_u32 s{sWV}, {args.stamps - 1}")
    a(f"s_cbranch_scc1 {label}_nostamp")
    a(f"s_mul_i32 s{sT0}, s{sB}, 128")
    a(f"s_add_u32 s{sT0}, s{sT0}, {base}")
    a("v_mov_b32 v12, 0")
    a("s_mov_b64 exec, 1")
    for i in range(0, NSTAMPS, 4):
        for k in range(4):
            if i + k < nstamp[0]: a(f"v_mov_b32 v{16+k}, s{sSTAMP + i + k}")
            else:                 a(f"v_mov_b32 v{16+k}, 0")
        a(f"buffer_store_dwordx4 v[16:19], v12, s[{srdWS}:{srdWS+3}], s{sT0} offen offset:{i*4}")
        a("s_nop 2")
    a(f"{label}_nostamp:")
    for i in sorted(stamp_names): a(f"; STAMPNAME {i} {stamp_names[i]}")

def mk_srd(d, p, nbytes):
    a(f"s_mov_b32 s{d}, s{p}")
    a(f"s_and_b32 s{d+1}, s{p+1}, 0xffff")
    a(f"s_mov_b32 s{d+2}, {nbytes}")
    a(f"s_mov_b32 s{d+3}, 0x00020000")

def prologue(name, endlabel):
    kernel_begin(a, name)
    stamp("start")
    for _ in range(args.shift): a("s_nop 0")
    if args.padto: a("s_memrealtime s[90:91]")
    a(f"s_cmp_ge_u32 s{sB}, 256")
    a(f"s_cbranch_scc1 {endlabel}")
    a(f"s_load_dwordx16 s[{sKARG}:{sKARG+15}], s[0:1], 0")
    a(f"v_and_b32 v{vLANE}, 63, v{vTID}")
    a(f"v_lshrrev_b32 v12, 6, v{vTID}")
    a(f"v_lshlrev_b32 v{vA}, 4, v{vLANE}")
    a(f"v_readfirstlane_b32 s{sWV}, v12")
    a(f"v_add_u32 v{vA2}, 0x1000, v{vA}")
    a(f"s_getpc_b64 s[{sT0}:{sT0+1}]")
    a("L_pf_base:")
    a("s_nop 2")
    a(f"s_lshr_b32 s{sT2}, s{sB}, 3")
    a(f"s_and_b32 s{sT2}, s{sT2}, 7")
    a(f"s_lshl_b32 s{sT2}, s{sT2}, 2")
    a(f"s_add_u32 s{sT2}, s{sT2}, s{sWV}")
    a(f"s_min_u32 s{sT2}, s{sT2}, (L_code_end - L_pf_base) / 1024 - 1")
    a(f"s_lshl_b32 s{sT2}, s{sT2}, 10")
    a(f"s_add_u32 s{sT0}, s{sT0}, s{sT2}")
    a(f"s_addc_u32 s{sT1}, s{sT1}, 0")
    a(f"global_load_dwordx4 v[124:127], v{vA}, s[{sT0}:{sT0+1}]")
    a(f"s_and_b32 s{sT0}, s{sB}, 1")
    a(f"s_lshl_b32 s{sT0}, s{sT0}, 2")
    a(f"s_bfe_u32 s{sT2}, s{sB}, 0x20003")
    a(f"s_add_u32 s{sDT}, s{sT0}, s{sT2}")
    a(f"s_lshr_b32 s{sT1}, s{sB}, 5")
    a(f"s_bfe_u32 s{sT3}, s{sB}, 0x20001")
    a(f"s_lshl_b32 s{sT2}, s{sT3}, 3")
    if args.stswap >= 0:
        a(f"s_cmp_eq_u32 s{sT1}, 7")
        a(f"s_cselect_b32 s{sT0}, {args.stswap}, s{sT1}")
        a(f"s_cmp_eq_u32 s{sT1}, {args.stswap}")
        a(f"s_cselect_b32 s{sT0}, 7, s{sT0}")
        a(f"s_add_u32 s{sST}, s{sT2}, s{sT0}")
    else:
        a(f"s_add_u32 s{sST}, s{sT2}, s{sT1}")
    if args.map1 == "2d":
        a(f"s_mov_b32 s{sDT1}, s{sDT}")
        a(f"s_mul_i32 s{sT2}, s{sT3}, 7")
        a(f"s_add_u32 s{sFT}, s{sT2}, s{sT1}")
        a(f"s_cmp_eq_u32 s{sT3}, 3")
        a(f"s_cselect_b32 s{sT2}, 6, 7")
        a(f"s_cmp_lt_u32 s{sT1}, s{sT2}")
        a(f"s_cselect_b32 s{sROLE}, 1, 0")
    else:
        a(f"s_bfe_u32 s{sDT1}, s{sB}, 0x30003")
        a(f"s_lshr_b32 s{sT0}, s{sB}, 6")
        a(f"s_lshl_b32 s{sT0}, s{sT0}, 3")
        a(f"s_and_b32 s{sT2}, s{sB}, 7")
        a(f"s_add_u32 s{sFT}, s{sT0}, s{sT2}")
        a(f"s_cmp_lt_u32 s{sFT}, 27")
        a(f"s_cselect_b32 s{sROLE}, 1, 0")
    a(f"s_mul_i32 s{sRING}, s{sWV}, {RING}")
    a(f"v_lshrrev_b32 v12, 5, v{vLANE}")
    a(f"v_mul_u32_u24 v12, 1280, v12")
    a(f"v_and_b32 v13, 31, v{vLANE}")
    a(f"v_lshl_add_u32 v14, v13, 4, v12")
    a(f"v_lshl_add_u32 v15, v13, 3, v12")
    dma_offsets(vD, W1_ROW)
    a(f"s_lshl_b32 s{sT0}, s{sB}, 3")
    a(f"s_lshl_b32 s{sT1}, s{sWV}, 1")
    a(f"s_add_u32 s{sT0}, s{sT0}, s{sT1}")
    a(f"s_mul_i32 s{sOFF}, s{sT0}, 1280")
    a("s_waitcnt lgkmcnt(0)")
    mk_srd(srdX, sKARG+0, S*D*2)
    a(f"buffer_load_dwordx4 v[{XR}:{XR+3}], v14, s[{srdX}:{srdX+3}], s{sOFF} offen{fl(args.xfl)}")
    a(f"buffer_load_dwordx4 v[{XR+4}:{XR+7}], v14, s[{srdX}:{srdX+3}], s{sOFF} offen offset:512{fl(args.xfl)}")
    a(f"buffer_load_dwordx2 v[{XR+8}:{XR+9}], v15, s[{srdX}:{srdX+3}], s{sOFF} offen offset:1024{fl(args.xfl)}")
    for _ in range(3): vm.issue("x")
    mk_srd(srdW1,  sKARG+2,  S*F*2)
    mk_srd(srdB1,  sKARG+4,  F*2)
    mk_srd(srdW2,  sKARG+6,  F*S*2)
    mk_srd(srdDBG, sKARG+12, 256)
    mk_srd(srdWS,  sKARG+14, 268435456)
    mk_srd(srdB2,  sKARG+8,  S*2)
    mk_srd(srdOUT, sKARG+10, S*D*2)

def dma_offsets(dst, row):
    a(f"v_lshrrev_b32 v12, 3, v{vLANE}")
    a(f"v_and_b32 v13, 2, v12")
    a(f"v_mul_u32_u24 v12, {row}, v12")
    a(f"v_and_b32 v{dst+2}, 7, v{vLANE}")
    a(f"v_xor_b32 v13, v13, v{dst+2}")
    a(f"v_lshl_add_u32 v{dst}, v13, 4, v12")
    a(f"v_xor_b32 v13, 4, v13")
    a(f"v_lshl_add_u32 v{dst+1}, v13, 4, v12")
    a(f"v_add_u32 v{dst+1}, {8*row}, v{dst+1}")
    a(f"v_add_u32 v{dst+2}, {16*row}, v{dst}")
    a(f"v_add_u32 v{dst+3}, {16*row}, v{dst+1}")

def tr_addresses():
    t0, t1, t2, t3 = 112, 113, 114, 115
    fg(f"v_lshrrev_b32 v{t0}, 4, v{vLANE}")
    fg(f"v_bfe_u32 v{t1}, v{vLANE}, 2, 2")
    fg(f"v_lshl_add_u32 v{t2}, v{t0}, 3, v{t1}")
    fg(f"v_lshlrev_b32 v{t2}, 7, v{t2}")
    fg(f"v_and_b32 v{t3}, 1, v{vLANE}")
    fg(f"v_lshl_add_u32 v{t2}, v{t3}, 3, v{t2}")
    fg(f"v_add_u32 v{t2}, s{sRING}, v{t2}")
    fg(f"v_and_b32 v{t0}, 1, v{t0}")
    fg(f"v_lshlrev_b32 v{t0}, 2, v{t0}")
    fg(f"v_and_b32 v{t1}, 2, v{t1}")
    fg(f"v_or_b32 v{t0}, v{t0}, v{t1}")
    fg(f"v_bfe_u32 v{t1}, v{vLANE}, 1, 1")
    fg(f"v_xor_b32 v{t0}, v{t0}, v{t1}")
    for c in range(4):
        a(f"s_add_u32 s{sT0}, s{sWV}, {c}")
        a(f"s_and_b32 s{sT0}, s{sT0}, 3")
        a(f"s_lshl_b32 s{sT0}, s{sT0}, 1")
        fg(f"v_xor_b32 v{t1}, s{sT0}, v{t0}")
        fg(f"v_lshl_add_u32 v{vT+c}, v{t1}, 4, v{t2}")

def m0_gap():
    if a.lines[-1].startswith("s_add_u32 m0"): a("s_nop 0")

class Stager:
    def __init__(self, srd, dreg, run, base, end, kstride, nks, optional_last, flags, tag):
        self.srd, self.dreg, self.run, self.base, self.end = srd, dreg, run, base, end
        self.kstride, self.nks, self.opt, self.flags, self.tag = kstride, nks, optional_last, flags, tag
        self.nd = 0; self.nt = 0; self.uid = 0; self.started = False
    def lds(self, pos, q): return (pos % NSLOT)*4096 + q*1024
    def start(self):
        a(f"s_add_u32 m0, s{sRING}, {self.lds(0, 0)}")
        a("s_nop 0")
        self.started = True
    def piece(self, pos, q, burst):
        assert self.started
        opt = self.is_opt(pos)
        off = self.run
        if opt:
            off = sOFF
            if q == 0: a(f"s_add_u32 s{sOFF}, s{self.base}, {pos*self.kstride}")
        m0_gap()
        a(f"buffer_load_dwordx4 v{self.dreg+q}, s[{self.srd}:{self.srd+3}], s{off} offen{self.flags} lds")
        vm.issue((self.tag, pos), opt)
        npos, nq = (pos, q+1) if q < 3 else (pos+1, 0)
        last = npos >= self.nks
        if not last: a(f"s_add_u32 m0, s{sRING}, {self.lds(npos, nq)}")
        if q == 3 and not opt:
            a(f"s_add_u32 s{self.run}, s{self.run}, {self.kstride}")
            a(f"s_cmp_eq_u32 s{self.run}, s{self.end}")
            a(f"s_cselect_b32 s{self.run}, s{self.base}, s{self.run}")
        elif burst and not last:
            a("s_nop 0")
    def is_opt(self, pos): return self.opt and pos == self.nks - 1
    def dma(self):
        pos = self.nd; self.nd += 1
        body = lambda: [self.piece(pos, q, True) for q in range(4)]
        if self.is_opt(pos): guarded(f"L_{self.tag}_d{self.uid}", body); self.uid += 1
        else: body()
    def dma_bg(self, n):
        for _ in range(n):
            pos = self.nd; self.nd += 1
            assert not self.is_opt(pos)
            for q in range(4): bg.add(lambda pos=pos, q=q: self.piece(pos, q, False))
    def tr_body(self, pos):
        if vm.has((self.tag, pos)): vm.wait((self.tag, pos))
        for c in range(4):
            for t in range(2):
                r = 16*pos + 4*c + 2*t
                a(f"ds_read_b64_tr_b16 a[{r}:{r+1}], v{vT+c} offset:{(pos % NSLOT)*4096 + t*512}")
    def tr(self):
        pos = self.nt; self.nt += 1
        if self.is_opt(pos): guarded(f"L_{self.tag}_t{self.uid}", lambda: self.tr_body(pos)); self.uid += 1
        else: self.tr_body(pos)
    def tr_bg(self, n):
        for _ in range(n):
            pos = self.nt; self.nt += 1
            assert not self.is_opt(pos)
            bg.add(lambda pos=pos: self.tr_body(pos))
    def refill(self, settled=False):
        waited = settled
        lim = self.nt if settled else self.nt - 1
        while self.nd < self.nks and self.nd - NSLOT < lim:
            if self.nd >= NSLOT and not waited: a("s_waitcnt lgkmcnt(8)"); waited = True
            self.dma()
    def step(self):
        self.refill()
        if self.nt < self.nks: self.tr()
        self.refill()
    def fill(self, limit=NSLOT):
        while self.nd < min(limit, self.nks): self.dma()
    def advance_to(self, nd, nt):
        assert nd - NSLOT <= nt
        while self.nd < nd or self.nt < nt:
            if self.nd < nd and self.nd < NSLOT: self.dma()
            elif self.nd < nd and self.nd - NSLOT < self.nt - 1:
                a("s_waitcnt lgkmcnt(8)"); self.dma()
            elif self.nt < nt: self.tr()
            else:
                a("s_waitcnt lgkmcnt(0)"); self.dma()
    def request_all(self):
        while self.nd < self.nks: self.step()
    def finish(self):
        while self.nt < self.nks or self.nd < self.nks: self.step()
        a("s_waitcnt lgkmcnt(0)")

def guarded(label, fn):
    a(f"s_cmp_ge_u32 s{sWV}, 2")
    a(f"s_cbranch_scc1 {label}")
    fn()
    a(f"{label}:")

def set_rot(n, spec, dreg):
    mode, g = spec.split(":"); g = int(g)
    if mode == "none":
        a(f"s_mov_b32 s{sROT}, 0"); return
    if mode == "d": a(f"s_mov_b32 s{sT0}, s{dreg}")
    else:
        a(f"s_lshr_b32 s{sT0}, s{sB}, 5")
        if mode == "qd": a(f"s_add_u32 s{sT0}, s{sT0}, s{dreg}")
    a(f"s_and_b32 s{sT0}, s{sT0}, {g-1}")
    a(f"s_mul_i32 s{sT0}, s{sT0}, {n}")
    a(f"s_lshr_b32 s{sROT}, s{sT0}, {g.bit_length()-1}")
def set_run(run, base, end, n, stride):
    a(f"s_add_u32 s{end}, s{base}, {n*stride}")
    a(f"s_mul_i32 s{run}, s{sROT}, {stride}")
    a(f"s_add_u32 s{run}, s{run}, s{base}")
def set_w1_base():
    set_rot(16, args.rot1, sDT1)
    a(f"s_lshl_b32 s{sT0}, s{sWV}, 4")
    a(f"s_mul_i32 s{sWBASE}, s{sT0}, {W1_KS}")
    a(f"s_lshl_b32 s{sT0}, s{sFT}, 7")
    if args.wsame & 1: a(f"s_mov_b32 s{sT0}, 0")
    a(f"s_add_u32 s{sWBASE}, s{sWBASE}, s{sT0}")
    a(f"s_cmp_eq_u32 s{sROLE}, 0")
    a(f"s_cselect_b32 s{sWBASE}, {OOB}, s{sWBASE}")
    set_run(sWOFF, sWBASE, sWEND, 16, W1_KS)
def set_h_base():
    set_rot(16, args.rot1, sDT1)
    a(f"s_lshl_b32 s{sT0}, s{sDT1}, 6")
    a(f"s_lshl_b32 s{sT1}, s{sWV}, 4")
    a(f"s_add_u32 s{sT0}, s{sT0}, s{sT1}")
    a(f"s_mul_i32 s{sABASE}, s{sT0}, 5120")
    if H_OFF: a(f"s_add_u32 s{sABASE}, s{sABASE}, {H_OFF}")
    set_run(sAOFF, sABASE, sAEND, 16, 5120)
def k2_start(dst):
    a(f"s_mul_i32 s{dst}, s{sWV}, 14")
    a(f"s_cmp_eq_u32 s{sWV}, 3")
    a(f"s_cselect_b32 s{sT3}, 1, 0")
    a(f"s_sub_u32 s{dst}, s{dst}, s{sT3}")
def set_w2_base():
    set_rot(13, args.rot2, sDT)
    k2_start(sT0)
    a(f"s_mul_i32 s{sW2B}, s{sT0}, {W2_KS}")
    a(f"s_lshl_b32 s{sT0}, s{sST}, 7")
    if args.wsame & 2: a(f"s_mov_b32 s{sT0}, 0")
    a(f"s_add_u32 s{sW2B}, s{sW2B}, s{sT0}")
    set_run(sW2R, sW2B, sW2E, 13, W2_KS)
def set_g_base():
    set_rot(13, args.rot2, sDT)
    k2_start(sT0)
    a(f"s_mul_i32 s{sT1}, s{sDT}, 54")
    a(f"s_add_u32 s{sT0}, s{sT0}, s{sT1}")
    a(f"s_mul_i32 s{sABASE}, s{sT0}, 5120")
    a(f"s_add_u32 s{sABASE}, s{sABASE}, {G_OFF}")
    set_run(sAOFF, sABASE, sAEND, 13, 5120)

XR = 16
FV = 28
DV = 48
HP = 68
WA = 80
GA = 92
TV = 100
def ln_addresses():
    fg(f"v_and_b32 v{TV}, 31, v{vLANE}")
    fg(f"v_lshrrev_b32 v{TV+1}, 5, v{vLANE}")
    fg(f"v_lshlrev_b32 v{TV+1}, 1, v{TV+1}")
    a(f"s_lshl_b32 s{sT0}, s{sWV}, 2")
    a(f"s_add_u32 s{sT0}, s{sT0}, {T_OFF}")
    fg(f"v_and_b32 v{TV+2}, 7, v{TV}")
    fg(f"v_xor_b32 v{TV+2}, v{TV+2}, v{TV+1}")
    fg(f"v_lshlrev_b32 v{TV+3}, 7, v{TV}")
    a(f"v_add_u32 v{TV+3}, s{sT0}, v{TV+3}")
    a(f"v_lshrrev_b32 v{TV+7}, 1, v{TV}")
    a(f"v_lshlrev_b32 v{TV+8}, 7, v{TV+7}")
    fg(f"v_add_u32 v{TV+8}, s{sT0}, v{TV+8}")
    for k in range(4):
        base = 4096 if k >= 2 else 0
        e = 4 if (k & 1) else 0
        for o in range(2):
            fg(f"v_xor_b32 v{TV+4}, {e + o}, v{TV+2}")
            fg(f"v_lshl_add_u32 v{WA + 2*k + o}, v{TV+4}, 4, v{TV+3}")
            if base: fg(f"v_add_u32 v{WA + 2*k + o}, {base}, v{WA + 2*k + o}")
    fg(f"v_and_b32 v{TV+5}, 1, v{TV}")
    fg(f"v_lshl_add_u32 v{TV+5}, v{TV+5}, 2, v{TV+1}")
    fg(f"v_and_b32 v{TV+6}, 7, v{TV+7}")
    fg(f"v_xor_b32 v{TV+5}, v{TV+5}, v{TV+6}")
    fg(f"v_add_u32 v{TV+8}, 8192, v{TV+8}")
    fg(f"v_lshl_add_u32 v{WA+8}, v{TV+5}, 4, v{TV+8}")
    fg(f"v_xor_b32 v{TV+5}, 1, v{TV+5}")
    fg(f"v_lshl_add_u32 v{WA+9}, v{TV+5}, 4, v{TV+8}")
    for i in range(3):
        fg(f"v_add_u32 v{TV}, {256*i}, v{vTID}")
        fg(f"v_lshrrev_b32 v{TV+1}, 3, v{TV}")
        fg(f"v_xor_b32 v{TV+1}, v{TV+1}, v{TV}")
        fg(f"v_and_b32 v{TV+1}, 7, v{TV+1}")
        fg(f"v_and_b32 v{TV+2}, 0x3f8, v{TV}")
        fg(f"v_or_b32 v{TV+1}, v{TV+1}, v{TV+2}")
        fg(f"v_lshrrev_b32 v{TV+2}, 4, v{TV+1}")
        fg(f"v_mul_u32_u24 v{TV+3}, 205, v{TV+2}")
        fg(f"v_lshrrev_b32 v{TV+3}, 10, v{TV+3}")
        fg(f"v_mul_u32_u24 v{TV+3}, 315, v{TV+3}")
        fg(f"v_add_u32 v{TV+3}, v{TV+3}, v{TV+2}")
        fg(f"v_lshlrev_b32 v{TV+3}, 10, v{TV+3}")
        fg(f"v_and_b32 v{TV+1}, 15, v{TV+1}")
        fg(f"v_lshl_add_u32 v{GA+i}, v{TV+1}, 4, v{TV+3}")
    fg(f"v_lshlrev_b32 v95, 4, v{vTID}")
    fg(f"v_add_u32 v95, {T_OFF}, v95")
    a(f"s_lshr_b32 s{sT0}, s{sB}, 2")
    a(f"s_mul_i32 s{sT0}, s{sT0}, 5120")
    a(f"s_and_b32 s{sT1}, s{sB}, 3")
    a(f"s_lshl_b32 s{sT1}, s{sT1}, 8")
    a(f"s_add_u32 s{sGST}, s{sT0}, s{sT1}")
    if H_OFF: a(f"s_add_u32 s{sGST}, s{sGST}, {H_OFF}")

def reduce32(r, t):
    for dpp in ("quad_perm:[1,0,3,2]", "quad_perm:[2,3,0,1]", "row_half_mirror", "row_mirror"):
        a("s_nop 1")
        a(f"v_add_f32_dpp v{r}, v{r}, v{r} {dpp} row_mask:0xf bank_mask:0xf")
    a(f"v_mov_b32 v{t}, v{r}")
    a("s_nop 1")
    a(f"v_permlane16_swap_b32 v{r}, v{t}")
    a("s_nop 1")
    fg(f"v_add_f32 v{r}, v{r}, v{t}")

def rne_bf16(dst, src):
    a(f"v_cvt_pk_bf16_f32 v{dst}, v{src}, v{src}")
    a(f"v_and_b32 v{dst}, 0xffff0000, v{dst}")

def ln_compute():
    for m in range(10):
        fg(f"v_lshlrev_b32 v{FV+2*m}, 16, v{XR+m}")
        fg(f"v_and_b32 v{FV+2*m+1}, 0xffff0000, v{XR+m}")
    s0, s1 = TV, TV+2
    fg(f"v_pk_add_f32 {P(s0)}, {P(FV)}, {P(FV+2)}")
    fg(f"v_pk_add_f32 {P(s1)}, {P(FV+4)}, {P(FV+6)}")
    for m in range(4, 10):
        s = s0 if m % 2 == 0 else s1
        fg(f"v_pk_add_f32 {P(s)}, {P(s)}, {P(FV+2*m)}")
    fg(f"v_pk_add_f32 {P(s0)}, {P(s0)}, {P(s1)}")
    mean = TV+4
    fg(f"v_add_f32 v{mean}, v{s0}, v{s0+1}")
    reduce32(mean, TV+6)
    fg(f"v_mul_f32 v{mean}, {f32hex(1.0/640)}, v{mean}")
    fg(f"v_mov_b32 v{mean+1}, v{mean}")
    for m in range(10):
        fg(f"v_pk_add_f32 {P(DV+2*m)}, {P(FV+2*m)}, {P(mean)} neg_lo:[0,1] neg_hi:[0,1]")
    fg(f"v_pk_mul_f32 {P(s0)}, {P(DV)}, {P(DV)}")
    fg(f"v_pk_mul_f32 {P(s1)}, {P(DV+2)}, {P(DV+2)}")
    for m in range(2, 10):
        s = s0 if m % 2 == 0 else s1
        fg(f"v_pk_fma_f32 {P(s)}, {P(DV+2*m)}, {P(DV+2*m)}, {P(s)}")
    fg(f"v_pk_add_f32 {P(s0)}, {P(s0)}, {P(s1)}")
    var = TV+8
    fg(f"v_add_f32 v{var}, v{s0}, v{s0+1}")
    reduce32(var, TV+6)
    fg(f"v_mul_f32 v{var}, {f32hex(1.0/640)}, v{var}")
    rs = TV+10
    if args.exact:
        rne_bf16(var, var)
        a(f"v_add_f32 v{var}, {f32hex(1e-5)}, v{var}")
        rne_bf16(var, var)
        a(f"v_sqrt_f32 v{var}, v{var}")
        a("s_nop 0")
        rne_bf16(var, var)
        a(f"v_rcp_f32 v{rs}, v{var}")
        rne_bf16(mean, mean)
        a(f"v_mov_b32 v{mean+1}, v{mean}")
        fg(f"v_mov_b32 v{rs+1}, v{rs}")
        for m in range(10):
            fg(f"v_pk_add_f32 {P(DV+2*m)}, {P(FV+2*m)}, {P(mean)} neg_lo:[0,1] neg_hi:[0,1]")
        for m in range(10):
            fg(f"v_cvt_pk_bf16_f32 v{HP+m}, v{DV+2*m}, v{DV+2*m+1}")
        for m in range(10):
            fg(f"v_lshlrev_b32 v{DV+2*m}, 16, v{HP+m}")
            fg(f"v_and_b32 v{DV+2*m+1}, 0xffff0000, v{HP+m}")
    else:
        a(f"v_add_f32 v{var}, {f32hex(1e-5)}, v{var}")
        a(f"v_rsq_f32 v{rs}, v{var}")
        a("s_nop 0")
        fg(f"v_mov_b32 v{rs+1}, v{rs}")
    for m in range(10):
        fg(f"v_pk_mul_f32 {P(DV+2*m)}, {P(DV+2*m)}, {P(rs)}")
    for m in range(10):
        fg(f"v_cvt_pk_bf16_f32 v{HP+m}, v{DV+2*m}, v{DV+2*m+1}")
    a(f"s_mov_b32 s{sT0}, 0x05040100")
    a(f"s_mov_b32 s{sT1}, 0x07060302")
    for k in range(5):
        a(f"v_permlane32_swap_b32 v{HP+2*k}, v{HP+2*k+1}")
    a("s_nop 1")
    for k in range(5):
        a(f"v_perm_b32 v{DV+2*k}, v{HP+2*k+1}, v{HP+2*k}, s{sT0}")
        a(f"v_perm_b32 v{DV+2*k+1}, v{HP+2*k+1}, v{HP+2*k}, s{sT1}")
    for k in range(10):
        a(f"ds_write_b32 v{WA+k}, v{DV+k}")

def ln_store():
    a("s_waitcnt lgkmcnt(0)")
    a("s_barrier")
    a(f"ds_read_b128 v[{FV}:{FV+3}], v95")
    a(f"ds_read_b128 v[{FV+4}:{FV+7}], v95 offset:4096")
    a(f"s_cmp_ge_u32 s{sWV}, 2")
    a("s_cbranch_scc1 L_ln_two")
    a(f"ds_read_b128 v[{FV+8}:{FV+11}], v95 offset:8192")
    a("s_waitcnt lgkmcnt(0)")
    a(f"buffer_store_dwordx4 v[{FV+8}:{FV+11}], v{GA+2}, s[{srdWS}:{srdWS+3}], s{sGST} offen{SC}")
    vm.issue("hst3", True)
    a("L_ln_two:")
    a("s_waitcnt lgkmcnt(0)")
    a(f"buffer_store_dwordx4 v[{FV}:{FV+3}], v{GA}, s[{srdWS}:{srdWS+3}], s{sGST} offen{SC}")
    a(f"buffer_store_dwordx4 v[{FV+4}:{FV+7}], v{GA+1}, s[{srdWS}:{srdWS+3}], s{sGST} offen{SC}")
    vm.issue("hst"); vm.issue("hst")

def publish_nonce():
    a(f"s_or_b32 s{sT0}, s{sB}, s{sWV}")
    a(f"s_cmp_lg_u32 s{sT0}, 0")
    a("s_cbranch_scc1 L_no_nonce")
    a(f"s_memrealtime s[{sT0}:{sT0+1}]")
    a("s_waitcnt lgkmcnt(0)")
    a(f"s_or_b32 s{sT1}, s{sT1}, 0x40000000")
    a(f"v_mov_b32 v12, s{sT0}")
    a(f"v_mov_b32 v13, s{sT1}")
    a("v_mov_b32 v112, 0")
    a(f"buffer_store_dwordx2 v[12:13], v112, s[{srdDBG}:{srdDBG+3}], 0 offen sc1")
    a("L_no_nonce:")
    vm.issue("noncest", True)

def nonce_issue():
    a("v_mov_b32 v18, 0")
    a(f"buffer_load_dwordx2 v[16:17], v18, s[{srdDBG}:{srdDBG+3}], 0 offen sc1")
    vm.issue("nonce")

def nonce_finish(label):
    a(f"s_mov_b32 s{sSPIN}, {SPIN_MAX}")
    a(f"{label}:")
    a(f"v_readfirstlane_b32 s{sNON}, v16")
    a(f"v_readfirstlane_b32 s{sNON+1}, v17")
    a("s_nop 3")
    a(f"s_sub_u32 s{sSPIN}, s{sSPIN}, 1")
    a(f"s_cselect_b32 s{sT0}, 1, s{sNON+1}")
    a(f"s_cmp_lg_u32 s{sT0}, 0")
    a(f"s_cbranch_scc1 {label}_ok")
    a(f"buffer_load_dwordx2 v[16:17], v18, s[{srdDBG}:{srdDBG+3}], 0 offen sc1")
    a("s_waitcnt vmcnt(0)")
    a(f"s_branch {label}")
    a(f"{label}_ok:")

def store_flag(label, off_sreg):
    a(f"s_cmp_lg_u32 s{sWV}, 0")
    a(f"s_cbranch_scc1 {label}")
    a(f"v_mov_b32 v16, s{sNON}")
    a(f"v_mov_b32 v17, s{sNON+1}")
    a("v_mov_b32 v18, 0")
    a(f"s_mov_b64 s[{sEXEC}:{sEXEC+1}], exec")
    a("s_mov_b64 exec, 1")
    a(f"buffer_store_dwordx2 v[16:17], v18, s[{srdWS}:{srdWS+3}], s{off_sreg} offen sc1")
    a(f"s_mov_b64 exec, s[{sEXEC}:{sEXEC+1}]")
    a("s_nop 1")
    a(f"{label}:")
    vm.issue("flag", True)

vPOLL = 120
def poll_issue(off_sreg):
    a(f"buffer_load_dwordx2 v[{vPOLL}:{vPOLL+1}], v{vPOLL+2}, s[{srdWS}:{srdWS+3}], s{off_sreg} offen sc1")
    vm.issue("poll")
def poll_check(label, off_sreg, deep=0):
    vm.wait("poll")
    def check(r, ok):
        a(f"v_cmp_ne_u32 vcc, s{sNON}, v{r}")
        a(f"v_cmp_ne_u32 s[{sT0}:{sT0+1}], s{sNON+1}, v{r+1}")
        a("s_nop 3")
        a(f"s_or_b64 vcc, vcc, s[{sT0}:{sT0+1}]")
        a(f"s_cbranch_vccz {ok}")
    def load(r):
        a(f"buffer_load_dwordx2 v[{r}:{r+1}], v{vPOLL+2}, s[{srdWS}:{srdWS+3}], s{off_sreg} offen sc1")
    a(f"s_mov_b32 s{sSPIN}, {SPIN_MAX}")
    if not deep:
        a(f"{label}:")
        check(vPOLL, f"{label}_ok")
        if args.sleep: a(f"s_sleep {args.sleep}")
        load(vPOLL)
        a("s_waitcnt vmcnt(0)")
        a(f"s_sub_u32 s{sSPIN}, s{sSPIN}, 1")
        a(f"s_cbranch_scc0 {label}")
        a(f"{label}_ok:")
        return
    R = (vPOLL, 116, 118)
    check(vPOLL, f"{label}_ok")
    for r in R:
        load(r)
        a(f"s_sleep {deep}")
    a(f"{label}:")
    for r in R:
        a("s_waitcnt vmcnt(2)")
        check(r, f"{label}_ok")
        load(r)
        a(f"s_sleep {deep}")
    a(f"s_sub_u32 s{sSPIN}, s{sSPIN}, 1")
    a(f"s_cbranch_scc0 {label}")
    a(f"{label}_ok:")

def a_load(slot, mi, ks, fixed=False):
    r = abuf(slot, mi)
    off = sAOFF
    if fixed:
        off = sOFF
        if mi == 0: a(f"s_add_u32 s{sOFF}, s{sABASE}, {ks*5120}")
    if mi < 4:
        a(f"buffer_load_dwordx4 v[{r}:{r+3}], v{vA}, s[{srdWS}:{srdWS+3}], s{off} offen offset:{mi*1024}{fl(args.asc)}")
    else:
        a(f"buffer_load_dwordx4 v[{r}:{r+3}], v{vA2}, s[{srdWS}:{srdWS+3}], s{off} offen{fl(args.asc)}")
        if not fixed:
            a(f"s_add_u32 s{sAOFF}, s{sAOFF}, {args.astride}")
            a(f"s_cmp_eq_u32 s{sAOFF}, s{sAEND}")
            a(f"s_cselect_b32 s{sAOFF}, s{sABASE}, s{sAOFF}")
    vm.issue(("A", ks), fixed)

def mfma(first, ks, slot, c, mi, gemm):
    if args.nomfma and not first: return
    d = acc(c, mi); wr = 16*ks + 4*c; ar = abuf(slot, mi)
    cin = "0" if first else f"v[{d}:{d+3}]"
    if gemm == 1: a(f"v_mfma_f32_16x16x32_bf16 v[{d}:{d+3}], a[{wr}:{wr+3}], v[{ar}:{ar+3}], {cin}")
    else:         a(f"v_mfma_f32_16x16x32_bf16 v[{d}:{d+3}], v[{ar}:{ar+3}], a[{wr}:{wr+3}], {cin}")

def main_prefill(gemm, nks, optional_last):
    for ks in range(min(NA, nks)):
        for mi in range(5): a_load(ks % NA, mi, ks, optional_last and ks == nks - 1)

def red_write(c, mi):
    blk = (c-1)*5 + mi
    r = acc(c, mi)
    if blk < 12: a(f"ds_write_b128 v{vRW+c-1}, v[{r}:{r+3}] offset:{blk*1024}")
    else:        a(f"ds_write_b128 v{vRW+3}, v[{r}:{r+3}] offset:{(blk-12)*1024}")

def main_loop(gemm, nks, optional_last, W, tail=None):
    depth = min(NA, nks)
    nreal = nks - 1 if optional_last else nks
    nplain = nreal - args.nlast
    def loads(ks):
        for mi in range(5): a_load(ks % NA, mi, ks, optional_last and ks == nks - 1)
    while W.nt < 2: W.tr()
    pending_tr = True
    last_plain = nks if not args.nlast else nplain
    for ks in range(last_plain):
        opt = optional_last and ks == nks - 1
        def body():
            nonlocal pending_tr
            vm.wait(("A", ks))
            if pending_tr: a("s_waitcnt lgkmcnt(0)"); pending_tr = False
            if args.mstamps and ks in (0, 4, 8, 12): stamp(f"g{gemm} step {ks} data")
            settled = W.nt
            pieces = []
            if W.nd < W.nks and W.nd - NSLOT < settled and not W.is_opt(W.nd):
                pos = W.nd; W.nd += 1
                pieces = [lambda q=q, pos=pos: W.piece(pos, q, False) for q in range(4)]
            nxt = ks + depth
            for mi in range(5):
                if args.align == 2 or (args.align == 1 and mi == 0): a(".p2align 3")
                for c in range(4):
                    mfma(ks == 0, ks, ks % NA, c, mi, gemm)
                    if nxt < nreal: bg.tick()
                    if c == 1 and pieces: pieces.pop(0)()
                if mi == 0 and W.nt <= ks + 1 and W.nt < W.nks and not W.is_opt(W.nt):
                    W.tr(); pending_tr = True
                if nxt < nreal: a_load(nxt % NA, mi, nxt)
                elif tail is not None: tail()
        if opt: guarded(f"L_g{gemm}_mm", body)
        else: body()
        nxt = ks + depth
        if optional_last and nxt == nks - 1:
            guarded(f"L_g{gemm}_ld", lambda: loads(nxt))
        if W.nd < W.nks and W.is_opt(W.nd) and W.nd - NSLOT < W.nt - 1:
            a("s_waitcnt lgkmcnt(0)"); W.dma()
        if W.nt < W.nks and W.is_opt(W.nt) and W.nt <= ks + 1 and W.nd > W.nt:
            W.tr(); pending_tr = True
        if nxt == nreal - 1: bg.flush()
    if args.nlast:
        assert W.nd == W.nks
        while W.nt < W.nks: W.tr()
        steps = list(range(nplain, nreal))
        assert steps[0] + depth >= nreal
        assert not optional_last or steps[0] + depth > nks - 1
        vm.wait(("A", nreal - 1))
        if optional_last: guarded(f"L_g{gemm}_ow", lambda: a("s_waitcnt vmcnt(0)") if tail is None else None)
        a("s_waitcnt lgkmcnt(0)")
        a("s_barrier")
        order = (1, 2, 3, 0)
        n = 0
        for gi, c in enumerate(order):
            if optional_last:
                ko = nks - 1
                guarded(f"L_g{gemm}_o{c}", lambda: [mfma(False, ko, ko % NA, c, mi, gemm) for mi in range(5)])
            k = 0
            for ks in steps:
                for mi in range(5):
                    mfma(False, ks, ks % NA, c, mi, gemm)
                    k += 1; n += 1
                    if gi > 0 and 4 <= k <= 8: red_write(order[gi-1], k - 4)
                    if tail is not None and n % 4 == 0: tail()
    assert W.nd == W.nks and W.nt == W.nks

RT = 16
PK = 80
def epilogue_addresses():
    for c in range(1, 4):
        a(f"s_add_u32 s{sT0}, s{sWV}, {c}")
        a(f"s_and_b32 s{sT0}, s{sT0}, 3")
        a(f"s_mul_i32 s{sT1}, s{sT0}, {RING}")
        a(f"s_add_u32 s{sT1}, s{sT1}, {6*4096}")
        a(f"v_add_u32 v{vRW+c-1}, s{sT1}, v{vA}")
        if c == 3:
            a(f"s_mul_i32 s{sT1}, s{sT0}, 3072")
            a(f"s_add_u32 s{sT1}, s{sT1}, {T_OFF}")
            a(f"v_add_u32 v{vRW+3}, s{sT1}, v{vA}")
    a(f"s_add_u32 s{sT1}, s{sRING}, {6*4096}")
    a(f"v_add_u32 v{vRR}, s{sT1}, v{vA}")
    a(f"s_mul_i32 s{sT1}, s{sWV}, 3072")
    a(f"s_add_u32 s{sT1}, s{sT1}, {T_OFF}")
    a(f"v_add_u32 v{vRR+1}, s{sT1}, v{vA}")
    a(f"v_lshrrev_b32 v12, 4, v{vLANE}")
    a("v_and_b32 v13, 1, v12")
    a(f"v_lshlrev_b32 v{vGO}, 10, v13")
    a(f"v_lshlrev_b32 v{vOO}, 5, v13")
    a("v_lshrrev_b32 v12, 1, v12")
    a(f"v_lshl_add_u32 v{vGL}, v12, 8, 0")
    a(f"v_lshlrev_b32 v{vOL}, 4, v12")
    a(f"v_and_b32 v12, 15, v{vLANE}")
    a(f"v_lshl_add_u32 v{vGL}, v12, 4, v{vGL}")
    a(f"v_add_u32 v{vGO}, v{vGO}, v{vGL}")
    a("v_mul_u32_u24 v12, 1280, v12")
    a(f"v_add_u32 v{vOL}, v{vOL}, v12")
    a(f"v_add_u32 v{vOO}, v{vOO}, v{vOL}")
    a(f"s_mul_i32 s{sT0}, s{sDT1}, 54")
    a(f"s_lshl_b32 s{sT1}, s{sFT}, 1")
    a(f"s_add_u32 s{sT0}, s{sT0}, s{sT1}")
    a(f"s_lshr_b32 s{sT1}, s{sWV}, 1")
    a(f"s_add_u32 s{sT0}, s{sT0}, s{sT1}")
    a(f"s_mul_i32 s{sT0}, s{sT0}, 5120")
    a(f"s_and_b32 s{sT1}, s{sWV}, 1")
    a(f"s_lshl_b32 s{sT1}, s{sT1}, 9")
    a(f"s_add_u32 s{sT0}, s{sT0}, s{sT1}")
    a(f"s_add_u32 s{sGST}, s{sT0}, {G_OFF}")
    a(f"s_lshl_b32 s{sT0}, s{sST}, 2")
    a(f"s_add_u32 s{sT0}, s{sT0}, s{sWV}")
    a(f"s_mul_i32 s{sT0}, s{sT0}, {16*1280}")
    a(f"s_mul_i32 s{sT1}, s{sDT}, 160")
    a(f"s_add_u32 s{sOST}, s{sT0}, s{sT1}")
    c1 = -2.0 * 0.7978845608028654 * 1.4426950408889634
    a(f"v_mov_b32 v{vC}, {f32hex(c1)}"); a(f"v_mov_b32 v{vC+1}, {f32hex(c1)}")
    a(f"v_mov_b32 v{vC+2}, {f32hex(c1*0.044715)}"); a(f"v_mov_b32 v{vC+3}, {f32hex(c1*0.044715)}")
    a(f"v_mov_b32 v{vC+4}, 1.0"); a(f"v_mov_b32 v{vC+5}, 1.0")
    dma_offsets(vD2, W2_ROW)
    set_w2_base()
    a(f"s_lshl_b32 s{sT0}, s{sST}, 7")
    a(f"s_lshl_b32 s{sT1}, s{sWV}, 5")
    a(f"s_add_u32 s{sT0}, s{sT0}, s{sT1}")
    a(f"v_and_b32 v12, 15, v{vLANE}")
    a("v_lshlrev_b32 v12, 1, v12")
    a(f"buffer_load_ushort v{vB2}, v12, s[{srdB2}:{srdB2+3}], s{sT0} offen")
    vm.issue("b2")

def reduce_write():
    if not args.nlast:
        a("s_nop 6")
        a("s_barrier")
        if args.estamps: stamp("red: barrier 1")
        for c in range(1, 4):
            for mi in range(5):
                red_write(c, mi)
                bg.tick(3)
    a("s_waitcnt lgkmcnt(0)")
    if args.estamps: stamp("red: writes done")
    a("s_barrier")
    if args.estamps: stamp("red: barrier 2")
    for mi in range(5):
        for c in range(1, 4):
            blk = (c-1)*5 + mi
            r = RT + 4*blk
            if blk < 12: a(f"ds_read_b128 v[{r}:{r+3}], v{vRR} offset:{blk*1024}")
            else:        a(f"ds_read_b128 v[{r}:{r+3}], v{vRR+1} offset:{(blk-12)*1024}")
        bg.tick(6)

def reduce_sum(mi, counted=True):
    if counted: a(f"s_waitcnt lgkmcnt({12 - 3*mi})")
    for c in range(1, 4):
        for h in range(2):
            d = acc(0, mi) + 2*h; s = RT + 4*((c-1)*5 + mi) + 2*h
            fg(f"v_pk_add_f32 {P(d)}, {P(d)}, {P(s)}")

def pack_swap():
    for mi in range(5):
        d = acc(0, mi); r = PK + 2*mi
        a(f"v_cvt_pk_bf16_f32 v{r}, v{d}, v{d+1}")
        a(f"v_cvt_pk_bf16_f32 v{r+1}, v{d+2}, v{d+3}")
    a(f"v_mov_b32 v{PK+10}, v{PK+8}")
    a(f"v_mov_b32 v{PK+11}, v{PK+9}")
    a("s_nop 1")
    for p in range(3):
        b = PK + 4*p
        a(f"v_permlane16_swap_b32 v{b}, v{b+2}")
        a(f"v_permlane16_swap_b32 v{b+1}, v{b+3}")

def epilogue1(after_reduce):
    reduce_write()
    a(f"v_lshlrev_b32 v96, 16, v{vB1}");   a(f"v_and_b32 v97, 0xffff0000, v{vB1}")
    a(f"v_lshlrev_b32 v98, 16, v{vB1+1}"); a(f"v_and_b32 v99, 0xffff0000, v{vB1+1}")
    T = 100
    for mi in range(5):
        d = acc(0, mi)
        reduce_sum(mi)
        if args.estamps and mi in (0, 4): stamp(f"red: sum {mi}")
        if mi == 4: after_reduce()
        for h in range(2):
            fg(f"v_pk_add_f32 {P(d+2*h)}, {P(d+2*h)}, {P(96+2*h)}")
        t = T + 4*(mi % 2)
        for h in range(2):
            u = d + 2*h
            fg(f"v_pk_mul_f32 {P(t+2*h)}, {P(u)}, {P(u)}")
        for h in range(2):
            fg(f"v_pk_fma_f32 {P(t+2*h)}, {P(t+2*h)}, {P(vC+2)}, {P(vC)}")
        for h in range(2):
            u = d + 2*h
            fg(f"v_pk_mul_f32 {P(t+2*h)}, {P(t+2*h)}, {P(u)}")
        for k in range(4): a(f"v_exp_f32 v{t+k}, v{t+k}")
        bg.tick(8)
        for h in range(2): a(f"v_pk_add_f32 {P(t+2*h)}, {P(t+2*h)}, {P(vC+4)}")
        for k in range(4): a(f"v_rcp_f32 v{t+k}, v{t+k}")
        a("s_nop 0")
        bg.tick(10)
        for h in range(2): fg(f"v_pk_mul_f32 {P(d+2*h)}, {P(d+2*h)}, {P(t+2*h)}")
        r = PK + 2*mi
        a(f"v_cvt_pk_bf16_f32 v{r}, v{d}, v{d+1}")
        a(f"v_cvt_pk_bf16_f32 v{r+1}, v{d+2}, v{d+3}")
        if mi in (1, 3):
            p = mi // 2; b = PK + 4*p
            a("s_nop 1")
            a(f"v_permlane16_swap_b32 v{b}, v{b+2}")
            a(f"v_permlane16_swap_b32 v{b+1}, v{b+3}")
            if not args.bglate:
                a(f"buffer_store_dwordx4 v[{b}:{b+3}], v{vGO}, s[{srdWS}:{srdWS+3}], s{sGST} offen offset:{2048*p}{SC}")
                vm.issue("gst")
    bg.flush()
    a(f"v_mov_b32 v{PK+10}, v{PK+8}")
    a(f"v_mov_b32 v{PK+11}, v{PK+9}")
    a(f"s_add_u32 s{sT1}, s{sGST}, 4096")
    a("s_nop 0")
    a(f"v_permlane16_swap_b32 v{PK+8}, v{PK+10}")
    a(f"v_permlane16_swap_b32 v{PK+9}, v{PK+11}")
    if args.bglate:
        for p in range(2):
            b = PK + 4*p
            a(f"buffer_store_dwordx4 v[{b}:{b+3}], v{vGO}, s[{srdWS}:{srdWS+3}], s{sGST} offen offset:{2048*p}{SC}")
            vm.issue("gst")
    a(f"buffer_store_dwordx4 v[{PK+8}:{PK+11}], v{vGL}, s[{srdWS}:{srdWS+3}], s{sT1} offen{SC}")
    vm.issue("gst")

def epilogue2():
    reduce_write()
    a(f"v_lshlrev_b32 v96, 16, v{vB2}")
    a("v_mov_b32 v97, v96")
    o = fl(args.ofl)
    for mi in range(5):
        d = acc(0, mi)
        reduce_sum(mi)
        for h in range(2):
            a(f"v_pk_add_f32 {P(d+2*h)}, {P(d+2*h)}, {P(96)}")
        r = PK + 2*mi
        a(f"v_cvt_pk_bf16_f32 v{r}, v{d}, v{d+1}")
        a(f"v_cvt_pk_bf16_f32 v{r+1}, v{d+2}, v{d+3}")
        if mi in (1, 3):
            p = mi // 2; b = PK + 4*p
            a("s_nop 1")
            a(f"v_permlane16_swap_b32 v{b}, v{b+2}")
            a(f"v_permlane16_swap_b32 v{b+1}, v{b+3}")
            a(f"buffer_store_dwordx4 v[{b}:{b+3}], v{vOO}, s[{srdOUT}:{srdOUT+3}], s{sOST} offen offset:{64*p}{o}")
    a(f"v_mov_b32 v{PK+10}, v{PK+8}")
    a(f"v_mov_b32 v{PK+11}, v{PK+9}")
    a("s_nop 1")
    a(f"v_permlane16_swap_b32 v{PK+8}, v{PK+10}")
    a(f"v_permlane16_swap_b32 v{PK+9}, v{PK+11}")
    a(f"buffer_store_dwordx4 v[{PK+8}:{PK+11}], v{vOL}, s[{srdOUT}:{srdOUT+3}], s{sOST} offen offset:128{o}")

pair = lambda s: tuple(int(x) for x in s.split(":"))
file_begin(a, [(MAIN, 256, 256, LDS_BYTES)])
prologue(MAIN, "L_end")
stamp("kernarg")
set_w1_base()
W1 = Stager(srdW1, vD, sWOFF, sWBASE, sWEND, W1_KS, 16, False, fl(args.w1fl), "w1")
W1.start()
publish_nonce()
if args.pf1:
    set_rot(16, args.pf1rot, sDT1)
    a(f"s_mul_i32 s{sT2}, s{sROT}, {W1_KS}")
    a(f"s_add_u32 s{sW2E}, s{sT2}, s{sWBASE}")
    def pf_piece(i, q):
        a(f"buffer_load_dwordx4 v[{128+4*((4*i+q)%8)}:{131+4*((4*i+q)%8)}], v{vD+q}, s[{srdW1}:{srdW1+3}], s{sW2E} offen{fl(args.w1fl)}")
        vm.issue("pf1")
        if q == 3:
            a(f"s_add_u32 s{sW2E}, s{sW2E}, {W1_KS}")
            a(f"s_cmp_eq_u32 s{sW2E}, s{sWEND}")
            a(f"s_cselect_b32 s{sW2E}, s{sWBASE}, s{sW2E}")
    for i in range(args.pf1):
        for q in range(4): bg.add(lambda i=i, q=q: pf_piece(i, q))
if args.npre: W1.dma_bg(args.npre)
bg.every = 6
ln_addresses()
tr_addresses()
bg.flush()
vm.wait("x")
stamp("x landed")
if args.nln: W1.dma_bg(args.nln)
bg.every = args.lnevery; bg.cnt = 0
ln_compute()
bg.flush()
ln_store()
nonce_issue()
stamp("h stores issued")
W1.fill(W1.nd + args.npost)
a(f"s_lshl_b32 s{sT0}, s{sFT}, 7")
a(f"s_lshl_b32 s{sT1}, s{sWV}, 5")
a(f"s_add_u32 s{sT0}, s{sT0}, s{sT1}")
a(f"v_lshrrev_b32 v12, 4, v{vLANE}")
a("v_lshlrev_b32 v12, 3, v12")
a(f"buffer_load_dwordx2 v[{vB1}:{vB1+1}], v12, s[{srdB1}:{srdB1+3}], s{sT0} offen")
vm.issue("b1")
vm.wait("nonce")
nonce_finish("L_nonce")
a("s_barrier")
a(f"s_lshl_b32 s{sT2}, s{sB}, 6")
a(f"s_add_u32 s{sT2}, s{sT2}, {FL_LN}")
store_flag("L_flag_ln", sT2)
stamp("LN flag stored")
a(f"s_cmp_eq_u32 s{sROLE}, 0")
a("s_cbranch_scc1 L_idle")
i_branch = nstamp[0]
set_h_base()
a(f"s_lshl_b32 s{sT2}, s{sWV}, 12")
a(f"s_add_u32 s{sGST}, s{sT2}, {FL_LN}")
a(f"v_lshlrev_b32 v{vPOLL+2}, 6, v{vLANE}")
W1.advance_to(*pair(args.pre1))
poll_issue(sGST)
W1.advance_to(*pair(args.pre1b))
stamp("poll check")
poll_check("L_poll_ln", sGST, args.deep1)
stamp("LN flags seen")
main_prefill(1, 16, False)
W2 = Stager(srdW2, vD2, sW2R, sW2B, sW2E, W2_KS, 14, True, fl(args.w2fl), "w2")
queue_lines(epilogue_addresses)
bg.every = args.addrevery; bg.cnt = 0
tailq = []
def tail():
    assert W1.nd == W1.nks
    if not W2.started: W2.start()
    if tailq: tailq.pop(0)()
ntail = 5 if args.tailpieces else 0
for pos in range(ntail):
    for q in range(4): tailq.append(lambda pos=pos, q=q: W2.piece(pos, q, False))
W2.nd = ntail
main_loop(1, 16, False, W1, tail if ntail else None)
assert not tailq
if not W2.started: W2.start()
stamp("main1 done")
W2.dma_bg(args.n2pre - W2.nd)
bg.every = args.epevery; bg.cnt = 0
def after_reduce():
    if not args.epseq:
        W2.dma_bg(args.ep3)
        W2.tr_bg(args.eptr)
        return
    for ch in args.epseq:
        if ch == "T": W2.tr_bg(1)
        else:
            if W2.nd >= NSLOT:
                assert W2.nd - NSLOT < W2.nt
                bg.add(lambda: a("s_waitcnt lgkmcnt(0)"))
            W2.dma_bg(1)
epilogue1(after_reduce)
stamp("G stores issued")
a("s_waitcnt lgkmcnt(0)")
def g_poll_setup():
    set_g_base()
    a(f"s_mul_i32 s{sT2}, s{sWV}, 7")
    a(f"s_cmp_eq_u32 s{sWV}, 3")
    a(f"s_cselect_b32 s{sT3}, 1, 0")
    a(f"s_sub_u32 s{sT2}, s{sT2}, s{sT3}")
    a(f"s_lshl_b32 s{sT3}, s{sDT}, 5")
    a(f"s_add_u32 s{sT2}, s{sT2}, s{sT3}")
    a(f"s_lshl_b32 s{sT2}, s{sT2}, 6")
    a(f"s_add_u32 s{sGST}, s{sT2}, {FL_G}")
    a(f"v_min_u32 v{vPOLL+2}, 6, v{vLANE}")
    a(f"v_lshlrev_b32 v{vPOLL+2}, 6, v{vPOLL+2}")
g_poll_setup()
if args.pre2:
    W2.advance_to(*pair(args.pre2))
else:
    assert W2.nd + args.n2fill - NSLOT <= W2.nt
    W2.fill(W2.nd + args.n2fill)
    for _ in range(args.k2pre): W2.tr()
vm.wait("gst")
a("s_barrier")
a(f"s_lshl_b32 s{sT2}, s{sDT1}, 5")
a(f"s_add_u32 s{sT2}, s{sT2}, s{sFT}")
a(f"s_lshl_b32 s{sT2}, s{sT2}, 6")
a(f"s_add_u32 s{sT2}, s{sT2}, {FL_G}")
store_flag("L_flag_g", sT2)
stamp("G flag stored")
j_nd, j_nt = pair(args.join2)
poll_issue(sGST)
W2.advance_to(j_nd, j_nt)
stamp("w2 staged")
vm_join = list(vm.ops)
i_join = nstamp[0]
a("s_branch L_gemm2")
a("L_idle:")
nstamp[0] = i_branch
a("s_waitcnt vmcnt(0)")
vm.drained()
epilogue_addresses()
if args.pfmode in ("mall", "split"):
    a(f"s_lshl_b32 s{sT2}, s{sWV}, 12")
    a(f"s_add_u32 s{sGST}, s{sT2}, {FL_LN}")
    a(f"v_lshlrev_b32 v{vPOLL+2}, 6, v{vLANE}")
    if args.pfwait:
        poll_issue(sGST)
        poll_check("L_poll_idle", sGST)
    a(f"s_and_b32 s{sT0}, s{sB}, 7")
    a(f"s_and_b32 s{sT1}, s{sB}, 1")
    a(f"s_add_u32 s{sT1}, s{sT1}, 8")
    a(f"s_lshr_b32 s{sT2}, s{sB}, 5")
    a(f"s_cmp_eq_u32 s{sT2}, 7")
    a(f"s_cselect_b32 s{sT0}, s{sT0}, s{sT1}")
    a(f"s_lshl_b32 s{sT0}, s{sT0}, 2")
    a(f"s_bfe_u32 s{sT1}, s{sB}, 0x20003")
    a(f"s_add_u32 s{sT0}, s{sT0}, s{sT1}")
    a(f"s_lshl_b32 s{sT0}, s{sT0}, 2")
    a(f"s_add_u32 s{sIDX}, s{sT0}, s{sWV}")
    def pf_loop(label, n):
        a(f"s_mov_b32 s{sT1}, {n}")
        a(f"{label}:")
        a(f"buffer_load_dwordx4 v[20:23], v{vA}, s[{srdW2}:{srdW2+3}], s{sT0} offen")
        a(f"s_add_u32 s{sT0}, s{sT0}, 1024")
        a(f"s_sub_u32 s{sT1}, s{sT1}, 1")
        a(f"s_cmp_lg_u32 s{sT1}, 0")
        a(f"s_cbranch_scc1 {label}")
    if args.pfmode == "mall":
        a(f"s_mul_i32 s{sT0}, s{sIDX}, {44*1024}")
        pf_loop("L_pf_loop", 44)
        a("s_waitcnt vmcnt(0)")
    else:
        a(f"s_and_b32 s{sT2}, s{sIDX}, 3")
        a(f"s_mul_i32 s{sT0}, s{sT2}, 14")
        a(f"s_cmp_eq_u32 s{sT2}, 3")
        a(f"s_cselect_b32 s{sT3}, 1, 0")
        a(f"s_sub_u32 s{sT0}, s{sT0}, s{sT3}")
        a(f"s_lshl_b32 s{sT0}, s{sT0}, 5")
        a(f"s_lshr_b32 s{sT2}, s{sIDX}, 2")
        a(f"s_lshl_b32 s{sT2}, s{sT2}, 2")
        a(f"s_add_u32 s{sT0}, s{sT0}, s{sT2}")
        a(f"s_lshl_b32 s{sT0}, s{sT0}, 12")
        pf_loop("L_pf_loop", 16)
vm.drained()
stamp("idle: prefetch done")
W2i = Stager(srdW2, vD2, sW2R, sW2B, sW2E, W2_KS, 14, True, fl(args.w2fl), "w2i")
W2i.start()
if args.pfmode == "xcd2":
    a(f"s_lshr_b32 s{sT0}, s{sB}, 5")
    a(f"s_cmp_lg_u32 s{sT0}, 7")
    a("s_cbranch_scc1 L_pfx_done")
    a(f"s_bfe_u32 s{sT2}, s{sB}, 0x20003")
    a(f"s_mul_i32 s{sT0}, s{sT2}, 14")
    a(f"s_cmp_eq_u32 s{sT2}, 3")
    a(f"s_cselect_b32 s{sT3}, 1, 0")
    a(f"s_sub_u32 s{sT0}, s{sT0}, s{sT3}")
    a(f"s_lshl_b32 s{sT0}, s{sT0}, 5")
    a(f"s_lshl_b32 s{sT1}, s{sWV}, 3")
    a(f"s_add_u32 s{sT0}, s{sT0}, s{sT1}")
    a(f"s_lshl_b32 s{sT0}, s{sT0}, 12")
    a(f"s_bfe_u32 s{sT1}, s{sB}, 0x20001")
    a(f"s_lshl_b32 s{sT1}, s{sT1}, 10")
    a(f"s_add_u32 s{sT0}, s{sT0}, s{sT1}")
    a(f"s_mov_b32 s{sT2}, {args.pfn}")
    if args.pfskip:
        a(f"s_add_u32 s{sT0}, s{sT0}, {args.pfskip0*32*4096}")
    vpf = vA
    if args.pfmask:
        vpf = 24
        a(f"v_lshrrev_b32 v25, 3, v{vLANE}")
        a(f"v_cmp_eq_u32 vcc, {args.stswap}, v25")
        a(f"v_mov_b32 v25, 0x10000000")
        a("s_nop 0")
        a(f"v_cndmask_b32 v24, v{vA}, v25, vcc")
    if args.pfown: W2i.fill(args.pfown)
    a("L_pfx_loop:")
    for r in range(8):
        a(f"buffer_load_dwordx4 v[20:23], v{vpf}, s[{srdW2}:{srdW2+3}], s{sT0} offen")
        a(f"s_add_u32 s{sT0}, s{sT0}, 4096")
    a(f"s_add_u32 s{sT0}, s{sT0}, {24*4096}")
    a(f"s_sub_u32 s{sT2}, s{sT2}, 1")
    a(f"s_cmp_lg_u32 s{sT2}, 0")
    a("s_cbranch_scc1 L_pfx_loop")
    a("L_pfx_done:")
W2i.advance_to(j_nd, j_nt)
if args.pfmode == "split":
    a(f"s_and_b32 s{sT2}, s{sIDX}, 3")
    a(f"s_mul_i32 s{sT0}, s{sT2}, 14")
    a(f"s_cmp_eq_u32 s{sT2}, 3")
    a(f"s_cselect_b32 s{sT3}, 1, 0")
    a(f"s_sub_u32 s{sT0}, s{sT0}, s{sT3}")
    a(f"s_add_u32 s{sT0}, s{sT0}, 5")
    a(f"s_lshl_b32 s{sT0}, s{sT0}, 17")
    a(f"s_lshr_b32 s{sT2}, s{sIDX}, 2")
    a(f"s_mul_i32 s{sT2}, s{sT2}, {29*1024}")
    a(f"s_add_u32 s{sT0}, s{sT0}, s{sT2}")
    pf_loop("L_pf_loop2", 29)
assert (W2i.nd, W2i.nt) == (W2.nd, W2.nt), ((W2i.nd, W2i.nt), (W2.nd, W2.nt))
g_poll_setup()
poll_issue(sGST)
a("s_waitcnt vmcnt(0)")
while nstamp[0] < i_join and args.stamps: stamp("idle")
if args.probe in ("poll_check", "LN_flags_seen", "main1_done", "G_stores_issued", "G_flag_stored", "w2_staged"):
    a("s_mov_b32 s89, s90")
a("L_gemm2:")
vm.ops = vm_join
poll_check("L_poll_g", sGST, args.deep2)
stamp("G flags seen")
bg.every = 0
main_prefill(2, 14, True)
main_loop(2, 14, True, W2)
stamp("main2 done")
epilogue2()
stamp("end")
write_stamps("L_st", STAMP)
if args.light:
    a("s_waitcnt vmcnt(0)")
    a("s_memrealtime s[92:93]")
    a("s_waitcnt lgkmcnt(0)")
    a(f"s_lshl_b32 s{sT0}, s{sB}, 2")
    a(f"s_add_u32 s{sT0}, s{sT0}, s{sWV}")
    a(f"s_lshl_b32 s{sT0}, s{sT0}, 3")
    a(f"s_add_u32 s{sT0}, s{sT0}, {STAMP}")
    a("v_mov_b32 v16, s90"); a("v_mov_b32 v17, s92"); a("v_mov_b32 v12, 0")
    a("s_mov_b64 exec, 1")
    a(f"buffer_store_dwordx2 v[16:17], v12, s[{srdWS}:{srdWS+3}], s{sT0} offen")
if args.probe.startswith("late"):
    lo, hi = int(args.probe[4]), int(args.probe[5])
    a(f"s_sub_u32 s89, s90, s{sNON}")
    a("s_ashr_i32 s88, s89, 31"); a("s_andn2_b32 s89, s89, s88")
    a(f"s_and_b32 s88, s{sB}, 7")
    a(f"s_cmp_ge_u32 s88, {lo}"); a("s_cselect_b32 s89, s89, 0")
    a(f"s_cmp_le_u32 s88, {hi}"); a("s_cselect_b32 s89, s89, 0")
    a("s_add_u32 s89, s89, s90")
if args.probe:
    a("s_waitcnt vmcnt(0)")
    a("s_sub_u32 s89, s89, s90")
    a("s_lshl_b32 s89, s89, 2")
    a("s_add_u32 s89, s89, 3000")
    a("L_probe:")
    a("s_memrealtime s[86:87]")
    a("s_waitcnt lgkmcnt(0)")
    a("s_sub_u32 s86, s86, s90")
    a("s_cmp_lt_u32 s86, s89")
    a("s_cbranch_scc1 L_probe")
if args.padto:
    a("s_waitcnt vmcnt(0)")
    a("L_pad:")
    a("s_memrealtime s[88:89]")
    a("s_waitcnt lgkmcnt(0)")
    a("s_sub_u32 s88, s88, s90")
    a(f"s_cmp_lt_u32 s88, {args.padto}")
    a("s_cbranch_scc1 L_pad")
a("L_end:")
a("s_endpgm")
a("L_code_end:")
kernel_desc(a, MAIN, 512, 102, 256)
print(a.text())
```

```python
import sys, argparse, struct
sys.path.insert(0, "tools")
from asmlib import *

ap = argparse.ArgumentParser()
ap.add_argument("--stamps", type=int, default=0)
ap.add_argument("--mstamps", type=int, default=0)
ap.add_argument("--cyc", type=int, default=0)
ap.add_argument("--light", type=int, default=0)
ap.add_argument("--padto", type=int, default=0)
ap.add_argument("--probe", default="")
ap.add_argument("--exact", type=int, default=1)
ap.add_argument("--na", type=int, default=4)
ap.add_argument("--pfwait", type=int, default=0)
ap.add_argument("--npre", type=int, default=0)
ap.add_argument("--nln", type=int, default=0)
ap.add_argument("--w2pf", type=int, default=1)
ap.add_argument("--lnevery", type=int, default=10)
ap.add_argument("--kpre", type=int, default=3)
ap.add_argument("--n2pre", type=int, default=6)
ap.add_argument("--epevery", type=int, default=12)
ap.add_argument("--pf1", type=int, default=0)
ap.add_argument("--pf1rot", default="qd:8")
ap.add_argument("--npost", type=int, default=2)
ap.add_argument("--pre1", default="11:2")
ap.add_argument("--pre1b", default="12:3")
ap.add_argument("--join2", default="14:5")
ap.add_argument("--pfmode", default="mall")
ap.add_argument("--pollat", type=int, default=13)
ap.add_argument("--pollat2", type=int, default=12)
ap.add_argument("--eptr", type=int, default=3)
ap.add_argument("--tailpieces", type=int, default=1)
ap.add_argument("--ep3", type=int, default=3)
ap.add_argument("--lntr", type=int, default=2)
ap.add_argument("--addrevery", type=int, default=3)
ap.add_argument("--n2fill", type=int, default=2)
ap.add_argument("--k2pre", type=int, default=2)
ap.add_argument("--sleep", type=int, default=1)
ap.add_argument("--rot1", default="qd:8")
ap.add_argument("--rot2", default="none:2")
ap.add_argument("--xfl", default="none")
ap.add_argument("--w1fl", default="none")
ap.add_argument("--w2fl", default="none")
ap.add_argument("--ofl", default="none")
ap.add_argument("--pre2", default="")
ap.add_argument("--bglate", type=int, default=0)
ap.add_argument("--wsame", type=int, default=0)
ap.add_argument("--nomfma", type=int, default=0)
ap.add_argument("--align", type=int, default=0)
ap.add_argument("--shift", type=int, default=0)
ap.add_argument("--deep1", type=int, default=0)
ap.add_argument("--deep2", type=int, default=0)
ap.add_argument("--epseq", default="")
ap.add_argument("--pfn", type=int, default=14)
ap.add_argument("--pfmask", type=int, default=1)
ap.add_argument("--pfown", type=int, default=0)
ap.add_argument("--pfskip", type=int, default=0)
ap.add_argument("--pfskip0", type=int, default=0)
ap.add_argument("--estamps", type=int, default=0)
ap.add_argument("--nlast", type=int, default=0)
ap.add_argument("--biasc", type=int, default=0)
ap.add_argument("--flsh", type=int, default=6)
ap.add_argument("--gflsh", type=int, default=6)
ap.add_argument("--stswap", type=int, default=3)
ap.add_argument("--map1", default="2d")
ap.add_argument("--astride", type=int, default=5120)
ap.add_argument("--asc", default="sc1")
ap.add_argument("--touch", type=int, default=0)
args = ap.parse_args()

def fl(s): return "" if s == "none" else " " + s.replace("+", " ")
def f32hex(x): return "0x%08x" % struct.unpack("<I", struct.pack("<f", x))[0]

S, D, F = 2048, 640, 1728
H_OFF   = 0
G_OFF   = 0x280000
FL_LN   = 0x500000
FL_G    = 0x510000
STAMP   = 0x8000000
W1_ROW, W2_ROW = 3456, 4096
W1_KS, W2_KS = 32 * W1_ROW, 32 * W2_ROW
RING = 36864
NSLOT = 9
T_OFF = 147456
LDS_BYTES = 163840
SPIN_MAX = 200000
SC = " sc1"
OOB = 0x10000000

sB, sWV = 2, 3
sDT, sFT, sST, sROLE = 4, 5, 6, 7
srdX, srdW1, srdW2, srdB1, srdB2, srdOUT, srdDBG, srdWS = 8, 12, 16, 20, 24, 28, 32, 36
sNON = 40
sT0, sT1, sT2, sT3 = 42, 43, 44, 45
sRING, sOFF = 46, 47
sKARG = 48
sSTAMP = 64
sDT1 = 94
sW2B, sW2R = 95, 99
sWOFF, sAOFF, sSPIN = 96, 97, 98
sEXEC = 100
sWBASE, sWEND, sABASE, sAEND, sROT, sW2E, sGST, sOST = 48, 49, 50, 51, 52, 53, 54, 55
sIDX = 56
sKX = 57

vTID, vLANE, vA, vA2 = 0, 1, 2, 3
vD, vT = 4, 8
vB1 = 14
ABUF, NA = 16, args.na
assert NA <= 5
vD2 = 128
vB2 = 132
vGO, vGL = 133, 134
vOO, vOL = 135, 136
vRW = 137
vRR = 141
vC = 144
ACC = 176
def acc(c, mi): return ACC + (c * 5 + mi) * 4
def abuf(slot, mi): return ABUF + slot * 20 + mi * 4
P = lambda r: f"v[{r}:{r+1}]"

a = Asm()

class VM:
    def __init__(self): self.ops = []
    def issue(self, tag, optional=False): self.ops.append((tag, optional))
    def has(self, tag): return any(t == tag for t, o in self.ops)
    def wait(self, tag):
        idx = max(i for i, (t, o) in enumerate(self.ops) if t == tag)
        n = sum(1 for t, o in self.ops[idx+1:] if not o)
        assert n <= 63, (tag, n)
        a(f"s_waitcnt vmcnt({n})")
        self.ops = self.ops[idx+1:]
    def drained(self): self.ops = []
vm = VM()

class BG:
    def __init__(self): self.q = []; self.cnt = 0; self.every = 0
    def add(self, fn): self.q.append(fn)
    def step(self):
        if self.q: self.q.pop(0)()
    def flush(self):
        while self.q: self.step()
    def tick(self, n=1):
        self.cnt += n
        while self.every and self.cnt >= self.every and self.q:
            self.cnt -= self.every; self.step()
bg = BG()
def fg(s):
    a(s); bg.tick()
def queue_lines(fn):
    save = a.lines; a.lines = []
    ops_before = len(vm.ops)
    fn()
    lines = a.lines; a.lines = save
    vmops = vm.ops[ops_before:]; del vm.ops[ops_before:]
    groups = []
    for l in lines:
        op = l.split()[0] if l.split() else ""
        if groups and op in ("s_cselect_b32", "s_addc_u32", "s_cbranch_scc0", "s_cbranch_scc1"): groups[-1].append(l)
        else: groups.append([l])
    def emit(g):
        for l in g:
            a(l)
            if l.startswith("buffer_"): vm.issue(*vmops.pop(0))
    for g in groups: bg.add(lambda g=g: emit(g))

nstamp = [0]
NSTAMPS = 28
stamp_names = {}
def stamp(name):
    if args.light:
        if name == "start": a("s_memrealtime s[90:91]")
        return
    if args.probe:
        if name == "start":
            a("s_memrealtime s[90:91]")
        elif name == args.probe.replace("_", " "):
            a("s_memrealtime s[92:93]"); a("s_waitcnt lgkmcnt(0)"); a("s_mov_b32 s89, s92")
        return
    if not args.stamps: return
    i = nstamp[0]; nstamp[0] += 1
    assert i < NSTAMPS
    stamp_names.setdefault(i, name)
    a(("s_memtime" if args.cyc else "s_memrealtime") + " s[92:93]")
    a("s_waitcnt lgkmcnt(0)")
    a(f"s_mov_b32 s{sSTAMP+i}, s92")

def write_stamps(label, base):
    if not args.stamps: return
    a(f"s_cmp_lg_u32 s{sWV}, {args.stamps - 1}")
    a(f"s_cbranch_scc1 {label}_nostamp")
    a(f"s_mul_i32 s{sT0}, s{sB}, 128")
    a(f"s_add_u32 s{sT0}, s{sT0}, {base}")
    a("v_mov_b32 v12, 0")
    a("s_mov_b64 exec, 1")
    for i in range(0, NSTAMPS, 4):
        for k in range(4):
            if i + k < nstamp[0]: a(f"v_mov_b32 v{16+k}, s{sSTAMP + i + k}")
            else:                 a(f"v_mov_b32 v{16+k}, 0")
        a(f"buffer_store_dwordx4 v[16:19], v12, s[{srdWS}:{srdWS+3}], s{sT0} offen offset:{i*4}")
        a("s_nop 2")
    a(f"{label}_nostamp:")
    for i in sorted(stamp_names): a(f"; STAMPNAME {i} {stamp_names[i]}")

def mk_srd(d, p, nbytes):
    a(f"s_mov_b32 s{d}, s{p}")
    a(f"s_and_b32 s{d+1}, s{p+1}, 0xffff")
    a(f"s_mov_b32 s{d+2}, {nbytes}")
    a(f"s_mov_b32 s{d+3}, 0x00020000")

def prologue(name, endlabel):
    kernel_begin(a, name)
    stamp("start")
    for _ in range(args.shift): a("s_nop 0")
    if args.padto: a("s_memrealtime s[90:91]")
    a(f"s_cmp_ge_u32 s{sB}, 256")
    a(f"s_cbranch_scc1 {endlabel}")
    a(f"s_load_dwordx16 s[{sKARG}:{sKARG+15}], s[0:1], 0")
    a(f"v_and_b32 v{vLANE}, 63, v{vTID}")
    a(f"v_lshrrev_b32 v12, 6, v{vTID}")
    a(f"v_lshlrev_b32 v{vA}, 4, v{vLANE}")
    a(f"v_readfirstlane_b32 s{sWV}, v12")
    a(f"v_add_u32 v{vA2}, 0x1000, v{vA}")
    a(f"s_getpc_b64 s[{sT0}:{sT0+1}]")
    a("L_pf_base:")
    a("s_nop 2")
    a(f"s_lshr_b32 s{sT2}, s{sB}, 3")
    a(f"s_and_b32 s{sT2}, s{sT2}, 7")
    a(f"s_lshl_b32 s{sT2}, s{sT2}, 2")
    a(f"s_add_u32 s{sT2}, s{sT2}, s{sWV}")
    a(f"s_min_u32 s{sT2}, s{sT2}, (L_code_end - L_pf_base) / 1024 - 1")
    a(f"s_lshl_b32 s{sT2}, s{sT2}, 10")
    a(f"s_add_u32 s{sT0}, s{sT0}, s{sT2}")
    a(f"s_addc_u32 s{sT1}, s{sT1}, 0")
    a(f"global_load_dwordx4 v[124:127], v{vA}, s[{sT0}:{sT0+1}]")
    a(f"s_and_b32 s{sT0}, s{sB}, 1")
    a(f"s_lshl_b32 s{sT0}, s{sT0}, 2")
    a(f"s_bfe_u32 s{sT2}, s{sB}, 0x20003")
    a(f"s_add_u32 s{sDT}, s{sT0}, s{sT2}")
    a(f"s_lshr_b32 s{sT1}, s{sB}, 5")
    a(f"s_bfe_u32 s{sT3}, s{sB}, 0x20001")
    a(f"s_lshl_b32 s{sT2}, s{sT3}, 3")
    if args.stswap >= 0:
        a(f"s_cmp_eq_u32 s{sT1}, 7")
        a(f"s_cselect_b32 s{sT0}, {args.stswap}, s{sT1}")
        a(f"s_cmp_eq_u32 s{sT1}, {args.stswap}")
        a(f"s_cselect_b32 s{sT0}, 7, s{sT0}")
        a(f"s_add_u32 s{sST}, s{sT2}, s{sT0}")
    else:
        a(f"s_add_u32 s{sST}, s{sT2}, s{sT1}")
    if args.map1 == "2d":
        a(f"s_mov_b32 s{sDT1}, s{sDT}")
        a(f"s_mul_i32 s{sT2}, s{sT3}, 7")
        a(f"s_add_u32 s{sFT}, s{sT2}, s{sT1}")
        a(f"s_cmp_eq_u32 s{sT3}, 3")
        a(f"s_cselect_b32 s{sT2}, 6, 7")
        a(f"s_cmp_lt_u32 s{sT1}, s{sT2}")
        a(f"s_cselect_b32 s{sROLE}, 1, 0")
    else:
        a(f"s_bfe_u32 s{sDT1}, s{sB}, 0x30003")
        a(f"s_lshr_b32 s{sT0}, s{sB}, 6")
        a(f"s_lshl_b32 s{sT0}, s{sT0}, 3")
        a(f"s_and_b32 s{sT2}, s{sB}, 7")
        a(f"s_add_u32 s{sFT}, s{sT0}, s{sT2}")
        a(f"s_cmp_lt_u32 s{sFT}, 27")
        a(f"s_cselect_b32 s{sROLE}, 1, 0")
    a(f"s_mul_i32 s{sRING}, s{sWV}, {RING}")
    a(f"v_lshrrev_b32 v12, 5, v{vLANE}")
    a(f"v_mul_u32_u24 v12, 1280, v12")
    a(f"v_and_b32 v13, 31, v{vLANE}")
    a(f"v_lshl_add_u32 v14, v13, 4, v12")
    a(f"v_lshl_add_u32 v15, v13, 3, v12")
    dma_offsets(vD, W1_ROW)
    a(f"s_lshl_b32 s{sT0}, s{sB}, 3")
    a(f"s_lshl_b32 s{sT1}, s{sWV}, 1")
    a(f"s_add_u32 s{sT0}, s{sT0}, s{sT1}")
    a(f"s_mul_i32 s{sOFF}, s{sT0}, 1280")
    a("s_waitcnt lgkmcnt(0)")
    mk_srd(srdX, sKARG+0, S*D*2)
    a(f"buffer_load_dwordx4 v[{XR}:{XR+3}], v14, s[{srdX}:{srdX+3}], s{sOFF} offen{fl(args.xfl)}")
    a(f"buffer_load_dwordx4 v[{XR+4}:{XR+7}], v14, s[{srdX}:{srdX+3}], s{sOFF} offen offset:512{fl(args.xfl)}")
    a(f"buffer_load_dwordx2 v[{XR+8}:{XR+9}], v15, s[{srdX}:{srdX+3}], s{sOFF} offen offset:1024{fl(args.xfl)}")
    for _ in range(3): vm.issue("x")
    mk_srd(srdW1,  sKARG+2,  S*F*2)
    mk_srd(srdB1,  sKARG+4,  F*2)
    mk_srd(srdW2,  sKARG+6,  F*S*2)
    mk_srd(srdDBG, sKARG+12, 256)
    mk_srd(srdWS,  sKARG+14, 268435456)
    mk_srd(srdB2,  sKARG+8,  S*2)
    mk_srd(srdOUT, sKARG+10, S*D*2)

def dma_offsets(dst, row):
    a(f"v_lshrrev_b32 v12, 3, v{vLANE}")
    a(f"v_and_b32 v13, 2, v12")
    a(f"v_mul_u32_u24 v12, {row}, v12")
    a(f"v_and_b32 v{dst+2}, 7, v{vLANE}")
    a(f"v_xor_b32 v13, v13, v{dst+2}")
    a(f"v_lshl_add_u32 v{dst}, v13, 4, v12")
    a(f"v_xor_b32 v13, 4, v13")
    a(f"v_lshl_add_u32 v{dst+1}, v13, 4, v12")
    a(f"v_add_u32 v{dst+1}, {8*row}, v{dst+1}")
    a(f"v_add_u32 v{dst+2}, {16*row}, v{dst}")
    a(f"v_add_u32 v{dst+3}, {16*row}, v{dst+1}")

def tr_addresses():
    t0, t1, t2, t3 = 112, 113, 114, 115
    fg(f"v_lshrrev_b32 v{t0}, 4, v{vLANE}")
    fg(f"v_bfe_u32 v{t1}, v{vLANE}, 2, 2")
    fg(f"v_lshl_add_u32 v{t2}, v{t0}, 3, v{t1}")
    fg(f"v_lshlrev_b32 v{t2}, 7, v{t2}")
    fg(f"v_and_b32 v{t3}, 1, v{vLANE}")
    fg(f"v_lshl_add_u32 v{t2}, v{t3}, 3, v{t2}")
    fg(f"v_add_u32 v{t2}, s{sRING}, v{t2}")
    fg(f"v_and_b32 v{t0}, 1, v{t0}")
    fg(f"v_lshlrev_b32 v{t0}, 2, v{t0}")
    fg(f"v_and_b32 v{t1}, 2, v{t1}")
    fg(f"v_or_b32 v{t0}, v{t0}, v{t1}")
    fg(f"v_bfe_u32 v{t1}, v{vLANE}, 1, 1")
    fg(f"v_xor_b32 v{t0}, v{t0}, v{t1}")
    for c in range(4):
        a(f"s_add_u32 s{sT0}, s{sWV}, {c}")
        a(f"s_and_b32 s{sT0}, s{sT0}, 3")
        a(f"s_lshl_b32 s{sT0}, s{sT0}, 1")
        fg(f"v_xor_b32 v{t1}, s{sT0}, v{t0}")
        fg(f"v_lshl_add_u32 v{vT+c}, v{t1}, 4, v{t2}")

def m0_gap():
    if a.lines[-1].startswith("s_add_u32 m0"): a("s_nop 0")

class Stager:
    def __init__(self, srd, dreg, run, base, end, kstride, nks, optional_last, flags, tag):
        self.srd, self.dreg, self.run, self.base, self.end = srd, dreg, run, base, end
        self.kstride, self.nks, self.opt, self.flags, self.tag = kstride, nks, optional_last, flags, tag
        self.nd = 0; self.nt = 0; self.uid = 0; self.started = False
    def lds(self, pos, q): return (pos % NSLOT)*4096 + q*1024
    def start(self):
        a(f"s_add_u32 m0, s{sRING}, {self.lds(0, 0)}")
        a("s_nop 0")
        self.started = True
    def piece(self, pos, q, burst):
        assert self.started
        opt = self.is_opt(pos)
        off = self.run
        if opt:
            off = sOFF
            if q == 0: a(f"s_add_u32 s{sOFF}, s{self.base}, {pos*self.kstride}")
        m0_gap()
        a(f"buffer_load_dwordx4 v{self.dreg+q}, s[{self.srd}:{self.srd+3}], s{off} offen{self.flags} lds")
        vm.issue((self.tag, pos), opt)
        npos, nq = (pos, q+1) if q < 3 else (pos+1, 0)
        last = npos >= self.nks
        if not last: a(f"s_add_u32 m0, s{sRING}, {self.lds(npos, nq)}")
        if q == 3 and not opt:
            a(f"s_add_u32 s{self.run}, s{self.run}, {self.kstride}")
            a(f"s_cmp_eq_u32 s{self.run}, s{self.end}")
            a(f"s_cselect_b32 s{self.run}, s{self.base}, s{self.run}")
        elif burst and not last:
            a("s_nop 0")
    def is_opt(self, pos): return self.opt and pos == self.nks - 1
    def dma(self):
        pos = self.nd; self.nd += 1
        body = lambda: [self.piece(pos, q, True) for q in range(4)]
        if self.is_opt(pos): guarded(f"L_{self.tag}_d{self.uid}", body); self.uid += 1
        else: body()
    def dma_bg(self, n):
        for _ in range(n):
            pos = self.nd; self.nd += 1
            assert not self.is_opt(pos)
            for q in range(4): bg.add(lambda pos=pos, q=q: self.piece(pos, q, False))
    def tr_body(self, pos):
        if vm.has((self.tag, pos)): vm.wait((self.tag, pos))
        for c in range(4):
            for t in range(2):
                r = 16*pos + 4*c + 2*t
                a(f"ds_read_b64_tr_b16 a[{r}:{r+1}], v{vT+c} offset:{(pos % NSLOT)*4096 + t*512}")
    def tr(self):
        pos = self.nt; self.nt += 1
        if self.is_opt(pos): guarded(f"L_{self.tag}_t{self.uid}", lambda: self.tr_body(pos)); self.uid += 1
        else: self.tr_body(pos)
    def tr_bg(self, n):
        for _ in range(n):
            pos = self.nt; self.nt += 1
            assert not self.is_opt(pos)
            bg.add(lambda pos=pos: self.tr_body(pos))
    def refill(self, settled=False):
        waited = settled
        lim = self.nt if settled else self.nt - 1
        while self.nd < self.nks and self.nd - NSLOT < lim:
            if self.nd >= NSLOT and not waited: a("s_waitcnt lgkmcnt(8)"); waited = True
            self.dma()
    def step(self):
        self.refill()
        if self.nt < self.nks: self.tr()
        self.refill()
    def fill(self, limit=NSLOT):
        while self.nd < min(limit, self.nks): self.dma()
    def advance_to(self, nd, nt):
        assert nd - NSLOT <= nt
        while self.nd < nd or self.nt < nt:
            if self.nd < nd and self.nd < NSLOT: self.dma()
            elif self.nd < nd and self.nd - NSLOT < self.nt - 1:
                a("s_waitcnt lgkmcnt(8)"); self.dma()
            elif self.nt < nt: self.tr()
            else:
                a("s_waitcnt lgkmcnt(0)"); self.dma()
    def request_all(self):
        while self.nd < self.nks: self.step()
    def finish(self):
        while self.nt < self.nks or self.nd < self.nks: self.step()
        a("s_waitcnt lgkmcnt(0)")

def guarded(label, fn):
    a(f"s_cmp_ge_u32 s{sWV}, 2")
    a(f"s_cbranch_scc1 {label}")
    fn()
    a(f"{label}:")

def set_rot(n, spec, dreg):
    mode, g = spec.split(":"); g = int(g)
    if mode == "none":
        a(f"s_mov_b32 s{sROT}, 0"); return
    if mode == "d": a(f"s_mov_b32 s{sT0}, s{dreg}")
    else:
        a(f"s_lshr_b32 s{sT0}, s{sB}, 5")
        if mode == "qd": a(f"s_add_u32 s{sT0}, s{sT0}, s{dreg}")
    a(f"s_and_b32 s{sT0}, s{sT0}, {g-1}")
    a(f"s_mul_i32 s{sT0}, s{sT0}, {n}")
    a(f"s_lshr_b32 s{sROT}, s{sT0}, {g.bit_length()-1}")
def set_run(run, base, end, n, stride):
    a(f"s_add_u32 s{end}, s{base}, {n*stride}")
    a(f"s_mul_i32 s{run}, s{sROT}, {stride}")
    a(f"s_add_u32 s{run}, s{run}, s{base}")
def set_w1_base():
    set_rot(16, args.rot1, sDT1)
    a(f"s_lshl_b32 s{sT0}, s{sWV}, 4")
    a(f"s_mul_i32 s{sWBASE}, s{sT0}, {W1_KS}")
    a(f"s_lshl_b32 s{sT0}, s{sFT}, 7")
    if args.wsame & 1: a(f"s_mov_b32 s{sT0}, 0")
    a(f"s_add_u32 s{sWBASE}, s{sWBASE}, s{sT0}")
    a(f"s_cmp_eq_u32 s{sROLE}, 0")
    a(f"s_cselect_b32 s{sWBASE}, {OOB}, s{sWBASE}")
    set_run(sWOFF, sWBASE, sWEND, 16, W1_KS)
def set_h_base():
    set_rot(16, args.rot1, sDT1)
    a(f"s_lshl_b32 s{sT0}, s{sDT1}, 6")
    a(f"s_lshl_b32 s{sT1}, s{sWV}, 4")
    a(f"s_add_u32 s{sT0}, s{sT0}, s{sT1}")
    a(f"s_mul_i32 s{sABASE}, s{sT0}, 5120")
    if H_OFF: a(f"s_add_u32 s{sABASE}, s{sABASE}, {H_OFF}")
    set_run(sAOFF, sABASE, sAEND, 16, 5120)
def k2_start(dst):
    a(f"s_mul_i32 s{dst}, s{sWV}, 14")
    a(f"s_cmp_eq_u32 s{sWV}, 3")
    a(f"s_cselect_b32 s{sT3}, 1, 0")
    a(f"s_sub_u32 s{dst}, s{dst}, s{sT3}")
def set_w2_base():
    set_rot(13, args.rot2, sDT)
    k2_start(sT0)
    a(f"s_mul_i32 s{sW2B}, s{sT0}, {W2_KS}")
    a(f"s_lshl_b32 s{sT0}, s{sST}, 7")
    if args.wsame & 2: a(f"s_mov_b32 s{sT0}, 0")
    a(f"s_add_u32 s{sW2B}, s{sW2B}, s{sT0}")
    set_run(sW2R, sW2B, sW2E, 13, W2_KS)
def set_g_base():
    set_rot(13, args.rot2, sDT)
    k2_start(sT0)
    a(f"s_mul_i32 s{sT1}, s{sDT}, 54")
    a(f"s_add_u32 s{sT0}, s{sT0}, s{sT1}")
    a(f"s_mul_i32 s{sABASE}, s{sT0}, 5120")
    a(f"s_add_u32 s{sABASE}, s{sABASE}, {G_OFF}")
    set_run(sAOFF, sABASE, sAEND, 13, 5120)

XR = 16
FV = 28
DV = 48
HP = 68
WA = 80
GA = 92
TV = 100
def ln_addresses():
    fg(f"v_and_b32 v{TV}, 31, v{vLANE}")
    fg(f"v_lshrrev_b32 v{TV+1}, 5, v{vLANE}")
    fg(f"v_lshlrev_b32 v{TV+1}, 1, v{TV+1}")
    a(f"s_lshl_b32 s{sT0}, s{sWV}, 2")
    a(f"s_add_u32 s{sT0}, s{sT0}, {T_OFF}")
    fg(f"v_and_b32 v{TV+2}, 7, v{TV}")
    fg(f"v_xor_b32 v{TV+2}, v{TV+2}, v{TV+1}")
    fg(f"v_lshlrev_b32 v{TV+3}, 7, v{TV}")
    a(f"v_add_u32 v{TV+3}, s{sT0}, v{TV+3}")
    a(f"v_lshrrev_b32 v{TV+7}, 1, v{TV}")
    a(f"v_lshlrev_b32 v{TV+8}, 7, v{TV+7}")
    fg(f"v_add_u32 v{TV+8}, s{sT0}, v{TV+8}")
    for k in range(4):
        base = 4096 if k >= 2 else 0
        e = 4 if (k & 1) else 0
        for o in range(2):
            fg(f"v_xor_b32 v{TV+4}, {e + o}, v{TV+2}")
            fg(f"v_lshl_add_u32 v{WA + 2*k + o}, v{TV+4}, 4, v{TV+3}")
            if base: fg(f"v_add_u32 v{WA + 2*k + o}, {base}, v{WA + 2*k + o}")
    fg(f"v_and_b32 v{TV+5}, 1, v{TV}")
    fg(f"v_lshl_add_u32 v{TV+5}, v{TV+5}, 2, v{TV+1}")
    fg(f"v_and_b32 v{TV+6}, 7, v{TV+7}")
    fg(f"v_xor_b32 v{TV+5}, v{TV+5}, v{TV+6}")
    fg(f"v_add_u32 v{TV+8}, 8192, v{TV+8}")
    fg(f"v_lshl_add_u32 v{WA+8}, v{TV+5}, 4, v{TV+8}")
    fg(f"v_xor_b32 v{TV+5}, 1, v{TV+5}")
    fg(f"v_lshl_add_u32 v{WA+9}, v{TV+5}, 4, v{TV+8}")
    for i in range(3):
        fg(f"v_add_u32 v{TV}, {256*i}, v{vTID}")
        fg(f"v_lshrrev_b32 v{TV+1}, 3, v{TV}")
        fg(f"v_xor_b32 v{TV+1}, v{TV+1}, v{TV}")
        fg(f"v_and_b32 v{TV+1}, 7, v{TV+1}")
        fg(f"v_and_b32 v{TV+2}, 0x3f8, v{TV}")
        fg(f"v_or_b32 v{TV+1}, v{TV+1}, v{TV+2}")
        fg(f"v_lshrrev_b32 v{TV+2}, 4, v{TV+1}")
        fg(f"v_mul_u32_u24 v{TV+3}, 205, v{TV+2}")
        fg(f"v_lshrrev_b32 v{TV+3}, 10, v{TV+3}")
        fg(f"v_mul_u32_u24 v{TV+3}, 315, v{TV+3}")
        fg(f"v_add_u32 v{TV+3}, v{TV+3}, v{TV+2}")
        fg(f"v_lshlrev_b32 v{TV+3}, 10, v{TV+3}")
        fg(f"v_and_b32 v{TV+1}, 15, v{TV+1}")
        fg(f"v_lshl_add_u32 v{GA+i}, v{TV+1}, 4, v{TV+3}")
    fg(f"v_lshlrev_b32 v95, 4, v{vTID}")
    fg(f"v_add_u32 v95, {T_OFF}, v95")
    a(f"s_lshr_b32 s{sT0}, s{sB}, 2")
    a(f"s_mul_i32 s{sT0}, s{sT0}, 5120")
    a(f"s_and_b32 s{sT1}, s{sB}, 3")
    a(f"s_lshl_b32 s{sT1}, s{sT1}, 8")
    a(f"s_add_u32 s{sGST}, s{sT0}, s{sT1}")
    if H_OFF: a(f"s_add_u32 s{sGST}, s{sGST}, {H_OFF}")

def reduce32(r, t):
    for dpp in ("quad_perm:[1,0,3,2]", "quad_perm:[2,3,0,1]", "row_half_mirror", "row_mirror"):
        a("s_nop 1")
        a(f"v_add_f32_dpp v{r}, v{r}, v{r} {dpp} row_mask:0xf bank_mask:0xf")
    a(f"v_mov_b32 v{t}, v{r}")
    a("s_nop 1")
    a(f"v_permlane16_swap_b32 v{r}, v{t}")
    a("s_nop 1")
    fg(f"v_add_f32 v{r}, v{r}, v{t}")

def rne_bf16(dst, src):
    a(f"v_cvt_pk_bf16_f32 v{dst}, v{src}, v{src}")
    a(f"v_and_b32 v{dst}, 0xffff0000, v{dst}")

def ln_compute():
    for m in range(10):
        fg(f"v_lshlrev_b32 v{FV+2*m}, 16, v{XR+m}")
        fg(f"v_and_b32 v{FV+2*m+1}, 0xffff0000, v{XR+m}")
    s0, s1 = TV, TV+2
    fg(f"v_pk_add_f32 {P(s0)}, {P(FV)}, {P(FV+2)}")
    fg(f"v_pk_add_f32 {P(s1)}, {P(FV+4)}, {P(FV+6)}")
    for m in range(4, 10):
        s = s0 if m % 2 == 0 else s1
        fg(f"v_pk_add_f32 {P(s)}, {P(s)}, {P(FV+2*m)}")
    fg(f"v_pk_add_f32 {P(s0)}, {P(s0)}, {P(s1)}")
    mean = TV+4
    fg(f"v_add_f32 v{mean}, v{s0}, v{s0+1}")
    reduce32(mean, TV+6)
    fg(f"v_mul_f32 v{mean}, {f32hex(1.0/640)}, v{mean}")
    fg(f"v_mov_b32 v{mean+1}, v{mean}")
    for m in range(10):
        fg(f"v_pk_add_f32 {P(DV+2*m)}, {P(FV+2*m)}, {P(mean)} neg_lo:[0,1] neg_hi:[0,1]")
    fg(f"v_pk_mul_f32 {P(s0)}, {P(DV)}, {P(DV)}")
    fg(f"v_pk_mul_f32 {P(s1)}, {P(DV+2)}, {P(DV+2)}")
    for m in range(2, 10):
        s = s0 if m % 2 == 0 else s1
        fg(f"v_pk_fma_f32 {P(s)}, {P(DV+2*m)}, {P(DV+2*m)}, {P(s)}")
    fg(f"v_pk_add_f32 {P(s0)}, {P(s0)}, {P(s1)}")
    var = TV+8
    fg(f"v_add_f32 v{var}, v{s0}, v{s0+1}")
    reduce32(var, TV+6)
    fg(f"v_mul_f32 v{var}, {f32hex(1.0/640)}, v{var}")
    rs = TV+10
    if args.exact:
        rne_bf16(var, var)
        a(f"v_add_f32 v{var}, {f32hex(1e-5)}, v{var}")
        rne_bf16(var, var)
        a(f"v_sqrt_f32 v{var}, v{var}")
        a("s_nop 0")
        rne_bf16(var, var)
        a(f"v_rcp_f32 v{rs}, v{var}")
        rne_bf16(mean, mean)
        a(f"v_mov_b32 v{mean+1}, v{mean}")
        fg(f"v_mov_b32 v{rs+1}, v{rs}")
        for m in range(10):
            fg(f"v_pk_add_f32 {P(DV+2*m)}, {P(FV+2*m)}, {P(mean)} neg_lo:[0,1] neg_hi:[0,1]")
        for m in range(10):
            fg(f"v_cvt_pk_bf16_f32 v{HP+m}, v{DV+2*m}, v{DV+2*m+1}")
        for m in range(10):
            fg(f"v_lshlrev_b32 v{DV+2*m}, 16, v{HP+m}")
            fg(f"v_and_b32 v{DV+2*m+1}, 0xffff0000, v{HP+m}")
    else:
        a(f"v_add_f32 v{var}, {f32hex(1e-5)}, v{var}")
        a(f"v_rsq_f32 v{rs}, v{var}")
        a("s_nop 0")
        fg(f"v_mov_b32 v{rs+1}, v{rs}")
    for m in range(10):
        fg(f"v_pk_mul_f32 {P(DV+2*m)}, {P(DV+2*m)}, {P(rs)}")
    for m in range(10):
        fg(f"v_cvt_pk_bf16_f32 v{HP+m}, v{DV+2*m}, v{DV+2*m+1}")
    a(f"s_mov_b32 s{sT0}, 0x05040100")
    a(f"s_mov_b32 s{sT1}, 0x07060302")
    for k in range(5):
        a(f"v_permlane32_swap_b32 v{HP+2*k}, v{HP+2*k+1}")
    a("s_nop 1")
    for k in range(5):
        a(f"v_perm_b32 v{DV+2*k}, v{HP+2*k+1}, v{HP+2*k}, s{sT0}")
        a(f"v_perm_b32 v{DV+2*k+1}, v{HP+2*k+1}, v{HP+2*k}, s{sT1}")
    for k in range(10):
        a(f"ds_write_b32 v{WA+k}, v{DV+k}")

def ln_store():
    a("s_waitcnt lgkmcnt(0)")
    a("s_barrier")
    a(f"ds_read_b128 v[{FV}:{FV+3}], v95")
    a(f"ds_read_b128 v[{FV+4}:{FV+7}], v95 offset:4096")
    a(f"s_cmp_ge_u32 s{sWV}, 2")
    a("s_cbranch_scc1 L_ln_two")
    a(f"ds_read_b128 v[{FV+8}:{FV+11}], v95 offset:8192")
    a("s_waitcnt lgkmcnt(0)")
    a(f"buffer_store_dwordx4 v[{FV+8}:{FV+11}], v{GA+2}, s[{srdWS}:{srdWS+3}], s{sGST} offen{SC}")
    vm.issue("hst3", True)
    a("L_ln_two:")
    a("s_waitcnt lgkmcnt(0)")
    a(f"buffer_store_dwordx4 v[{FV}:{FV+3}], v{GA}, s[{srdWS}:{srdWS+3}], s{sGST} offen{SC}")
    a(f"buffer_store_dwordx4 v[{FV+4}:{FV+7}], v{GA+1}, s[{srdWS}:{srdWS+3}], s{sGST} offen{SC}")
    vm.issue("hst"); vm.issue("hst")

def publish_nonce():
    a(f"s_or_b32 s{sT0}, s{sB}, s{sWV}")
    a(f"s_cmp_lg_u32 s{sT0}, 0")
    a("s_cbranch_scc1 L_no_nonce")
    a(f"s_memrealtime s[{sT0}:{sT0+1}]")
    a("s_waitcnt lgkmcnt(0)")
    a(f"s_or_b32 s{sT1}, s{sT1}, 0x40000000")
    a(f"v_mov_b32 v12, s{sT0}")
    a(f"v_mov_b32 v13, s{sT1}")
    a("v_mov_b32 v112, 0")
    a(f"buffer_store_dwordx2 v[12:13], v112, s[{srdDBG}:{srdDBG+3}], 0 offen sc1")
    a("L_no_nonce:")
    vm.issue("noncest", True)

def nonce_issue():
    a("v_mov_b32 v18, 0")
    a(f"buffer_load_dwordx2 v[16:17], v18, s[{srdDBG}:{srdDBG+3}], 0 offen sc1")
    vm.issue("nonce")

def nonce_finish(label):
    a(f"s_mov_b32 s{sSPIN}, {SPIN_MAX}")
    a(f"{label}:")
    a(f"v_readfirstlane_b32 s{sNON}, v16")
    a(f"v_readfirstlane_b32 s{sNON+1}, v17")
    a("s_nop 3")
    a(f"s_sub_u32 s{sSPIN}, s{sSPIN}, 1")
    a(f"s_cselect_b32 s{sT0}, 1, s{sNON+1}")
    a(f"s_cmp_lg_u32 s{sT0}, 0")
    a(f"s_cbranch_scc1 {label}_ok")
    a(f"buffer_load_dwordx2 v[16:17], v18, s[{srdDBG}:{srdDBG+3}], 0 offen sc1")
    a("s_waitcnt vmcnt(0)")
    a(f"s_branch {label}")
    a(f"{label}_ok:")

def store_flag(label, off_sreg):
    a(f"s_cmp_lg_u32 s{sWV}, 0")
    a(f"s_cbranch_scc1 {label}")
    a(f"v_mov_b32 v16, s{sNON}")
    a(f"v_mov_b32 v17, s{sNON+1}")
    a("v_mov_b32 v18, 0")
    a(f"s_mov_b64 s[{sEXEC}:{sEXEC+1}], exec")
    a("s_mov_b64 exec, 1")
    a(f"buffer_store_dwordx2 v[16:17], v18, s[{srdWS}:{srdWS+3}], s{off_sreg} offen sc1")
    a(f"s_mov_b64 exec, s[{sEXEC}:{sEXEC+1}]")
    a("s_nop 1")
    a(f"{label}:")
    vm.issue("flag", True)

vPOLL = 120
def poll_issue(off_sreg):
    a(f"buffer_load_dwordx2 v[{vPOLL}:{vPOLL+1}], v{vPOLL+2}, s[{srdWS}:{srdWS+3}], s{off_sreg} offen sc1")
    vm.issue("poll")
def poll_check(label, off_sreg, deep=0):
    vm.wait("poll")
    def check(r, ok):
        a(f"v_cmp_ne_u32 vcc, s{sNON}, v{r}")
        a(f"v_cmp_ne_u32 s[{sT0}:{sT0+1}], s{sNON+1}, v{r+1}")
        a("s_nop 3")
        a(f"s_or_b64 vcc, vcc, s[{sT0}:{sT0+1}]")
        a(f"s_cbranch_vccz {ok}")
    def load(r):
        a(f"buffer_load_dwordx2 v[{r}:{r+1}], v{vPOLL+2}, s[{srdWS}:{srdWS+3}], s{off_sreg} offen sc1")
    a(f"s_mov_b32 s{sSPIN}, {SPIN_MAX}")
    if not deep:
        a(f"{label}:")
        check(vPOLL, f"{label}_ok")
        if args.sleep: a(f"s_sleep {args.sleep}")
        load(vPOLL)
        a("s_waitcnt vmcnt(0)")
        a(f"s_sub_u32 s{sSPIN}, s{sSPIN}, 1")
        a(f"s_cbranch_scc0 {label}")
        a(f"{label}_ok:")
        return
    R = (vPOLL, 116, 118)
    check(vPOLL, f"{label}_ok")
    for r in R:
        load(r)
        a(f"s_sleep {deep}")
    a(f"{label}:")
    for r in R:
        a("s_waitcnt vmcnt(2)")
        check(r, f"{label}_ok")
        load(r)
        a(f"s_sleep {deep}")
    a(f"s_sub_u32 s{sSPIN}, s{sSPIN}, 1")
    a(f"s_cbranch_scc0 {label}")
    a(f"{label}_ok:")

def a_load(slot, mi, ks, fixed=False):
    r = abuf(slot, mi)
    off = sAOFF
    if fixed:
        off = sOFF
        if mi == 0: a(f"s_add_u32 s{sOFF}, s{sABASE}, {ks*5120}")
    if mi < 4:
        a(f"buffer_load_dwordx4 v[{r}:{r+3}], v{vA}, s[{srdWS}:{srdWS+3}], s{off} offen offset:{mi*1024}{fl(args.asc)}")
    else:
        a(f"buffer_load_dwordx4 v[{r}:{r+3}], v{vA2}, s[{srdWS}:{srdWS+3}], s{off} offen{fl(args.asc)}")
        if not fixed:
            a(f"s_add_u32 s{sAOFF}, s{sAOFF}, {args.astride}")
            a(f"s_cmp_eq_u32 s{sAOFF}, s{sAEND}")
            a(f"s_cselect_b32 s{sAOFF}, s{sABASE}, s{sAOFF}")
    vm.issue(("A", ks), fixed)

def mfma(first, ks, slot, c, mi, gemm):
    if args.nomfma and not first: return
    d = acc(c, mi); wr = 16*ks + 4*c; ar = abuf(slot, mi)
    cin = "0" if first else f"v[{d}:{d+3}]"
    if first and c == 0 and args.biasc: cin = "v[96:99]"
    if gemm == 1: a(f"v_mfma_f32_16x16x32_bf16 v[{d}:{d+3}], a[{wr}:{wr+3}], v[{ar}:{ar+3}], {cin}")
    else:         a(f"v_mfma_f32_16x16x32_bf16 v[{d}:{d+3}], v[{ar}:{ar+3}], a[{wr}:{wr+3}], {cin}")

def main_prefill(gemm, nks, optional_last):
    for ks in range(min(NA, nks)):
        for mi in range(5): a_load(ks % NA, mi, ks, optional_last and ks == nks - 1)

def red_write(c, mi):
    blk = (c-1)*5 + mi
    r = acc(c, mi)
    if blk < 12: a(f"ds_write_b128 v{vRW+c-1}, v[{r}:{r+3}] offset:{blk*1024}")
    else:        a(f"ds_write_b128 v{vRW+3}, v[{r}:{r+3}] offset:{(blk-12)*1024}")

def main_loop(gemm, nks, optional_last, W, tail=None):
    depth = min(NA, nks)
    nreal = nks - 1 if optional_last else nks
    nplain = nreal - args.nlast
    def loads(ks):
        for mi in range(5): a_load(ks % NA, mi, ks, optional_last and ks == nks - 1)
    while W.nt < 2: W.tr()
    pending_tr = True
    last_plain = nks if not args.nlast else nplain
    for ks in range(last_plain):
        opt = optional_last and ks == nks - 1
        def body():
            nonlocal pending_tr
            vm.wait(("A", ks))
            if pending_tr: a("s_waitcnt lgkmcnt(0)"); pending_tr = False
            if args.mstamps and ks in (0, 4, 8, 12): stamp(f"g{gemm} step {ks} data")
            settled = W.nt
            pieces = []
            if W.nd < W.nks and W.nd - NSLOT < settled and not W.is_opt(W.nd):
                pos = W.nd; W.nd += 1
                pieces = [lambda q=q, pos=pos: W.piece(pos, q, False) for q in range(4)]
            nxt = ks + depth
            for mi in range(5):
                if args.align == 2 or (args.align == 1 and mi == 0): a(".p2align 3")
                for c in range(4):
                    mfma(ks == 0, ks, ks % NA, c, mi, gemm)
                    if nxt < nreal: bg.tick()
                    if c == 1 and pieces: pieces.pop(0)()
                if mi == 0 and W.nt <= ks + 1 and W.nt < W.nks and not W.is_opt(W.nt):
                    W.tr(); pending_tr = True
                if nxt < nreal: a_load(nxt % NA, mi, nxt)
                elif tail is not None: tail()
        if opt: guarded(f"L_g{gemm}_mm", body)
        else: body()
        nxt = ks + depth
        if optional_last and nxt == nks - 1:
            guarded(f"L_g{gemm}_ld", lambda: loads(nxt))
        if W.nd < W.nks and W.is_opt(W.nd) and W.nd - NSLOT < W.nt - 1:
            a("s_waitcnt lgkmcnt(0)"); W.dma()
        if W.nt < W.nks and W.is_opt(W.nt) and W.nt <= ks + 1 and W.nd > W.nt:
            W.tr(); pending_tr = True
        if nxt == nreal - 1: bg.flush()
    if args.nlast:
        assert W.nd == W.nks
        while W.nt < W.nks: W.tr()
        steps = list(range(nplain, nreal))
        assert steps[0] + depth >= nreal
        assert not optional_last or steps[0] + depth > nks - 1
        vm.wait(("A", nreal - 1))
        if optional_last: guarded(f"L_g{gemm}_ow", lambda: a("s_waitcnt vmcnt(0)") if tail is None else None)
        a("s_waitcnt lgkmcnt(0)")
        a("s_barrier")
        order = (1, 2, 3, 0)
        n = 0
        for gi, c in enumerate(order):
            if optional_last:
                ko = nks - 1
                guarded(f"L_g{gemm}_o{c}", lambda: [mfma(False, ko, ko % NA, c, mi, gemm) for mi in range(5)])
            k = 0
            for ks in steps:
                for mi in range(5):
                    mfma(False, ks, ks % NA, c, mi, gemm)
                    k += 1; n += 1
                    if gi > 0 and 4 <= k <= 8: red_write(order[gi-1], k - 4)
                    if tail is not None and n % 4 == 0: tail()
    assert W.nd == W.nks and W.nt == W.nks

RT = 16
PK = 80
def epilogue_addresses():
    for c in range(1, 4):
        a(f"s_add_u32 s{sT0}, s{sWV}, {c}")
        a(f"s_and_b32 s{sT0}, s{sT0}, 3")
        a(f"s_mul_i32 s{sT1}, s{sT0}, {RING}")
        a(f"s_add_u32 s{sT1}, s{sT1}, {6*4096}")
        a(f"v_add_u32 v{vRW+c-1}, s{sT1}, v{vA}")
        if c == 3:
            a(f"s_mul_i32 s{sT1}, s{sT0}, 3072")
            a(f"s_add_u32 s{sT1}, s{sT1}, {T_OFF}")
            a(f"v_add_u32 v{vRW+3}, s{sT1}, v{vA}")
    a(f"s_add_u32 s{sT1}, s{sRING}, {6*4096}")
    a(f"v_add_u32 v{vRR}, s{sT1}, v{vA}")
    a(f"s_mul_i32 s{sT1}, s{sWV}, 3072")
    a(f"s_add_u32 s{sT1}, s{sT1}, {T_OFF}")
    a(f"v_add_u32 v{vRR+1}, s{sT1}, v{vA}")
    a(f"v_lshrrev_b32 v12, 4, v{vLANE}")
    a("v_and_b32 v13, 1, v12")
    a(f"v_lshlrev_b32 v{vGO}, 10, v13")
    a(f"v_lshlrev_b32 v{vOO}, 5, v13")
    a("v_lshrrev_b32 v12, 1, v12")
    a(f"v_lshl_add_u32 v{vGL}, v12, 8, 0")
    a(f"v_lshlrev_b32 v{vOL}, 4, v12")
    a(f"v_and_b32 v12, 15, v{vLANE}")
    a(f"v_lshl_add_u32 v{vGL}, v12, 4, v{vGL}")
    a(f"v_add_u32 v{vGO}, v{vGO}, v{vGL}")
    a("v_mul_u32_u24 v12, 1280, v12")
    a(f"v_add_u32 v{vOL}, v{vOL}, v12")
    a(f"v_add_u32 v{vOO}, v{vOO}, v{vOL}")
    a(f"s_mul_i32 s{sT0}, s{sDT1}, 54")
    a(f"s_lshl_b32 s{sT1}, s{sFT}, 1")
    a(f"s_add_u32 s{sT0}, s{sT0}, s{sT1}")
    a(f"s_lshr_b32 s{sT1}, s{sWV}, 1")
    a(f"s_add_u32 s{sT0}, s{sT0}, s{sT1}")
    a(f"s_mul_i32 s{sT0}, s{sT0}, 5120")
    a(f"s_and_b32 s{sT1}, s{sWV}, 1")
    a(f"s_lshl_b32 s{sT1}, s{sT1}, 9")
    a(f"s_add_u32 s{sT0}, s{sT0}, s{sT1}")
    a(f"s_add_u32 s{sGST}, s{sT0}, {G_OFF}")
    a(f"s_lshl_b32 s{sT0}, s{sST}, 2")
    a(f"s_add_u32 s{sT0}, s{sT0}, s{sWV}")
    a(f"s_mul_i32 s{sT0}, s{sT0}, {16*1280}")
    a(f"s_mul_i32 s{sT1}, s{sDT}, 160")
    a(f"s_add_u32 s{sOST}, s{sT0}, s{sT1}")
    c1 = -2.0 * 0.7978845608028654 * 1.4426950408889634
    a(f"v_mov_b32 v{vC}, {f32hex(c1)}"); a(f"v_mov_b32 v{vC+1}, {f32hex(c1)}")
    a(f"v_mov_b32 v{vC+2}, {f32hex(c1*0.044715)}"); a(f"v_mov_b32 v{vC+3}, {f32hex(c1*0.044715)}")
    a(f"v_mov_b32 v{vC+4}, 1.0"); a(f"v_mov_b32 v{vC+5}, 1.0")
    dma_offsets(vD2, W2_ROW)
    set_w2_base()
    a(f"s_lshl_b32 s{sT0}, s{sST}, 7")
    a(f"s_lshl_b32 s{sT1}, s{sWV}, 5")
    a(f"s_add_u32 s{sT0}, s{sT0}, s{sT1}")
    a(f"v_and_b32 v12, 15, v{vLANE}")
    a("v_lshlrev_b32 v12, 1, v12")
    a(f"buffer_load_ushort v{vB2}, v12, s[{srdB2}:{srdB2+3}], s{sT0} offen")
    vm.issue("b2")

def reduce_write():
    if not args.nlast:
        a("s_nop 6")
        a("s_barrier")
        if args.estamps: stamp("red: barrier 1")
        for c in range(1, 4):
            for mi in range(5):
                red_write(c, mi)
                bg.tick(3)
    a("s_waitcnt lgkmcnt(0)")
    if args.estamps: stamp("red: writes done")
    a("s_barrier")
    if args.estamps: stamp("red: barrier 2")
    for mi in range(5):
        for c in range(1, 4):
            blk = (c-1)*5 + mi
            r = RT + 4*blk
            if blk < 12: a(f"ds_read_b128 v[{r}:{r+3}], v{vRR} offset:{blk*1024}")
            else:        a(f"ds_read_b128 v[{r}:{r+3}], v{vRR+1} offset:{(blk-12)*1024}")
        bg.tick(6)

def reduce_sum(mi, counted=True):
    if counted: a(f"s_waitcnt lgkmcnt({12 - 3*mi})")
    for c in range(1, 4):
        for h in range(2):
            d = acc(0, mi) + 2*h; s = RT + 4*((c-1)*5 + mi) + 2*h
            fg(f"v_pk_add_f32 {P(d)}, {P(d)}, {P(s)}")

def pack_swap():
    for mi in range(5):
        d = acc(0, mi); r = PK + 2*mi
        a(f"v_cvt_pk_bf16_f32 v{r}, v{d}, v{d+1}")
        a(f"v_cvt_pk_bf16_f32 v{r+1}, v{d+2}, v{d+3}")
    a(f"v_mov_b32 v{PK+10}, v{PK+8}")
    a(f"v_mov_b32 v{PK+11}, v{PK+9}")
    a("s_nop 1")
    for p in range(3):
        b = PK + 4*p
        a(f"v_permlane16_swap_b32 v{b}, v{b+2}")
        a(f"v_permlane16_swap_b32 v{b+1}, v{b+3}")

def epilogue1(after_reduce):
    reduce_write()
    if not args.biasc:
        a(f"v_lshlrev_b32 v96, 16, v{vB1}");   a(f"v_and_b32 v97, 0xffff0000, v{vB1}")
        a(f"v_lshlrev_b32 v98, 16, v{vB1+1}"); a(f"v_and_b32 v99, 0xffff0000, v{vB1+1}")
    T = 100
    for mi in range(5):
        d = acc(0, mi)
        reduce_sum(mi)
        if args.estamps and mi in (0, 4): stamp(f"red: sum {mi}")
        if mi == 4: after_reduce()
        if not args.biasc:
            for h in range(2):
                fg(f"v_pk_add_f32 {P(d+2*h)}, {P(d+2*h)}, {P(96+2*h)}")
        t = T + 4*(mi % 2)
        for h in range(2):
            u = d + 2*h
            fg(f"v_pk_mul_f32 {P(t+2*h)}, {P(u)}, {P(u)}")
        for h in range(2):
            fg(f"v_pk_fma_f32 {P(t+2*h)}, {P(t+2*h)}, {P(vC+2)}, {P(vC)}")
        for h in range(2):
            u = d + 2*h
            fg(f"v_pk_mul_f32 {P(t+2*h)}, {P(t+2*h)}, {P(u)}")
        for k in range(4): a(f"v_exp_f32 v{t+k}, v{t+k}")
        bg.tick(8)
        for h in range(2): a(f"v_pk_add_f32 {P(t+2*h)}, {P(t+2*h)}, {P(vC+4)}")
        for k in range(4): a(f"v_rcp_f32 v{t+k}, v{t+k}")
        a("s_nop 0")
        bg.tick(10)
        for h in range(2): fg(f"v_pk_mul_f32 {P(d+2*h)}, {P(d+2*h)}, {P(t+2*h)}")
        r = PK + 2*mi
        a(f"v_cvt_pk_bf16_f32 v{r}, v{d}, v{d+1}")
        a(f"v_cvt_pk_bf16_f32 v{r+1}, v{d+2}, v{d+3}")
        if mi in (1, 3):
            p = mi // 2; b = PK + 4*p
            a("s_nop 1")
            a(f"v_permlane16_swap_b32 v{b}, v{b+2}")
            a(f"v_permlane16_swap_b32 v{b+1}, v{b+3}")
            if not args.bglate:
                a(f"buffer_store_dwordx4 v[{b}:{b+3}], v{vGO}, s[{srdWS}:{srdWS+3}], s{sGST} offen offset:{2048*p}{SC}")
                vm.issue("gst")
    bg.flush()
    a(f"v_mov_b32 v{PK+10}, v{PK+8}")
    a(f"v_mov_b32 v{PK+11}, v{PK+9}")
    a(f"s_add_u32 s{sT1}, s{sGST}, 4096")
    a("s_nop 0")
    a(f"v_permlane16_swap_b32 v{PK+8}, v{PK+10}")
    a(f"v_permlane16_swap_b32 v{PK+9}, v{PK+11}")
    if args.bglate:
        for p in range(2):
            b = PK + 4*p
            a(f"buffer_store_dwordx4 v[{b}:{b+3}], v{vGO}, s[{srdWS}:{srdWS+3}], s{sGST} offen offset:{2048*p}{SC}")
            vm.issue("gst")
    a(f"buffer_store_dwordx4 v[{PK+8}:{PK+11}], v{vGL}, s[{srdWS}:{srdWS+3}], s{sT1} offen{SC}")
    vm.issue("gst")

def epilogue2():
    reduce_write()
    if not args.biasc:
        a(f"v_lshlrev_b32 v96, 16, v{vB2}")
        a("v_mov_b32 v97, v96")
    o = fl(args.ofl)
    for mi in range(5):
        d = acc(0, mi)
        reduce_sum(mi)
        if not args.biasc:
            for h in range(2):
                a(f"v_pk_add_f32 {P(d+2*h)}, {P(d+2*h)}, {P(96)}")
        r = PK + 2*mi
        a(f"v_cvt_pk_bf16_f32 v{r}, v{d}, v{d+1}")
        a(f"v_cvt_pk_bf16_f32 v{r+1}, v{d+2}, v{d+3}")
        if mi in (1, 3):
            p = mi // 2; b = PK + 4*p
            a("s_nop 1")
            a(f"v_permlane16_swap_b32 v{b}, v{b+2}")
            a(f"v_permlane16_swap_b32 v{b+1}, v{b+3}")
            a(f"buffer_store_dwordx4 v[{b}:{b+3}], v{vOO}, s[{srdOUT}:{srdOUT+3}], s{sOST} offen offset:{64*p}{o}")
    a(f"v_mov_b32 v{PK+10}, v{PK+8}")
    a(f"v_mov_b32 v{PK+11}, v{PK+9}")
    a("s_nop 1")
    a(f"v_permlane16_swap_b32 v{PK+8}, v{PK+10}")
    a(f"v_permlane16_swap_b32 v{PK+9}, v{PK+11}")
    a(f"buffer_store_dwordx4 v[{PK+8}:{PK+11}], v{vOL}, s[{srdOUT}:{srdOUT+3}], s{sOST} offen offset:128{o}")

pair = lambda s: tuple(int(x) for x in s.split(":"))
file_begin(a, [(MAIN, 256, 256, LDS_BYTES)])
prologue(MAIN, "L_end")
stamp("kernarg")
set_w1_base()
W1 = Stager(srdW1, vD, sWOFF, sWBASE, sWEND, W1_KS, 16, False, fl(args.w1fl), "w1")
W1.start()
publish_nonce()
if args.pf1:
    set_rot(16, args.pf1rot, sDT1)
    a(f"s_mul_i32 s{sT2}, s{sROT}, {W1_KS}")
    a(f"s_add_u32 s{sW2E}, s{sT2}, s{sWBASE}")
    def pf_piece(i, q):
        a(f"buffer_load_dwordx4 v[{128+4*((4*i+q)%8)}:{131+4*((4*i+q)%8)}], v{vD+q}, s[{srdW1}:{srdW1+3}], s{sW2E} offen{fl(args.w1fl)}")
        vm.issue("pf1")
        if q == 3:
            a(f"s_add_u32 s{sW2E}, s{sW2E}, {W1_KS}")
            a(f"s_cmp_eq_u32 s{sW2E}, s{sWEND}")
            a(f"s_cselect_b32 s{sW2E}, s{sWBASE}, s{sW2E}")
    for i in range(args.pf1):
        for q in range(4): bg.add(lambda i=i, q=q: pf_piece(i, q))
if args.npre: W1.dma_bg(args.npre)
bg.every = 6
ln_addresses()
tr_addresses()
bg.flush()
vm.wait("x")
stamp("x landed")
if args.nln: W1.dma_bg(args.nln)
bg.every = args.lnevery; bg.cnt = 0
ln_compute()
bg.flush()
ln_store()
nonce_issue()
stamp("h stores issued")
W1.fill(W1.nd + args.npost)
a(f"s_lshl_b32 s{sT0}, s{sFT}, 7")
a(f"s_lshl_b32 s{sT1}, s{sWV}, 5")
a(f"s_add_u32 s{sT0}, s{sT0}, s{sT1}")
a(f"v_lshrrev_b32 v12, 4, v{vLANE}")
a("v_lshlrev_b32 v12, 3, v12")
a(f"buffer_load_dwordx2 v[{vB1}:{vB1+1}], v12, s[{srdB1}:{srdB1+3}], s{sT0} offen")
vm.issue("b1")
vm.wait("nonce")
nonce_finish("L_nonce")
a("s_barrier")
a(f"s_lshl_b32 s{sT2}, s{sB}, {args.flsh}")
a(f"s_add_u32 s{sT2}, s{sT2}, {FL_LN}")
store_flag("L_flag_ln", sT2)
stamp("LN flag stored")
a(f"s_cmp_eq_u32 s{sROLE}, 0")
a("s_cbranch_scc1 L_idle")
i_branch = nstamp[0]
set_h_base()
a(f"s_lshl_b32 s{sT2}, s{sWV}, {args.flsh + 6}")
a(f"s_add_u32 s{sGST}, s{sT2}, {FL_LN}")
a(f"v_lshlrev_b32 v{vPOLL+2}, {args.flsh}, v{vLANE}")
W1.advance_to(*pair(args.pre1))
poll_issue(sGST)
W1.advance_to(*pair(args.pre1b))
stamp("poll check")
poll_check("L_poll_ln", sGST, args.deep1)
stamp("LN flags seen")
main_prefill(1, 16, False)
if args.biasc:
    a(f"v_lshlrev_b32 v96, 16, v{vB1}");   a(f"v_and_b32 v97, 0xffff0000, v{vB1}")
    a(f"v_lshlrev_b32 v98, 16, v{vB1+1}"); a(f"v_and_b32 v99, 0xffff0000, v{vB1+1}")
W2 = Stager(srdW2, vD2, sW2R, sW2B, sW2E, W2_KS, 14, True, fl(args.w2fl), "w2")
queue_lines(epilogue_addresses)
bg.every = args.addrevery; bg.cnt = 0
tailq = []
def tail():
    assert W1.nd == W1.nks
    if not W2.started: W2.start()
    if tailq: tailq.pop(0)()
ntail = 5 if args.tailpieces else 0
for pos in range(ntail):
    for q in range(4): tailq.append(lambda pos=pos, q=q: W2.piece(pos, q, False))
W2.nd = ntail
main_loop(1, 16, False, W1, tail if ntail else None)
assert not tailq
if not W2.started: W2.start()
stamp("main1 done")
W2.dma_bg(args.n2pre - W2.nd)
bg.every = args.epevery; bg.cnt = 0
def after_reduce():
    if not args.epseq:
        W2.dma_bg(args.ep3)
        W2.tr_bg(args.eptr)
        return
    for ch in args.epseq:
        if ch == "T": W2.tr_bg(1)
        else:
            if W2.nd >= NSLOT:
                assert W2.nd - NSLOT < W2.nt
                bg.add(lambda: a("s_waitcnt lgkmcnt(0)"))
            W2.dma_bg(1)
epilogue1(after_reduce)
stamp("G stores issued")
a("s_waitcnt lgkmcnt(0)")
def g_poll_setup():
    set_g_base()
    a(f"s_mul_i32 s{sT2}, s{sWV}, 7")
    a(f"s_cmp_eq_u32 s{sWV}, 3")
    a(f"s_cselect_b32 s{sT3}, 1, 0")
    a(f"s_sub_u32 s{sT2}, s{sT2}, s{sT3}")
    a(f"s_lshl_b32 s{sT3}, s{sDT}, 5")
    a(f"s_add_u32 s{sT2}, s{sT2}, s{sT3}")
    a(f"s_lshl_b32 s{sT2}, s{sT2}, {args.gflsh}")
    a(f"s_add_u32 s{sGST}, s{sT2}, {FL_G}")
    a(f"v_min_u32 v{vPOLL+2}, 6, v{vLANE}")
    a(f"v_lshlrev_b32 v{vPOLL+2}, {args.gflsh}, v{vPOLL+2}")
g_poll_setup()
if args.pre2:
    W2.advance_to(*pair(args.pre2))
else:
    assert W2.nd + args.n2fill - NSLOT <= W2.nt
    W2.fill(W2.nd + args.n2fill)
    for _ in range(args.k2pre): W2.tr()
vm.wait("gst")
a("s_barrier")
a(f"s_lshl_b32 s{sT2}, s{sDT1}, 5")
a(f"s_add_u32 s{sT2}, s{sT2}, s{sFT}")
a(f"s_lshl_b32 s{sT2}, s{sT2}, {args.gflsh}")
a(f"s_add_u32 s{sT2}, s{sT2}, {FL_G}")
store_flag("L_flag_g", sT2)
stamp("G flag stored")
j_nd, j_nt = pair(args.join2)
poll_issue(sGST)
W2.advance_to(j_nd, j_nt)
stamp("w2 staged")
vm_join = list(vm.ops)
i_join = nstamp[0]
a("s_branch L_gemm2")
a("L_idle:")
nstamp[0] = i_branch
a("s_waitcnt vmcnt(0)")
vm.drained()
epilogue_addresses()
if args.pfmode in ("mall", "split"):
    a(f"s_lshl_b32 s{sT2}, s{sWV}, {args.flsh + 6}")
    a(f"s_add_u32 s{sGST}, s{sT2}, {FL_LN}")
    a(f"v_lshlrev_b32 v{vPOLL+2}, {args.flsh}, v{vLANE}")
    if args.pfwait:
        poll_issue(sGST)
        poll_check("L_poll_idle", sGST)
    a(f"s_and_b32 s{sT0}, s{sB}, 7")
    a(f"s_and_b32 s{sT1}, s{sB}, 1")
    a(f"s_add_u32 s{sT1}, s{sT1}, 8")
    a(f"s_lshr_b32 s{sT2}, s{sB}, 5")
    a(f"s_cmp_eq_u32 s{sT2}, 7")
    a(f"s_cselect_b32 s{sT0}, s{sT0}, s{sT1}")
    a(f"s_lshl_b32 s{sT0}, s{sT0}, 2")
    a(f"s_bfe_u32 s{sT1}, s{sB}, 0x20003")
    a(f"s_add_u32 s{sT0}, s{sT0}, s{sT1}")
    a(f"s_lshl_b32 s{sT0}, s{sT0}, 2")
    a(f"s_add_u32 s{sIDX}, s{sT0}, s{sWV}")
    def pf_loop(label, n):
        a(f"s_mov_b32 s{sT1}, {n}")
        a(f"{label}:")
        a(f"buffer_load_dwordx4 v[20:23], v{vA}, s[{srdW2}:{srdW2+3}], s{sT0} offen")
        a(f"s_add_u32 s{sT0}, s{sT0}, 1024")
        a(f"s_sub_u32 s{sT1}, s{sT1}, 1")
        a(f"s_cmp_lg_u32 s{sT1}, 0")
        a(f"s_cbranch_scc1 {label}")
    if args.pfmode == "mall":
        a(f"s_mul_i32 s{sT0}, s{sIDX}, {44*1024}")
        pf_loop("L_pf_loop", 44)
        a("s_waitcnt vmcnt(0)")
    else:
        a(f"s_and_b32 s{sT2}, s{sIDX}, 3")
        a(f"s_mul_i32 s{sT0}, s{sT2}, 14")
        a(f"s_cmp_eq_u32 s{sT2}, 3")
        a(f"s_cselect_b32 s{sT3}, 1, 0")
        a(f"s_sub_u32 s{sT0}, s{sT0}, s{sT3}")
        a(f"s_lshl_b32 s{sT0}, s{sT0}, 5")
        a(f"s_lshr_b32 s{sT2}, s{sIDX}, 2")
        a(f"s_lshl_b32 s{sT2}, s{sT2}, 2")
        a(f"s_add_u32 s{sT0}, s{sT0}, s{sT2}")
        a(f"s_lshl_b32 s{sT0}, s{sT0}, 12")
        pf_loop("L_pf_loop", 16)
vm.drained()
stamp("idle: prefetch done")
W2i = Stager(srdW2, vD2, sW2R, sW2B, sW2E, W2_KS, 14, True, fl(args.w2fl), "w2i")
W2i.start()
if args.pfmode == "xcd2":
    a(f"s_lshr_b32 s{sT0}, s{sB}, 5")
    a(f"s_cmp_lg_u32 s{sT0}, 7")
    a("s_cbranch_scc1 L_pfx_done")
    a(f"s_bfe_u32 s{sT2}, s{sB}, 0x20003")
    a(f"s_mul_i32 s{sT0}, s{sT2}, 14")
    a(f"s_cmp_eq_u32 s{sT2}, 3")
    a(f"s_cselect_b32 s{sT3}, 1, 0")
    a(f"s_sub_u32 s{sT0}, s{sT0}, s{sT3}")
    a(f"s_lshl_b32 s{sT0}, s{sT0}, 5")
    a(f"s_lshl_b32 s{sT1}, s{sWV}, 3")
    a(f"s_add_u32 s{sT0}, s{sT0}, s{sT1}")
    a(f"s_lshl_b32 s{sT0}, s{sT0}, 12")
    a(f"s_bfe_u32 s{sT1}, s{sB}, 0x20001")
    a(f"s_lshl_b32 s{sT1}, s{sT1}, 10")
    a(f"s_add_u32 s{sT0}, s{sT0}, s{sT1}")
    a(f"s_mov_b32 s{sT2}, {args.pfn}")
    if args.pfskip:
        a(f"s_add_u32 s{sT0}, s{sT0}, {args.pfskip0*32*4096}")
    vpf = vA
    if args.pfmask:
        vpf = 24
        a(f"v_lshrrev_b32 v25, 3, v{vLANE}")
        a(f"v_cmp_eq_u32 vcc, {args.stswap}, v25")
        a(f"v_mov_b32 v25, 0x10000000")
        a("s_nop 0")
        a(f"v_cndmask_b32 v24, v{vA}, v25, vcc")
    if args.pfown: W2i.fill(args.pfown)
    a("L_pfx_loop:")
    for r in range(8):
        a(f"buffer_load_dwordx4 v[20:23], v{vpf}, s[{srdW2}:{srdW2+3}], s{sT0} offen")
        a(f"s_add_u32 s{sT0}, s{sT0}, 4096")
    a(f"s_add_u32 s{sT0}, s{sT0}, {24*4096}")
    a(f"s_sub_u32 s{sT2}, s{sT2}, 1")
    a(f"s_cmp_lg_u32 s{sT2}, 0")
    a("s_cbranch_scc1 L_pfx_loop")
    a("L_pfx_done:")
W2i.advance_to(j_nd, j_nt)
if args.pfmode == "split":
    a(f"s_and_b32 s{sT2}, s{sIDX}, 3")
    a(f"s_mul_i32 s{sT0}, s{sT2}, 14")
    a(f"s_cmp_eq_u32 s{sT2}, 3")
    a(f"s_cselect_b32 s{sT3}, 1, 0")
    a(f"s_sub_u32 s{sT0}, s{sT0}, s{sT3}")
    a(f"s_add_u32 s{sT0}, s{sT0}, 5")
    a(f"s_lshl_b32 s{sT0}, s{sT0}, 17")
    a(f"s_lshr_b32 s{sT2}, s{sIDX}, 2")
    a(f"s_mul_i32 s{sT2}, s{sT2}, {29*1024}")
    a(f"s_add_u32 s{sT0}, s{sT0}, s{sT2}")
    pf_loop("L_pf_loop2", 29)
assert (W2i.nd, W2i.nt) == (W2.nd, W2.nt), ((W2i.nd, W2i.nt), (W2.nd, W2.nt))
g_poll_setup()
poll_issue(sGST)
a("s_waitcnt vmcnt(0)")
while nstamp[0] < i_join and args.stamps: stamp("idle")
if args.probe in ("poll_check", "LN_flags_seen", "main1_done", "G_stores_issued", "G_flag_stored", "w2_staged"):
    a("s_mov_b32 s89, s90")
a("L_gemm2:")
vm.ops = vm_join
poll_check("L_poll_g", sGST, args.deep2)
stamp("G flags seen")
bg.every = 0
main_prefill(2, 14, True)
if args.biasc:
    a(f"v_lshlrev_b32 v96, 16, v{vB2}")
    for k in (97, 98, 99): a(f"v_mov_b32 v{k}, v96")
main_loop(2, 14, True, W2)
stamp("main2 done")
epilogue2()
stamp("end")
write_stamps("L_st", STAMP)
if args.light:
    a("s_waitcnt vmcnt(0)")
    a("s_memrealtime s[92:93]")
    a("s_waitcnt lgkmcnt(0)")
    a(f"s_lshl_b32 s{sT0}, s{sB}, 2")
    a(f"s_add_u32 s{sT0}, s{sT0}, s{sWV}")
    a(f"s_lshl_b32 s{sT0}, s{sT0}, 3")
    a(f"s_add_u32 s{sT0}, s{sT0}, {STAMP}")
    a("v_mov_b32 v16, s90"); a("v_mov_b32 v17, s92"); a("v_mov_b32 v12, 0")
    a("s_mov_b64 exec, 1")
    a(f"buffer_store_dwordx2 v[16:17], v12, s[{srdWS}:{srdWS+3}], s{sT0} offen")
if args.probe.startswith("late"):
    lo, hi = int(args.probe[4]), int(args.probe[5])
    a(f"s_sub_u32 s89, s90, s{sNON}")
    a("s_ashr_i32 s88, s89, 31"); a("s_andn2_b32 s89, s89, s88")
    a(f"s_and_b32 s88, s{sB}, 7")
    a(f"s_cmp_ge_u32 s88, {lo}"); a("s_cselect_b32 s89, s89, 0")
    a(f"s_cmp_le_u32 s88, {hi}"); a("s_cselect_b32 s89, s89, 0")
    a("s_add_u32 s89, s89, s90")
if args.probe:
    a("s_waitcnt vmcnt(0)")
    a("s_sub_u32 s89, s89, s90")
    a("s_lshl_b32 s89, s89, 2")
    a("s_add_u32 s89, s89, 3000")
    a("L_probe:")
    a("s_memrealtime s[86:87]")
    a("s_waitcnt lgkmcnt(0)")
    a("s_sub_u32 s86, s86, s90")
    a("s_cmp_lt_u32 s86, s89")
    a("s_cbranch_scc1 L_probe")
if args.padto:
    a("s_waitcnt vmcnt(0)")
    a("L_pad:")
    a("s_memrealtime s[88:89]")
    a("s_waitcnt lgkmcnt(0)")
    a("s_sub_u32 s88, s88, s90")
    a(f"s_cmp_lt_u32 s88, {args.padto}")
    a("s_cbranch_scc1 L_pad")
a("L_end:")
a("s_endpgm")
a("L_code_end:")
kernel_desc(a, MAIN, 512, 102, 256)
print(a.text())
```

```python
import sys, argparse, struct
sys.path.insert(0, "tools")
from asmlib import *

ap = argparse.ArgumentParser()
ap.add_argument("--stamps", type=int, default=0)
ap.add_argument("--mstamps", type=int, default=0)
ap.add_argument("--cyc", type=int, default=0)
ap.add_argument("--light", type=int, default=0)
ap.add_argument("--padto", type=int, default=0)
ap.add_argument("--probe", default="")
ap.add_argument("--exact", type=int, default=1)
ap.add_argument("--na", type=int, default=4)
ap.add_argument("--pfwait", type=int, default=0)
ap.add_argument("--npre", type=int, default=0)
ap.add_argument("--nln", type=int, default=0)
ap.add_argument("--w2pf", type=int, default=1)
ap.add_argument("--lnevery", type=int, default=10)
ap.add_argument("--kpre", type=int, default=3)
ap.add_argument("--n2pre", type=int, default=6)
ap.add_argument("--epevery", type=int, default=12)
ap.add_argument("--pf1", type=int, default=0)
ap.add_argument("--pf1rot", default="qd:8")
ap.add_argument("--npost", type=int, default=2)
ap.add_argument("--pre1", default="11:2")
ap.add_argument("--pre1b", default="12:3")
ap.add_argument("--join2", default="14:5")
ap.add_argument("--pfmode", default="mall")
ap.add_argument("--pollat", type=int, default=13)
ap.add_argument("--pollat2", type=int, default=12)
ap.add_argument("--eptr", type=int, default=3)
ap.add_argument("--tailpieces", type=int, default=1)
ap.add_argument("--ep3", type=int, default=3)
ap.add_argument("--lntr", type=int, default=2)
ap.add_argument("--addrevery", type=int, default=3)
ap.add_argument("--n2fill", type=int, default=2)
ap.add_argument("--k2pre", type=int, default=2)
ap.add_argument("--sleep", type=int, default=1)
ap.add_argument("--rot1", default="qd:8")
ap.add_argument("--rot2", default="none:2")
ap.add_argument("--xfl", default="none")
ap.add_argument("--w1fl", default="none")
ap.add_argument("--w2fl", default="none")
ap.add_argument("--ofl", default="none")
ap.add_argument("--pre2", default="")
ap.add_argument("--bglate", type=int, default=0)
ap.add_argument("--wsame", type=int, default=0)
ap.add_argument("--nomfma", type=int, default=0)
ap.add_argument("--align", type=int, default=0)
ap.add_argument("--shift", type=int, default=0)
ap.add_argument("--deep1", type=int, default=0)
ap.add_argument("--deep2", type=int, default=0)
ap.add_argument("--epseq", default="")
ap.add_argument("--pfn", type=int, default=14)
ap.add_argument("--pfmask", type=int, default=1)
ap.add_argument("--pfown", type=int, default=0)
ap.add_argument("--pfskip", type=int, default=0)
ap.add_argument("--pfskip0", type=int, default=0)
ap.add_argument("--estamps", type=int, default=0)
ap.add_argument("--nlast", type=int, default=0)
ap.add_argument("--biasc", type=int, default=0)
ap.add_argument("--flsh", type=int, default=6)
ap.add_argument("--gflsh", type=int, default=6)
ap.add_argument("--spf", type=int, default=0)
ap.add_argument("--spf0", type=int, default=0)
ap.add_argument("--spfd", type=int, default=2)
ap.add_argument("--earlytag", type=int, default=0)
ap.add_argument("--ns2", type=int, default=6)
ap.add_argument("--etr", type=int, default=3)
ap.add_argument("--ep", type=int, default=3)
ap.add_argument("--stswap", type=int, default=3)
ap.add_argument("--map1", default="2d")
ap.add_argument("--astride", type=int, default=5120)
ap.add_argument("--asc", default="sc1")
ap.add_argument("--touch", type=int, default=0)
args = ap.parse_args()

def fl(s): return "" if s == "none" else " " + s.replace("+", " ")
def f32hex(x): return "0x%08x" % struct.unpack("<I", struct.pack("<f", x))[0]

S, D, F = 2048, 640, 1728
H_OFF   = 0
G_OFF   = 0x280000
FL_LN   = 0x500000
FL_G    = 0x510000
STAMP   = 0x8000000
W1_ROW, W2_ROW = 3456, 4096
W1_KS, W2_KS = 32 * W1_ROW, 32 * W2_ROW
RING = 36864
NSLOT = 9
T_OFF = 147456
LDS_BYTES = 163840
SPIN_MAX = 200000
SC = " sc1"
OOB = 0x10000000

sB, sWV = 2, 3
sDT, sFT, sST, sROLE = 4, 5, 6, 7
srdX, srdW1, srdW2, srdB1, srdB2, srdOUT, srdDBG, srdWS = 8, 12, 16, 20, 24, 28, 32, 36
sNON = 40
sT0, sT1, sT2, sT3 = 42, 43, 44, 45
sRING, sOFF = 46, 47
sKARG = 48
sSTAMP = 64
sDT1 = 94
sW2B, sW2R = 95, 99
sWOFF, sAOFF, sSPIN = 96, 97, 98
sEXEC = 100
sWBASE, sWEND, sABASE, sAEND, sROT, sW2E, sGST, sOST = 48, 49, 50, 51, 52, 53, 54, 55
sIDX = 56
sKX = 57

vTID, vLANE, vA, vA2 = 0, 1, 2, 3
vD, vT = 4, 8
vB1 = 14
ABUF, NA = 16, args.na
assert NA <= 5
vD2 = 128
vB2 = 132
vGO, vGL = 133, 134
vOO, vOL = 135, 136
vRW = 137
vRR = 141
vC = 144
ACC = 176
def acc(c, mi): return ACC + (c * 5 + mi) * 4
def abuf(slot, mi): return ABUF + slot * 20 + mi * 4
P = lambda r: f"v[{r}:{r+1}]"

a = Asm()

class VM:
    def __init__(self): self.ops = []
    def issue(self, tag, optional=False): self.ops.append((tag, optional))
    def has(self, tag): return any(t == tag for t, o in self.ops)
    def wait(self, tag):
        idx = max(i for i, (t, o) in enumerate(self.ops) if t == tag)
        n = sum(1 for t, o in self.ops[idx+1:] if not o)
        assert n <= 63, (tag, n)
        a(f"s_waitcnt vmcnt({n})")
        self.ops = self.ops[idx+1:]
    def drained(self): self.ops = []
vm = VM()

class BG:
    def __init__(self): self.q = []; self.cnt = 0; self.every = 0
    def add(self, fn): self.q.append(fn)
    def step(self):
        if self.q: self.q.pop(0)()
    def flush(self):
        while self.q: self.step()
    def tick(self, n=1):
        self.cnt += n
        while self.every and self.cnt >= self.every and self.q:
            self.cnt -= self.every; self.step()
bg = BG()
def fg(s):
    a(s); bg.tick()
def queue_lines(fn):
    save = a.lines; a.lines = []
    ops_before = len(vm.ops)
    fn()
    lines = a.lines; a.lines = save
    vmops = vm.ops[ops_before:]; del vm.ops[ops_before:]
    groups = []
    for l in lines:
        op = l.split()[0] if l.split() else ""
        if groups and op in ("s_cselect_b32", "s_addc_u32", "s_cbranch_scc0", "s_cbranch_scc1"): groups[-1].append(l)
        else: groups.append([l])
    def emit(g):
        for l in g:
            a(l)
            if l.startswith("buffer_"): vm.issue(*vmops.pop(0))
    for g in groups: bg.add(lambda g=g: emit(g))

nstamp = [0]
NSTAMPS = 28
stamp_names = {}
def stamp(name):
    if args.light:
        if name == "start": a("s_memrealtime s[90:91]")
        return
    if args.probe:
        if name == "start":
            a("s_memrealtime s[90:91]")
        elif name == args.probe.replace("_", " "):
            a("s_memrealtime s[92:93]"); a("s_waitcnt lgkmcnt(0)"); a("s_mov_b32 s89, s92")
        return
    if not args.stamps: return
    i = nstamp[0]; nstamp[0] += 1
    assert i < NSTAMPS
    stamp_names.setdefault(i, name)
    a(("s_memtime" if args.cyc else "s_memrealtime") + " s[92:93]")
    a("s_waitcnt lgkmcnt(0)")
    a(f"s_mov_b32 s{sSTAMP+i}, s92")

def write_stamps(label, base):
    if not args.stamps: return
    a(f"s_cmp_lg_u32 s{sWV}, {args.stamps - 1}")
    a(f"s_cbranch_scc1 {label}_nostamp")
    a(f"s_mul_i32 s{sT0}, s{sB}, 128")
    a(f"s_add_u32 s{sT0}, s{sT0}, {base}")
    a("v_mov_b32 v12, 0")
    a("s_mov_b64 exec, 1")
    for i in range(0, NSTAMPS, 4):
        for k in range(4):
            if i + k < nstamp[0]: a(f"v_mov_b32 v{16+k}, s{sSTAMP + i + k}")
            else:                 a(f"v_mov_b32 v{16+k}, 0")
        a(f"buffer_store_dwordx4 v[16:19], v12, s[{srdWS}:{srdWS+3}], s{sT0} offen offset:{i*4}")
        a("s_nop 2")
    a(f"{label}_nostamp:")
    for i in sorted(stamp_names): a(f"; STAMPNAME {i} {stamp_names[i]}")

def mk_srd(d, p, nbytes):
    a(f"s_mov_b32 s{d}, s{p}")
    a(f"s_and_b32 s{d+1}, s{p+1}, 0xffff")
    a(f"s_mov_b32 s{d+2}, {nbytes}")
    a(f"s_mov_b32 s{d+3}, 0x00020000")

def prologue(name, endlabel):
    kernel_begin(a, name)
    stamp("start")
    for _ in range(args.shift): a("s_nop 0")
    if args.padto: a("s_memrealtime s[90:91]")
    a(f"s_cmp_ge_u32 s{sB}, 256")
    a(f"s_cbranch_scc1 {endlabel}")
    a(f"s_load_dwordx16 s[{sKARG}:{sKARG+15}], s[0:1], 0")
    a(f"v_and_b32 v{vLANE}, 63, v{vTID}")
    a(f"v_lshrrev_b32 v12, 6, v{vTID}")
    a(f"v_lshlrev_b32 v{vA}, 4, v{vLANE}")
    a(f"v_readfirstlane_b32 s{sWV}, v12")
    a(f"v_add_u32 v{vA2}, 0x1000, v{vA}")
    a(f"s_getpc_b64 s[{sT0}:{sT0+1}]")
    a("L_pf_base:")
    a("s_nop 2")
    a(f"s_lshr_b32 s{sT2}, s{sB}, 3")
    a(f"s_and_b32 s{sT2}, s{sT2}, 7")
    a(f"s_lshl_b32 s{sT2}, s{sT2}, 2")
    a(f"s_add_u32 s{sT2}, s{sT2}, s{sWV}")
    a(f"s_min_u32 s{sT2}, s{sT2}, (L_code_end - L_pf_base) / 1024 - 1")
    a(f"s_lshl_b32 s{sT2}, s{sT2}, 10")
    a(f"s_add_u32 s{sT0}, s{sT0}, s{sT2}")
    a(f"s_addc_u32 s{sT1}, s{sT1}, 0")
    a(f"global_load_dwordx4 v[124:127], v{vA}, s[{sT0}:{sT0+1}]")
    a(f"s_and_b32 s{sT0}, s{sB}, 1")
    a(f"s_lshl_b32 s{sT0}, s{sT0}, 2")
    a(f"s_bfe_u32 s{sT2}, s{sB}, 0x20003")
    a(f"s_add_u32 s{sDT}, s{sT0}, s{sT2}")
    a(f"s_lshr_b32 s{sT1}, s{sB}, 5")
    a(f"s_bfe_u32 s{sT3}, s{sB}, 0x20001")
    a(f"s_lshl_b32 s{sT2}, s{sT3}, 3")
    if args.stswap >= 0:
        a(f"s_cmp_eq_u32 s{sT1}, 7")
        a(f"s_cselect_b32 s{sT0}, {args.stswap}, s{sT1}")
        a(f"s_cmp_eq_u32 s{sT1}, {args.stswap}")
        a(f"s_cselect_b32 s{sT0}, 7, s{sT0}")
        a(f"s_add_u32 s{sST}, s{sT2}, s{sT0}")
    else:
        a(f"s_add_u32 s{sST}, s{sT2}, s{sT1}")
    if args.map1 == "2d":
        a(f"s_mov_b32 s{sDT1}, s{sDT}")
        a(f"s_mul_i32 s{sT2}, s{sT3}, 7")
        a(f"s_add_u32 s{sFT}, s{sT2}, s{sT1}")
        a(f"s_cmp_eq_u32 s{sT3}, 3")
        a(f"s_cselect_b32 s{sT2}, 6, 7")
        a(f"s_cmp_lt_u32 s{sT1}, s{sT2}")
        a(f"s_cselect_b32 s{sROLE}, 1, 0")
    else:
        a(f"s_bfe_u32 s{sDT1}, s{sB}, 0x30003")
        a(f"s_lshr_b32 s{sT0}, s{sB}, 6")
        a(f"s_lshl_b32 s{sT0}, s{sT0}, 3")
        a(f"s_and_b32 s{sT2}, s{sB}, 7")
        a(f"s_add_u32 s{sFT}, s{sT0}, s{sT2}")
        a(f"s_cmp_lt_u32 s{sFT}, 27")
        a(f"s_cselect_b32 s{sROLE}, 1, 0")
    a(f"s_mul_i32 s{sRING}, s{sWV}, {RING}")
    a(f"v_lshrrev_b32 v12, 5, v{vLANE}")
    a(f"v_mul_u32_u24 v12, 1280, v12")
    a(f"v_and_b32 v13, 31, v{vLANE}")
    a(f"v_lshl_add_u32 v14, v13, 4, v12")
    a(f"v_lshl_add_u32 v15, v13, 3, v12")
    dma_offsets(vD, W1_ROW)
    a(f"s_lshl_b32 s{sT0}, s{sB}, 3")
    a(f"s_lshl_b32 s{sT1}, s{sWV}, 1")
    a(f"s_add_u32 s{sT0}, s{sT0}, s{sT1}")
    a(f"s_mul_i32 s{sOFF}, s{sT0}, 1280")
    a("s_waitcnt lgkmcnt(0)")
    mk_srd(srdX, sKARG+0, S*D*2)
    a(f"buffer_load_dwordx4 v[{XR}:{XR+3}], v14, s[{srdX}:{srdX+3}], s{sOFF} offen{fl(args.xfl)}")
    a(f"buffer_load_dwordx4 v[{XR+4}:{XR+7}], v14, s[{srdX}:{srdX+3}], s{sOFF} offen offset:512{fl(args.xfl)}")
    a(f"buffer_load_dwordx2 v[{XR+8}:{XR+9}], v15, s[{srdX}:{srdX+3}], s{sOFF} offen offset:1024{fl(args.xfl)}")
    for _ in range(3): vm.issue("x")
    mk_srd(srdW1,  sKARG+2,  S*F*2)
    mk_srd(srdB1,  sKARG+4,  F*2)
    mk_srd(srdW2,  sKARG+6,  F*S*2)
    mk_srd(srdDBG, sKARG+12, 256)
    mk_srd(srdWS,  sKARG+14, 268435456)
    mk_srd(srdB2,  sKARG+8,  S*2)
    mk_srd(srdOUT, sKARG+10, S*D*2)

def dma_offsets(dst, row):
    a(f"v_lshrrev_b32 v12, 3, v{vLANE}")
    a(f"v_and_b32 v13, 2, v12")
    a(f"v_mul_u32_u24 v12, {row}, v12")
    a(f"v_and_b32 v{dst+2}, 7, v{vLANE}")
    a(f"v_xor_b32 v13, v13, v{dst+2}")
    a(f"v_lshl_add_u32 v{dst}, v13, 4, v12")
    a(f"v_xor_b32 v13, 4, v13")
    a(f"v_lshl_add_u32 v{dst+1}, v13, 4, v12")
    a(f"v_add_u32 v{dst+1}, {8*row}, v{dst+1}")
    a(f"v_add_u32 v{dst+2}, {16*row}, v{dst}")
    a(f"v_add_u32 v{dst+3}, {16*row}, v{dst+1}")

def tr_addresses():
    t0, t1, t2, t3 = 112, 113, 114, 115
    fg(f"v_lshrrev_b32 v{t0}, 4, v{vLANE}")
    fg(f"v_bfe_u32 v{t1}, v{vLANE}, 2, 2")
    fg(f"v_lshl_add_u32 v{t2}, v{t0}, 3, v{t1}")
    fg(f"v_lshlrev_b32 v{t2}, 7, v{t2}")
    fg(f"v_and_b32 v{t3}, 1, v{vLANE}")
    fg(f"v_lshl_add_u32 v{t2}, v{t3}, 3, v{t2}")
    fg(f"v_add_u32 v{t2}, s{sRING}, v{t2}")
    fg(f"v_and_b32 v{t0}, 1, v{t0}")
    fg(f"v_lshlrev_b32 v{t0}, 2, v{t0}")
    fg(f"v_and_b32 v{t1}, 2, v{t1}")
    fg(f"v_or_b32 v{t0}, v{t0}, v{t1}")
    fg(f"v_bfe_u32 v{t1}, v{vLANE}, 1, 1")
    fg(f"v_xor_b32 v{t0}, v{t0}, v{t1}")
    for c in range(4):
        a(f"s_add_u32 s{sT0}, s{sWV}, {c}")
        a(f"s_and_b32 s{sT0}, s{sT0}, 3")
        a(f"s_lshl_b32 s{sT0}, s{sT0}, 1")
        fg(f"v_xor_b32 v{t1}, s{sT0}, v{t0}")
        fg(f"v_lshl_add_u32 v{vT+c}, v{t1}, 4, v{t2}")

def m0_gap():
    if a.lines[-1].startswith("s_add_u32 m0"): a("s_nop 0")

class Stager:
    def __init__(self, srd, dreg, run, base, end, kstride, nks, optional_last, flags, tag, nslot=NSLOT):
        self.nslot = nslot
        self.srd, self.dreg, self.run, self.base, self.end = srd, dreg, run, base, end
        self.kstride, self.nks, self.opt, self.flags, self.tag = kstride, nks, optional_last, flags, tag
        self.nd = 0; self.nt = 0; self.uid = 0; self.started = False
    def lds(self, pos, q): return (pos % self.nslot)*4096 + q*1024
    def start(self):
        a(f"s_add_u32 m0, s{sRING}, {self.lds(0, 0)}")
        a("s_nop 0")
        self.started = True
    def piece(self, pos, q, burst):
        assert self.started
        opt = self.is_opt(pos)
        off = self.run
        if opt:
            off = sOFF
            if q == 0: a(f"s_add_u32 s{sOFF}, s{self.base}, {pos*self.kstride}")
        m0_gap()
        a(f"buffer_load_dwordx4 v{self.dreg+q}, s[{self.srd}:{self.srd+3}], s{off} offen{self.flags} lds")
        vm.issue((self.tag, pos), opt)
        npos, nq = (pos, q+1) if q < 3 else (pos+1, 0)
        last = npos >= self.nks
        if not last: a(f"s_add_u32 m0, s{sRING}, {self.lds(npos, nq)}")
        if q == 3 and not opt:
            a(f"s_add_u32 s{self.run}, s{self.run}, {self.kstride}")
            a(f"s_cmp_eq_u32 s{self.run}, s{self.end}")
            a(f"s_cselect_b32 s{self.run}, s{self.base}, s{self.run}")
        elif burst and not last:
            a("s_nop 0")
    def is_opt(self, pos): return self.opt and pos == self.nks - 1
    def dma(self):
        pos = self.nd; self.nd += 1
        body = lambda: [self.piece(pos, q, True) for q in range(4)]
        if self.is_opt(pos): guarded(f"L_{self.tag}_d{self.uid}", body); self.uid += 1
        else: body()
    def dma_bg(self, n):
        for _ in range(n):
            pos = self.nd; self.nd += 1
            assert not self.is_opt(pos)
            for q in range(4): bg.add(lambda pos=pos, q=q: self.piece(pos, q, False))
    def tr_body(self, pos):
        if vm.has((self.tag, pos)): vm.wait((self.tag, pos))
        for c in range(4):
            for t in range(2):
                r = 16*pos + 4*c + 2*t
                a(f"ds_read_b64_tr_b16 a[{r}:{r+1}], v{vT+c} offset:{(pos % self.nslot)*4096 + t*512}")
    def tr(self):
        pos = self.nt; self.nt += 1
        if self.is_opt(pos): guarded(f"L_{self.tag}_t{self.uid}", lambda: self.tr_body(pos)); self.uid += 1
        else: self.tr_body(pos)
    def tr_bg(self, n):
        for _ in range(n):
            pos = self.nt; self.nt += 1
            assert not self.is_opt(pos)
            bg.add(lambda pos=pos: self.tr_body(pos))
    def refill(self, settled=False):
        waited = settled
        lim = self.nt if settled else self.nt - 1
        while self.nd < self.nks and self.nd - self.nslot < lim:
            if self.nd >= self.nslot and not waited: a("s_waitcnt lgkmcnt(8)"); waited = True
            self.dma()
    def step(self):
        self.refill()
        if self.nt < self.nks: self.tr()
        self.refill()
    def fill(self, limit=None):
        limit = self.nslot if limit is None else limit
        while self.nd < min(limit, self.nks): self.dma()
    def advance_to(self, nd, nt):
        assert nd - self.nslot <= nt
        while self.nd < nd or self.nt < nt:
            if self.nd < nd and self.nd < self.nslot: self.dma()
            elif self.nd < nd and self.nd - self.nslot < self.nt - 1:
                a("s_waitcnt lgkmcnt(8)"); self.dma()
            elif self.nt < nt: self.tr()
            else:
                a("s_waitcnt lgkmcnt(0)"); self.dma()
    def request_all(self):
        while self.nd < self.nks: self.step()
    def finish(self):
        while self.nt < self.nks or self.nd < self.nks: self.step()
        a("s_waitcnt lgkmcnt(0)")

def guarded(label, fn):
    a(f"s_cmp_ge_u32 s{sWV}, 2")
    a(f"s_cbranch_scc1 {label}")
    fn()
    a(f"{label}:")

def set_rot(n, spec, dreg):
    mode, g = spec.split(":"); g = int(g)
    if mode == "none":
        a(f"s_mov_b32 s{sROT}, 0"); return
    if mode == "d": a(f"s_mov_b32 s{sT0}, s{dreg}")
    else:
        a(f"s_lshr_b32 s{sT0}, s{sB}, 5")
        if mode == "qd": a(f"s_add_u32 s{sT0}, s{sT0}, s{dreg}")
    a(f"s_and_b32 s{sT0}, s{sT0}, {g-1}")
    a(f"s_mul_i32 s{sT0}, s{sT0}, {n}")
    a(f"s_lshr_b32 s{sROT}, s{sT0}, {g.bit_length()-1}")
def set_run(run, base, end, n, stride):
    a(f"s_add_u32 s{end}, s{base}, {n*stride}")
    a(f"s_mul_i32 s{run}, s{sROT}, {stride}")
    a(f"s_add_u32 s{run}, s{run}, s{base}")
def set_w1_base():
    set_rot(16, args.rot1, sDT1)
    a(f"s_lshl_b32 s{sT0}, s{sWV}, 4")
    a(f"s_mul_i32 s{sWBASE}, s{sT0}, {W1_KS}")
    a(f"s_lshl_b32 s{sT0}, s{sFT}, 7")
    if args.wsame & 1: a(f"s_mov_b32 s{sT0}, 0")
    a(f"s_add_u32 s{sWBASE}, s{sWBASE}, s{sT0}")
    a(f"s_cmp_eq_u32 s{sROLE}, 0")
    a(f"s_cselect_b32 s{sWBASE}, {OOB}, s{sWBASE}")
    set_run(sWOFF, sWBASE, sWEND, 16, W1_KS)
def set_h_base():
    set_rot(16, args.rot1, sDT1)
    a(f"s_lshl_b32 s{sT0}, s{sDT1}, 6")
    a(f"s_lshl_b32 s{sT1}, s{sWV}, 4")
    a(f"s_add_u32 s{sT0}, s{sT0}, s{sT1}")
    a(f"s_mul_i32 s{sABASE}, s{sT0}, 5120")
    if H_OFF: a(f"s_add_u32 s{sABASE}, s{sABASE}, {H_OFF}")
    set_run(sAOFF, sABASE, sAEND, 16, 5120)
def k2_start(dst):
    a(f"s_mul_i32 s{dst}, s{sWV}, 14")
    a(f"s_cmp_eq_u32 s{sWV}, 3")
    a(f"s_cselect_b32 s{sT3}, 1, 0")
    a(f"s_sub_u32 s{dst}, s{dst}, s{sT3}")
def set_w2_base():
    set_rot(13, args.rot2, sDT)
    k2_start(sT0)
    a(f"s_mul_i32 s{sW2B}, s{sT0}, {W2_KS}")
    a(f"s_lshl_b32 s{sT0}, s{sST}, 7")
    if args.wsame & 2: a(f"s_mov_b32 s{sT0}, 0")
    a(f"s_add_u32 s{sW2B}, s{sW2B}, s{sT0}")
    set_run(sW2R, sW2B, sW2E, 13, W2_KS)
def set_g_base():
    set_rot(13, args.rot2, sDT)
    k2_start(sT0)
    a(f"s_mul_i32 s{sT1}, s{sDT}, 54")
    a(f"s_add_u32 s{sT0}, s{sT0}, s{sT1}")
    a(f"s_mul_i32 s{sABASE}, s{sT0}, 5120")
    a(f"s_add_u32 s{sABASE}, s{sABASE}, {G_OFF}")
    set_run(sAOFF, sABASE, sAEND, 13, 5120)

XR = 16
FV = 28
DV = 48
HP = 68
WA = 80
GA = 92
TV = 100
def ln_addresses():
    fg(f"v_and_b32 v{TV}, 31, v{vLANE}")
    fg(f"v_lshrrev_b32 v{TV+1}, 5, v{vLANE}")
    fg(f"v_lshlrev_b32 v{TV+1}, 1, v{TV+1}")
    a(f"s_lshl_b32 s{sT0}, s{sWV}, 2")
    a(f"s_add_u32 s{sT0}, s{sT0}, {T_OFF}")
    fg(f"v_and_b32 v{TV+2}, 7, v{TV}")
    fg(f"v_xor_b32 v{TV+2}, v{TV+2}, v{TV+1}")
    fg(f"v_lshlrev_b32 v{TV+3}, 7, v{TV}")
    a(f"v_add_u32 v{TV+3}, s{sT0}, v{TV+3}")
    a(f"v_lshrrev_b32 v{TV+7}, 1, v{TV}")
    a(f"v_lshlrev_b32 v{TV+8}, 7, v{TV+7}")
    fg(f"v_add_u32 v{TV+8}, s{sT0}, v{TV+8}")
    for k in range(4):
        base = 4096 if k >= 2 else 0
        e = 4 if (k & 1) else 0
        for o in range(2):
            fg(f"v_xor_b32 v{TV+4}, {e + o}, v{TV+2}")
            fg(f"v_lshl_add_u32 v{WA + 2*k + o}, v{TV+4}, 4, v{TV+3}")
            if base: fg(f"v_add_u32 v{WA + 2*k + o}, {base}, v{WA + 2*k + o}")
    fg(f"v_and_b32 v{TV+5}, 1, v{TV}")
    fg(f"v_lshl_add_u32 v{TV+5}, v{TV+5}, 2, v{TV+1}")
    fg(f"v_and_b32 v{TV+6}, 7, v{TV+7}")
    fg(f"v_xor_b32 v{TV+5}, v{TV+5}, v{TV+6}")
    fg(f"v_add_u32 v{TV+8}, 8192, v{TV+8}")
    fg(f"v_lshl_add_u32 v{WA+8}, v{TV+5}, 4, v{TV+8}")
    fg(f"v_xor_b32 v{TV+5}, 1, v{TV+5}")
    fg(f"v_lshl_add_u32 v{WA+9}, v{TV+5}, 4, v{TV+8}")
    for i in range(3):
        fg(f"v_add_u32 v{TV}, {256*i}, v{vTID}")
        fg(f"v_lshrrev_b32 v{TV+1}, 3, v{TV}")
        fg(f"v_xor_b32 v{TV+1}, v{TV+1}, v{TV}")
        fg(f"v_and_b32 v{TV+1}, 7, v{TV+1}")
        fg(f"v_and_b32 v{TV+2}, 0x3f8, v{TV}")
        fg(f"v_or_b32 v{TV+1}, v{TV+1}, v{TV+2}")
        fg(f"v_lshrrev_b32 v{TV+2}, 4, v{TV+1}")
        fg(f"v_mul_u32_u24 v{TV+3}, 205, v{TV+2}")
        fg(f"v_lshrrev_b32 v{TV+3}, 10, v{TV+3}")
        fg(f"v_mul_u32_u24 v{TV+3}, 315, v{TV+3}")
        fg(f"v_add_u32 v{TV+3}, v{TV+3}, v{TV+2}")
        fg(f"v_lshlrev_b32 v{TV+3}, 10, v{TV+3}")
        fg(f"v_and_b32 v{TV+1}, 15, v{TV+1}")
        fg(f"v_lshl_add_u32 v{GA+i}, v{TV+1}, 4, v{TV+3}")
    fg(f"v_lshlrev_b32 v95, 4, v{vTID}")
    fg(f"v_add_u32 v95, {T_OFF}, v95")
    a(f"s_lshr_b32 s{sT0}, s{sB}, 2")
    a(f"s_mul_i32 s{sT0}, s{sT0}, 5120")
    a(f"s_and_b32 s{sT1}, s{sB}, 3")
    a(f"s_lshl_b32 s{sT1}, s{sT1}, 8")
    a(f"s_add_u32 s{sGST}, s{sT0}, s{sT1}")
    if H_OFF: a(f"s_add_u32 s{sGST}, s{sGST}, {H_OFF}")

def reduce32(r, t):
    for dpp in ("quad_perm:[1,0,3,2]", "quad_perm:[2,3,0,1]", "row_half_mirror", "row_mirror"):
        a("s_nop 1")
        a(f"v_add_f32_dpp v{r}, v{r}, v{r} {dpp} row_mask:0xf bank_mask:0xf")
    a(f"v_mov_b32 v{t}, v{r}")
    a("s_nop 1")
    a(f"v_permlane16_swap_b32 v{r}, v{t}")
    a("s_nop 1")
    fg(f"v_add_f32 v{r}, v{r}, v{t}")

def rne_bf16(dst, src):
    a(f"v_cvt_pk_bf16_f32 v{dst}, v{src}, v{src}")
    a(f"v_and_b32 v{dst}, 0xffff0000, v{dst}")

def ln_compute():
    for m in range(10):
        fg(f"v_lshlrev_b32 v{FV+2*m}, 16, v{XR+m}")
        fg(f"v_and_b32 v{FV+2*m+1}, 0xffff0000, v{XR+m}")
    s0, s1 = TV, TV+2
    fg(f"v_pk_add_f32 {P(s0)}, {P(FV)}, {P(FV+2)}")
    fg(f"v_pk_add_f32 {P(s1)}, {P(FV+4)}, {P(FV+6)}")
    for m in range(4, 10):
        s = s0 if m % 2 == 0 else s1
        fg(f"v_pk_add_f32 {P(s)}, {P(s)}, {P(FV+2*m)}")
    fg(f"v_pk_add_f32 {P(s0)}, {P(s0)}, {P(s1)}")
    mean = TV+4
    fg(f"v_add_f32 v{mean}, v{s0}, v{s0+1}")
    reduce32(mean, TV+6)
    fg(f"v_mul_f32 v{mean}, {f32hex(1.0/640)}, v{mean}")
    fg(f"v_mov_b32 v{mean+1}, v{mean}")
    for m in range(10):
        fg(f"v_pk_add_f32 {P(DV+2*m)}, {P(FV+2*m)}, {P(mean)} neg_lo:[0,1] neg_hi:[0,1]")
    fg(f"v_pk_mul_f32 {P(s0)}, {P(DV)}, {P(DV)}")
    fg(f"v_pk_mul_f32 {P(s1)}, {P(DV+2)}, {P(DV+2)}")
    for m in range(2, 10):
        s = s0 if m % 2 == 0 else s1
        fg(f"v_pk_fma_f32 {P(s)}, {P(DV+2*m)}, {P(DV+2*m)}, {P(s)}")
    fg(f"v_pk_add_f32 {P(s0)}, {P(s0)}, {P(s1)}")
    var = TV+8
    fg(f"v_add_f32 v{var}, v{s0}, v{s0+1}")
    reduce32(var, TV+6)
    fg(f"v_mul_f32 v{var}, {f32hex(1.0/640)}, v{var}")
    rs = TV+10
    if args.exact:
        rne_bf16(var, var)
        a(f"v_add_f32 v{var}, {f32hex(1e-5)}, v{var}")
        rne_bf16(var, var)
        a(f"v_sqrt_f32 v{var}, v{var}")
        a("s_nop 0")
        rne_bf16(var, var)
        a(f"v_rcp_f32 v{rs}, v{var}")
        rne_bf16(mean, mean)
        a(f"v_mov_b32 v{mean+1}, v{mean}")
        fg(f"v_mov_b32 v{rs+1}, v{rs}")
        for m in range(10):
            fg(f"v_pk_add_f32 {P(DV+2*m)}, {P(FV+2*m)}, {P(mean)} neg_lo:[0,1] neg_hi:[0,1]")
        for m in range(10):
            fg(f"v_cvt_pk_bf16_f32 v{HP+m}, v{DV+2*m}, v{DV+2*m+1}")
        for m in range(10):
            fg(f"v_lshlrev_b32 v{DV+2*m}, 16, v{HP+m}")
            fg(f"v_and_b32 v{DV+2*m+1}, 0xffff0000, v{HP+m}")
    else:
        a(f"v_add_f32 v{var}, {f32hex(1e-5)}, v{var}")
        a(f"v_rsq_f32 v{rs}, v{var}")
        a("s_nop 0")
        fg(f"v_mov_b32 v{rs+1}, v{rs}")
    for m in range(10):
        fg(f"v_pk_mul_f32 {P(DV+2*m)}, {P(DV+2*m)}, {P(rs)}")
    for m in range(10):
        fg(f"v_cvt_pk_bf16_f32 v{HP+m}, v{DV+2*m}, v{DV+2*m+1}")
    a(f"s_mov_b32 s{sT0}, 0x05040100")
    a(f"s_mov_b32 s{sT1}, 0x07060302")
    for k in range(5):
        a(f"v_permlane32_swap_b32 v{HP+2*k}, v{HP+2*k+1}")
    a("s_nop 1")
    for k in range(5):
        a(f"v_perm_b32 v{DV+2*k}, v{HP+2*k+1}, v{HP+2*k}, s{sT0}")
        a(f"v_perm_b32 v{DV+2*k+1}, v{HP+2*k+1}, v{HP+2*k}, s{sT1}")
    for k in range(10):
        a(f"ds_write_b32 v{WA+k}, v{DV+k}")

def ln_store():
    a("s_waitcnt lgkmcnt(0)")
    a("s_barrier")
    a(f"ds_read_b128 v[{FV}:{FV+3}], v95")
    a(f"ds_read_b128 v[{FV+4}:{FV+7}], v95 offset:4096")
    a(f"s_cmp_ge_u32 s{sWV}, 2")
    a("s_cbranch_scc1 L_ln_two")
    a(f"ds_read_b128 v[{FV+8}:{FV+11}], v95 offset:8192")
    a("s_waitcnt lgkmcnt(0)")
    a(f"buffer_store_dwordx4 v[{FV+8}:{FV+11}], v{GA+2}, s[{srdWS}:{srdWS+3}], s{sGST} offen{SC}")
    vm.issue("hst3", True)
    a("L_ln_two:")
    a("s_waitcnt lgkmcnt(0)")
    a(f"buffer_store_dwordx4 v[{FV}:{FV+3}], v{GA}, s[{srdWS}:{srdWS+3}], s{sGST} offen{SC}")
    a(f"buffer_store_dwordx4 v[{FV+4}:{FV+7}], v{GA+1}, s[{srdWS}:{srdWS+3}], s{sGST} offen{SC}")
    vm.issue("hst"); vm.issue("hst")

def publish_nonce():
    a(f"s_or_b32 s{sT0}, s{sB}, s{sWV}")
    a(f"s_cmp_lg_u32 s{sT0}, 0")
    a("s_cbranch_scc1 L_no_nonce")
    a(f"s_memrealtime s[{sT0}:{sT0+1}]")
    a("s_waitcnt lgkmcnt(0)")
    a(f"s_or_b32 s{sT1}, s{sT1}, 0x40000000")
    a(f"v_mov_b32 v12, s{sT0}")
    a(f"v_mov_b32 v13, s{sT1}")
    a("v_mov_b32 v112, 0")
    a(f"buffer_store_dwordx2 v[12:13], v112, s[{srdDBG}:{srdDBG+3}], 0 offen sc1")
    a("L_no_nonce:")
    vm.issue("noncest", True)

vNON = 116
def nonce_issue():
    a(f"v_mov_b32 v{vNON+2}, 0")
    a(f"buffer_load_dwordx2 v[{vNON}:{vNON+1}], v{vNON+2}, s[{srdDBG}:{srdDBG+3}], 0 offen sc1")
    vm.issue("nonce")

def nonce_finish(label):
    a(f"s_mov_b32 s{sSPIN}, {SPIN_MAX}")
    a(f"{label}:")
    a(f"v_readfirstlane_b32 s{sNON}, v{vNON}")
    a(f"v_readfirstlane_b32 s{sNON+1}, v{vNON+1}")
    a("s_nop 3")
    a(f"s_sub_u32 s{sSPIN}, s{sSPIN}, 1")
    a(f"s_cselect_b32 s{sT0}, 1, s{sNON+1}")
    a(f"s_cmp_lg_u32 s{sT0}, 0")
    a(f"s_cbranch_scc1 {label}_ok")
    a(f"buffer_load_dwordx2 v[{vNON}:{vNON+1}], v{vNON+2}, s[{srdDBG}:{srdDBG+3}], 0 offen sc1")
    a("s_waitcnt vmcnt(0)")
    a(f"s_branch {label}")
    a(f"{label}_ok:")

def store_flag(label, off_sreg):
    a(f"s_cmp_lg_u32 s{sWV}, 0")
    a(f"s_cbranch_scc1 {label}")
    a(f"v_mov_b32 v16, s{sNON}")
    a(f"v_mov_b32 v17, s{sNON+1}")
    a("v_mov_b32 v18, 0")
    a(f"s_mov_b64 s[{sEXEC}:{sEXEC+1}], exec")
    a("s_mov_b64 exec, 1")
    a(f"buffer_store_dwordx2 v[16:17], v18, s[{srdWS}:{srdWS+3}], s{off_sreg} offen sc1")
    a(f"s_mov_b64 exec, s[{sEXEC}:{sEXEC+1}]")
    a("s_nop 1")
    a(f"{label}:")
    vm.issue("flag", True)

vPOLL = 120
def poll_issue(off_sreg):
    a(f"buffer_load_dwordx2 v[{vPOLL}:{vPOLL+1}], v{vPOLL+2}, s[{srdWS}:{srdWS+3}], s{off_sreg} offen sc1")
    vm.issue("poll")
def poll_check(label, off_sreg, deep=0):
    vm.wait("poll")
    def check(r, ok):
        a(f"v_cmp_ne_u32 vcc, s{sNON}, v{r}")
        a(f"v_cmp_ne_u32 s[{sT0}:{sT0+1}], s{sNON+1}, v{r+1}")
        a("s_nop 3")
        a(f"s_or_b64 vcc, vcc, s[{sT0}:{sT0+1}]")
        a(f"s_cbranch_vccz {ok}")
    def load(r):
        a(f"buffer_load_dwordx2 v[{r}:{r+1}], v{vPOLL+2}, s[{srdWS}:{srdWS+3}], s{off_sreg} offen sc1")
    a(f"s_mov_b32 s{sSPIN}, {SPIN_MAX}")
    if not deep:
        a(f"{label}:")
        check(vPOLL, f"{label}_ok")
        if args.sleep: a(f"s_sleep {args.sleep}")
        load(vPOLL)
        a("s_waitcnt vmcnt(0)")
        a(f"s_sub_u32 s{sSPIN}, s{sSPIN}, 1")
        a(f"s_cbranch_scc0 {label}")
        a(f"{label}_ok:")
        return
    R = (vPOLL, 116, 118)
    check(vPOLL, f"{label}_ok")
    for r in R:
        load(r)
        a(f"s_sleep {deep}")
    a(f"{label}:")
    for r in R:
        a("s_waitcnt vmcnt(2)")
        check(r, f"{label}_ok")
        load(r)
        a(f"s_sleep {deep}")
    a(f"s_sub_u32 s{sSPIN}, s{sSPIN}, 1")
    a(f"s_cbranch_scc0 {label}")
    a(f"{label}_ok:")

def a_load(slot, mi, ks, fixed=False):
    r = abuf(slot, mi)
    off = sAOFF
    if fixed:
        off = sOFF
        if mi == 0: a(f"s_add_u32 s{sOFF}, s{sABASE}, {ks*5120}")
    if mi < 4:
        a(f"buffer_load_dwordx4 v[{r}:{r+3}], v{vA}, s[{srdWS}:{srdWS+3}], s{off} offen offset:{mi*1024}{fl(args.asc)}")
    else:
        a(f"buffer_load_dwordx4 v[{r}:{r+3}], v{vA2}, s[{srdWS}:{srdWS+3}], s{off} offen{fl(args.asc)}")
        if not fixed:
            a(f"s_add_u32 s{sAOFF}, s{sAOFF}, {args.astride}")
            a(f"s_cmp_eq_u32 s{sAOFF}, s{sAEND}")
            a(f"s_cselect_b32 s{sAOFF}, s{sABASE}, s{sAOFF}")
    vm.issue(("A", ks), fixed)

def mfma(first, ks, slot, c, mi, gemm):
    if args.nomfma and not first: return
    d = acc(c, mi); wr = 16*ks + 4*c; ar = abuf(slot, mi)
    cin = "0" if first else f"v[{d}:{d+3}]"
    if first and c == 0 and args.biasc: cin = "v[160:163]"
    if gemm == 1: a(f"v_mfma_f32_16x16x32_bf16 v[{d}:{d+3}], a[{wr}:{wr+3}], v[{ar}:{ar+3}], {cin}")
    else:         a(f"v_mfma_f32_16x16x32_bf16 v[{d}:{d+3}], v[{ar}:{ar+3}], a[{wr}:{wr+3}], {cin}")

def main_prefill(gemm, nks, optional_last):
    for ks in range(min(NA, nks)):
        for mi in range(5): a_load(ks % NA, mi, ks, optional_last and ks == nks - 1)

def red_write(c, mi):
    blk = (c-1)*5 + mi
    r = acc(c, mi)
    if blk < 12: a(f"ds_write_b128 v{vRW+c-1}, v[{r}:{r+3}] offset:{blk*1024}")
    else:        a(f"ds_write_b128 v{vRW+3}, v[{r}:{r+3}] offset:{(blk-12)*1024}")

def main_loop(gemm, nks, optional_last, W, tail=None, hook=None):
    depth = min(NA, nks)
    nreal = nks - 1 if optional_last else nks
    nplain = nreal - args.nlast
    def loads(ks):
        for mi in range(5): a_load(ks % NA, mi, ks, optional_last and ks == nks - 1)
    while W.nt < 2: W.tr()
    pending_tr = True
    last_plain = nks if not args.nlast else nplain
    for ks in range(last_plain):
        opt = optional_last and ks == nks - 1
        def body():
            nonlocal pending_tr
            vm.wait(("A", ks))
            if pending_tr: a("s_waitcnt lgkmcnt(0)"); pending_tr = False
            if args.mstamps and ks in (0, 4, 8, 12): stamp(f"g{gemm} step {ks} data")
            settled = W.nt
            pieces = []
            if W.nd < W.nks and W.nd - W.nslot < settled and not W.is_opt(W.nd):
                pos = W.nd; W.nd += 1
                pieces = [lambda q=q, pos=pos: W.piece(pos, q, False) for q in range(4)]
            nxt = ks + depth
            for mi in range(5):
                if args.align == 2 or (args.align == 1 and mi == 0): a(".p2align 3")
                for c in range(4):
                    mfma(ks == 0, ks, ks % NA, c, mi, gemm)
                    if nxt < nreal: bg.tick()
                    if c == 1 and pieces: pieces.pop(0)()
                if mi == 0 and W.nt <= ks + 1 and W.nt < W.nks and not W.is_opt(W.nt):
                    W.tr(); pending_tr = True
                if nxt < nreal: a_load(nxt % NA, mi, nxt)
                elif tail is not None: tail()
            if hook is not None: hook(ks)
        if opt: guarded(f"L_g{gemm}_mm", body)
        else: body()
        nxt = ks + depth
        if optional_last and nxt == nks - 1:
            guarded(f"L_g{gemm}_ld", lambda: loads(nxt))
        if W.nd < W.nks and W.is_opt(W.nd) and W.nd - W.nslot < W.nt - 1:
            a("s_waitcnt lgkmcnt(0)"); W.dma()
        if W.nt < W.nks and W.is_opt(W.nt) and W.nt <= ks + 1 and W.nd > W.nt:
            W.tr(); pending_tr = True
        if nxt == nreal - 1: bg.flush()
    if args.nlast:
        assert W.nd == W.nks
        while W.nt < W.nks: W.tr()
        steps = list(range(nplain, nreal))
        assert steps[0] + depth >= nreal
        assert not optional_last or steps[0] + depth > nks - 1
        vm.wait(("A", nreal - 1))
        if optional_last: guarded(f"L_g{gemm}_ow", lambda: a("s_waitcnt vmcnt(0)") if tail is None else None)
        a("s_waitcnt lgkmcnt(0)")
        a("s_barrier")
        order = (1, 2, 3, 0)
        n = 0
        for gi, c in enumerate(order):
            if optional_last:
                ko = nks - 1
                guarded(f"L_g{gemm}_o{c}", lambda: [mfma(False, ko, ko % NA, c, mi, gemm) for mi in range(5)])
            k = 0
            for ks in steps:
                for mi in range(5):
                    mfma(False, ks, ks % NA, c, mi, gemm)
                    k += 1; n += 1
                    if gi > 0 and 4 <= k <= 8: red_write(order[gi-1], k - 4)
                    if tail is not None and n % 4 == 0: tail()
    assert W.nd == W.nks and W.nt == W.nks

RT = 16
PK = 80
def epilogue_addresses():
    for c in range(1, 4):
        a(f"s_add_u32 s{sT0}, s{sWV}, {c}")
        a(f"s_and_b32 s{sT0}, s{sT0}, 3")
        a(f"s_mul_i32 s{sT1}, s{sT0}, {RING}")
        a(f"s_add_u32 s{sT1}, s{sT1}, {6*4096}")
        a(f"v_add_u32 v{vRW+c-1}, s{sT1}, v{vA}")
        if c == 3:
            a(f"s_mul_i32 s{sT1}, s{sT0}, 3072")
            a(f"s_add_u32 s{sT1}, s{sT1}, {T_OFF}")
            a(f"v_add_u32 v{vRW+3}, s{sT1}, v{vA}")
    a(f"s_add_u32 s{sT1}, s{sRING}, {6*4096}")
    a(f"v_add_u32 v{vRR}, s{sT1}, v{vA}")
    a(f"s_mul_i32 s{sT1}, s{sWV}, 3072")
    a(f"s_add_u32 s{sT1}, s{sT1}, {T_OFF}")
    a(f"v_add_u32 v{vRR+1}, s{sT1}, v{vA}")
    a(f"v_lshrrev_b32 v12, 4, v{vLANE}")
    a("v_and_b32 v13, 1, v12")
    a(f"v_lshlrev_b32 v{vGO}, 10, v13")
    a(f"v_lshlrev_b32 v{vOO}, 5, v13")
    a("v_lshrrev_b32 v12, 1, v12")
    a(f"v_lshl_add_u32 v{vGL}, v12, 8, 0")
    a(f"v_lshlrev_b32 v{vOL}, 4, v12")
    a(f"v_and_b32 v12, 15, v{vLANE}")
    a(f"v_lshl_add_u32 v{vGL}, v12, 4, v{vGL}")
    a(f"v_add_u32 v{vGO}, v{vGO}, v{vGL}")
    a("v_mul_u32_u24 v12, 1280, v12")
    a(f"v_add_u32 v{vOL}, v{vOL}, v12")
    a(f"v_add_u32 v{vOO}, v{vOO}, v{vOL}")
    a(f"s_mul_i32 s{sT0}, s{sDT1}, 54")
    a(f"s_lshl_b32 s{sT1}, s{sFT}, 1")
    a(f"s_add_u32 s{sT0}, s{sT0}, s{sT1}")
    a(f"s_lshr_b32 s{sT1}, s{sWV}, 1")
    a(f"s_add_u32 s{sT0}, s{sT0}, s{sT1}")
    a(f"s_mul_i32 s{sT0}, s{sT0}, 5120")
    a(f"s_and_b32 s{sT1}, s{sWV}, 1")
    a(f"s_lshl_b32 s{sT1}, s{sT1}, 9")
    a(f"s_add_u32 s{sT0}, s{sT0}, s{sT1}")
    a(f"s_add_u32 s{sGST}, s{sT0}, {G_OFF}")
    a(f"s_lshl_b32 s{sT0}, s{sST}, 2")
    a(f"s_add_u32 s{sT0}, s{sT0}, s{sWV}")
    a(f"s_mul_i32 s{sT0}, s{sT0}, {16*1280}")
    a(f"s_mul_i32 s{sT1}, s{sDT}, 160")
    a(f"s_add_u32 s{sOST}, s{sT0}, s{sT1}")
    c1 = -2.0 * 0.7978845608028654 * 1.4426950408889634
    a(f"v_mov_b32 v{vC}, {f32hex(c1)}"); a(f"v_mov_b32 v{vC+1}, {f32hex(c1)}")
    a(f"v_mov_b32 v{vC+2}, {f32hex(c1*0.044715)}"); a(f"v_mov_b32 v{vC+3}, {f32hex(c1*0.044715)}")
    a(f"v_mov_b32 v{vC+4}, 1.0"); a(f"v_mov_b32 v{vC+5}, 1.0")
    dma_offsets(vD2, W2_ROW)
    set_w2_base()
    a(f"s_lshl_b32 s{sT0}, s{sST}, 7")
    a(f"s_lshl_b32 s{sT1}, s{sWV}, 5")
    a(f"s_add_u32 s{sT0}, s{sT0}, s{sT1}")
    a(f"v_and_b32 v12, 15, v{vLANE}")
    a("v_lshlrev_b32 v12, 1, v12")
    a(f"buffer_load_ushort v{vB2}, v12, s[{srdB2}:{srdB2+3}], s{sT0} offen")
    vm.issue("b2")

def reduce_write(before_wait=None, after_barrier=None):
    if not args.nlast:
        a("s_nop 6")
        a("s_barrier")
        if args.estamps: stamp("red: barrier 1")
        for c in range(1, 4):
            for mi in range(5):
                red_write(c, mi)
                bg.tick(3)
    if before_wait is not None: before_wait()
    a("s_waitcnt lgkmcnt(0)")
    if args.estamps: stamp("red: writes done")
    a("s_barrier")
    if args.estamps: stamp("red: barrier 2")
    if after_barrier is not None: after_barrier()
    for mi in range(5):
        for c in range(1, 4):
            blk = (c-1)*5 + mi
            r = RT + 4*blk
            if blk < 12: a(f"ds_read_b128 v[{r}:{r+3}], v{vRR} offset:{blk*1024}")
            else:        a(f"ds_read_b128 v[{r}:{r+3}], v{vRR+1} offset:{(blk-12)*1024}")
        bg.tick(6)

def reduce_sum(mi, counted=True):
    if counted: a(f"s_waitcnt lgkmcnt({12 - 3*mi})")
    for c in range(1, 4):
        for h in range(2):
            d = acc(0, mi) + 2*h; s = RT + 4*((c-1)*5 + mi) + 2*h
            fg(f"v_pk_add_f32 {P(d)}, {P(d)}, {P(s)}")

def pack_swap():
    for mi in range(5):
        d = acc(0, mi); r = PK + 2*mi
        a(f"v_cvt_pk_bf16_f32 v{r}, v{d}, v{d+1}")
        a(f"v_cvt_pk_bf16_f32 v{r+1}, v{d+2}, v{d+3}")
    a(f"v_mov_b32 v{PK+10}, v{PK+8}")
    a(f"v_mov_b32 v{PK+11}, v{PK+9}")
    a("s_nop 1")
    for p in range(3):
        b = PK + 4*p
        a(f"v_permlane16_swap_b32 v{b}, v{b+2}")
        a(f"v_permlane16_swap_b32 v{b+1}, v{b+3}")

def epilogue1(after_reduce, before_wait=None, after_barrier=None):
    reduce_write(before_wait, after_barrier)
    if not args.biasc:
        a(f"v_lshlrev_b32 v96, 16, v{vB1}");   a(f"v_and_b32 v97, 0xffff0000, v{vB1}")
        a(f"v_lshlrev_b32 v98, 16, v{vB1+1}"); a(f"v_and_b32 v99, 0xffff0000, v{vB1+1}")
    T = 100
    for mi in range(5):
        d = acc(0, mi)
        reduce_sum(mi)
        if args.estamps and mi in (0, 4): stamp(f"red: sum {mi}")
        if mi == 4: after_reduce()
        if not args.biasc:
            for h in range(2):
                fg(f"v_pk_add_f32 {P(d+2*h)}, {P(d+2*h)}, {P(96+2*h)}")
        t = T + 4*(mi % 2)
        for h in range(2):
            u = d + 2*h
            fg(f"v_pk_mul_f32 {P(t+2*h)}, {P(u)}, {P(u)}")
        for h in range(2):
            fg(f"v_pk_fma_f32 {P(t+2*h)}, {P(t+2*h)}, {P(vC+2)}, {P(vC)}")
        for h in range(2):
            u = d + 2*h
            fg(f"v_pk_mul_f32 {P(t+2*h)}, {P(t+2*h)}, {P(u)}")
        for k in range(4): a(f"v_exp_f32 v{t+k}, v{t+k}")
        bg.tick(8)
        for h in range(2): a(f"v_pk_add_f32 {P(t+2*h)}, {P(t+2*h)}, {P(vC+4)}")
        for k in range(4): a(f"v_rcp_f32 v{t+k}, v{t+k}")
        a("s_nop 0")
        bg.tick(10)
        for h in range(2): fg(f"v_pk_mul_f32 {P(d+2*h)}, {P(d+2*h)}, {P(t+2*h)}")
        r = PK + 2*mi
        a(f"v_cvt_pk_bf16_f32 v{r}, v{d}, v{d+1}")
        a(f"v_cvt_pk_bf16_f32 v{r+1}, v{d+2}, v{d+3}")
        if mi in (1, 3):
            p = mi // 2; b = PK + 4*p
            a("s_nop 1")
            a(f"v_permlane16_swap_b32 v{b}, v{b+2}")
            a(f"v_permlane16_swap_b32 v{b+1}, v{b+3}")
            if not args.bglate:
                a(f"buffer_store_dwordx4 v[{b}:{b+3}], v{vGO}, s[{srdWS}:{srdWS+3}], s{sGST} offen offset:{2048*p}{SC}")
                vm.issue("gst")
    bg.flush()
    a(f"v_mov_b32 v{PK+10}, v{PK+8}")
    a(f"v_mov_b32 v{PK+11}, v{PK+9}")
    a(f"s_add_u32 s{sT1}, s{sGST}, 4096")
    a("s_nop 0")
    a(f"v_permlane16_swap_b32 v{PK+8}, v{PK+10}")
    a(f"v_permlane16_swap_b32 v{PK+9}, v{PK+11}")
    if args.bglate:
        for p in range(2):
            b = PK + 4*p
            a(f"buffer_store_dwordx4 v[{b}:{b+3}], v{vGO}, s[{srdWS}:{srdWS+3}], s{sGST} offen offset:{2048*p}{SC}")
            vm.issue("gst")
    a(f"buffer_store_dwordx4 v[{PK+8}:{PK+11}], v{vGL}, s[{srdWS}:{srdWS+3}], s{sT1} offen{SC}")
    vm.issue("gst")

def epilogue2():
    reduce_write()
    if not args.biasc:
        a(f"v_lshlrev_b32 v96, 16, v{vB2}")
        a("v_mov_b32 v97, v96")
    o = fl(args.ofl)
    for mi in range(5):
        d = acc(0, mi)
        reduce_sum(mi)
        if not args.biasc:
            for h in range(2):
                a(f"v_pk_add_f32 {P(d+2*h)}, {P(d+2*h)}, {P(96)}")
        r = PK + 2*mi
        a(f"v_cvt_pk_bf16_f32 v{r}, v{d}, v{d+1}")
        a(f"v_cvt_pk_bf16_f32 v{r+1}, v{d+2}, v{d+3}")
        if mi in (1, 3):
            p = mi // 2; b = PK + 4*p
            a("s_nop 1")
            a(f"v_permlane16_swap_b32 v{b}, v{b+2}")
            a(f"v_permlane16_swap_b32 v{b+1}, v{b+3}")
            a(f"buffer_store_dwordx4 v[{b}:{b+3}], v{vOO}, s[{srdOUT}:{srdOUT+3}], s{sOST} offen offset:{64*p}{o}")
    a(f"v_mov_b32 v{PK+10}, v{PK+8}")
    a(f"v_mov_b32 v{PK+11}, v{PK+9}")
    a("s_nop 1")
    a(f"v_permlane16_swap_b32 v{PK+8}, v{PK+10}")
    a(f"v_permlane16_swap_b32 v{PK+9}, v{PK+11}")
    a(f"buffer_store_dwordx4 v[{PK+8}:{PK+11}], v{vOL}, s[{srdOUT}:{srdOUT+3}], s{sOST} offen offset:128{o}")

pair = lambda s: tuple(int(x) for x in s.split(":"))
file_begin(a, [(MAIN, 256, 256, LDS_BYTES)])
prologue(MAIN, "L_end")
stamp("kernarg")
set_w1_base()
W1 = Stager(srdW1, vD, sWOFF, sWBASE, sWEND, W1_KS, 16, False, fl(args.w1fl), "w1")
W1.start()
publish_nonce()
if args.pf1:
    set_rot(16, args.pf1rot, sDT1)
    a(f"s_mul_i32 s{sT2}, s{sROT}, {W1_KS}")
    a(f"s_add_u32 s{sW2E}, s{sT2}, s{sWBASE}")
    def pf_piece(i, q):
        a(f"buffer_load_dwordx4 v[{128+4*((4*i+q)%8)}:{131+4*((4*i+q)%8)}], v{vD+q}, s[{srdW1}:{srdW1+3}], s{sW2E} offen{fl(args.w1fl)}")
        vm.issue("pf1")
        if q == 3:
            a(f"s_add_u32 s{sW2E}, s{sW2E}, {W1_KS}")
            a(f"s_cmp_eq_u32 s{sW2E}, s{sWEND}")
            a(f"s_cselect_b32 s{sW2E}, s{sWBASE}, s{sW2E}")
    for i in range(args.pf1):
        for q in range(4): bg.add(lambda i=i, q=q: pf_piece(i, q))
if args.npre: W1.dma_bg(args.npre)
bg.every = 6
ln_addresses()
tr_addresses()
bg.flush()
vm.wait("x")
stamp("x landed")
if args.earlytag: nonce_issue()
if args.nln: W1.dma_bg(args.nln)
bg.every = args.lnevery; bg.cnt = 0
ln_compute()
bg.flush()
ln_store()
if not args.earlytag: nonce_issue()
stamp("h stores issued")
W1.fill(W1.nd + args.npost)
a(f"s_lshl_b32 s{sT0}, s{sFT}, 7")
a(f"s_lshl_b32 s{sT1}, s{sWV}, 5")
a(f"s_add_u32 s{sT0}, s{sT0}, s{sT1}")
a(f"v_lshrrev_b32 v12, 4, v{vLANE}")
a("v_lshlrev_b32 v12, 3, v12")
a(f"buffer_load_dwordx2 v[{vB1}:{vB1+1}], v12, s[{srdB1}:{srdB1+3}], s{sT0} offen")
vm.issue("b1")
vm.wait("hst" if args.earlytag else "nonce")
nonce_finish("L_nonce")
a("s_barrier")
a(f"s_lshl_b32 s{sT2}, s{sB}, {args.flsh}")
a(f"s_add_u32 s{sT2}, s{sT2}, {FL_LN}")
store_flag("L_flag_ln", sT2)
stamp("LN flag stored")
a(f"s_cmp_eq_u32 s{sROLE}, 0")
a("s_cbranch_scc1 L_idle")
i_branch = nstamp[0]
set_h_base()
a(f"s_lshl_b32 s{sT2}, s{sWV}, {args.flsh + 6}")
a(f"s_add_u32 s{sGST}, s{sT2}, {FL_LN}")
a(f"v_lshlrev_b32 v{vPOLL+2}, {args.flsh}, v{vLANE}")
W1.advance_to(*pair(args.pre1))
poll_issue(sGST)
W1.advance_to(*pair(args.pre1b))
stamp("poll check")
poll_check("L_poll_ln", sGST, args.deep1)
stamp("LN flags seen")
main_prefill(1, 16, False)
vSPF, sSPF = 118, 57
if args.spf:
    per = 128 // args.spf
    a(f"v_lshrrev_b32 v12, 3, v{vLANE}")
    a(f"v_lshlrev_b32 v12, 12, v12")
    a(f"v_and_b32 v13, 7, v{vLANE}")
    a(f"v_lshl_add_u32 v{vSPF}, v13, 7, v12")
    if per < 64:
        a(f"v_mov_b32 v12, 0x10000000")
        a(f"v_cmp_gt_u32 vcc, {per}, v{vLANE}")
        a("s_nop 1")
        a(f"v_cndmask_b32 v{vSPF}, v12, v{vSPF}, vcc")
    a(f"s_lshr_b32 s{sT0}, s{sB}, 3")
    a(f"s_lshl_b32 s{sT0}, s{sT0}, 2")
    a(f"s_add_u32 s{sT0}, s{sT0}, s{sWV}")
    a(f"s_lshl_b32 s{sT0}, s{sT0}, 16")
    a(f"s_bfe_u32 s{sT1}, s{sB}, 0x20001")
    a(f"s_lshl_b32 s{sT1}, s{sT1}, 10")
    a(f"s_add_u32 s{sSPF}, s{sT0}, s{sT1}")
spf_left = [args.spf]
def spf_hook(ks):
    if spf_left[0] and ks >= args.spf0 and (ks - args.spf0) % args.spfd == 0:
        a(f"buffer_load_dword v119, v{vSPF}, s[{srdW2}:{srdW2+3}], s{sSPF} offen")
        vm.issue("spf")
        a(f"s_add_u32 s{sSPF}, s{sSPF}, {(128 // args.spf // 8) * 4096}")
        spf_left[0] -= 1
if args.biasc:
    a(f"v_lshlrev_b32 v160, 16, v{vB1}");   a(f"v_and_b32 v161, 0xffff0000, v{vB1}")
    a(f"v_lshlrev_b32 v162, 16, v{vB1+1}"); a(f"v_and_b32 v163, 0xffff0000, v{vB1+1}")
W2 = Stager(srdW2, vD2, sW2R, sW2B, sW2E, W2_KS, 14, True, fl(args.w2fl), "w2", args.ns2)
queue_lines(epilogue_addresses)
bg.every = args.addrevery; bg.cnt = 0
tailq = []
def tail():
    assert W1.nd == W1.nks
    if not W2.started: W2.start()
    if tailq: tailq.pop(0)()
ntail = 5 if args.tailpieces else 0
for pos in range(ntail):
    for q in range(4): tailq.append(lambda pos=pos, q=q: W2.piece(pos, q, False))
W2.nd = ntail
main_loop(1, 16, False, W1, tail if ntail else None, spf_hook)
assert not tailq
if not W2.started: W2.start()
stamp("main1 done")
W2.dma_bg(args.n2pre - W2.nd)
bg.every = args.epevery; bg.cnt = 0
def after_reduce():
    if not args.epseq:
        W2.dma_bg(args.ep3)
        W2.tr_bg(args.eptr)
        return
    for ch in args.epseq:
        if ch == "T": W2.tr_bg(1)
        else:
            if W2.nd >= NSLOT:
                assert W2.nd - NSLOT < W2.nt
                bg.add(lambda: a("s_waitcnt lgkmcnt(0)"))
            W2.dma_bg(1)
def ep_before_wait():
    bg.flush()
    for _ in range(args.etr): W2.tr()
def ep_after_barrier():
    W2.dma_bg(args.ep)
epilogue1(after_reduce, ep_before_wait, ep_after_barrier)
stamp("G stores issued")
a("s_waitcnt lgkmcnt(0)")
def g_poll_setup():
    set_g_base()
    a(f"s_mul_i32 s{sT2}, s{sWV}, 7")
    a(f"s_cmp_eq_u32 s{sWV}, 3")
    a(f"s_cselect_b32 s{sT3}, 1, 0")
    a(f"s_sub_u32 s{sT2}, s{sT2}, s{sT3}")
    a(f"s_lshl_b32 s{sT3}, s{sDT}, 5")
    a(f"s_add_u32 s{sT2}, s{sT2}, s{sT3}")
    a(f"s_lshl_b32 s{sT2}, s{sT2}, {args.gflsh}")
    a(f"s_add_u32 s{sGST}, s{sT2}, {FL_G}")
    a(f"v_min_u32 v{vPOLL+2}, 6, v{vLANE}")
    a(f"v_lshlrev_b32 v{vPOLL+2}, {args.gflsh}, v{vPOLL+2}")
g_poll_setup()
if args.pre2:
    W2.advance_to(*pair(args.pre2))
else:
    assert W2.nd + args.n2fill - NSLOT <= W2.nt
    W2.fill(W2.nd + args.n2fill)
    for _ in range(args.k2pre): W2.tr()
vm.wait("gst")
a("s_barrier")
a(f"s_lshl_b32 s{sT2}, s{sDT1}, 5")
a(f"s_add_u32 s{sT2}, s{sT2}, s{sFT}")
a(f"s_lshl_b32 s{sT2}, s{sT2}, {args.gflsh}")
a(f"s_add_u32 s{sT2}, s{sT2}, {FL_G}")
store_flag("L_flag_g", sT2)
stamp("G flag stored")
j_nd, j_nt = pair(args.join2)
poll_issue(sGST)
W2.advance_to(j_nd, j_nt)
stamp("w2 staged")
vm_join = list(vm.ops)
i_join = nstamp[0]
a("s_branch L_gemm2")
a("L_idle:")
nstamp[0] = i_branch
a("s_waitcnt vmcnt(0)")
vm.drained()
epilogue_addresses()
if args.pfmode in ("mall", "split"):
    a(f"s_lshl_b32 s{sT2}, s{sWV}, {args.flsh + 6}")
    a(f"s_add_u32 s{sGST}, s{sT2}, {FL_LN}")
    a(f"v_lshlrev_b32 v{vPOLL+2}, {args.flsh}, v{vLANE}")
    if args.pfwait:
        poll_issue(sGST)
        poll_check("L_poll_idle", sGST)
    a(f"s_and_b32 s{sT0}, s{sB}, 7")
    a(f"s_and_b32 s{sT1}, s{sB}, 1")
    a(f"s_add_u32 s{sT1}, s{sT1}, 8")
    a(f"s_lshr_b32 s{sT2}, s{sB}, 5")
    a(f"s_cmp_eq_u32 s{sT2}, 7")
    a(f"s_cselect_b32 s{sT0}, s{sT0}, s{sT1}")
    a(f"s_lshl_b32 s{sT0}, s{sT0}, 2")
    a(f"s_bfe_u32 s{sT1}, s{sB}, 0x20003")
    a(f"s_add_u32 s{sT0}, s{sT0}, s{sT1}")
    a(f"s_lshl_b32 s{sT0}, s{sT0}, 2")
    a(f"s_add_u32 s{sIDX}, s{sT0}, s{sWV}")
    def pf_loop(label, n):
        a(f"s_mov_b32 s{sT1}, {n}")
        a(f"{label}:")
        a(f"buffer_load_dwordx4 v[20:23], v{vA}, s[{srdW2}:{srdW2+3}], s{sT0} offen")
        a(f"s_add_u32 s{sT0}, s{sT0}, 1024")
        a(f"s_sub_u32 s{sT1}, s{sT1}, 1")
        a(f"s_cmp_lg_u32 s{sT1}, 0")
        a(f"s_cbranch_scc1 {label}")
    if args.pfmode == "mall":
        a(f"s_mul_i32 s{sT0}, s{sIDX}, {44*1024}")
        pf_loop("L_pf_loop", 44)
        a("s_waitcnt vmcnt(0)")
    else:
        a(f"s_and_b32 s{sT2}, s{sIDX}, 3")
        a(f"s_mul_i32 s{sT0}, s{sT2}, 14")
        a(f"s_cmp_eq_u32 s{sT2}, 3")
        a(f"s_cselect_b32 s{sT3}, 1, 0")
        a(f"s_sub_u32 s{sT0}, s{sT0}, s{sT3}")
        a(f"s_lshl_b32 s{sT0}, s{sT0}, 5")
        a(f"s_lshr_b32 s{sT2}, s{sIDX}, 2")
        a(f"s_lshl_b32 s{sT2}, s{sT2}, 2")
        a(f"s_add_u32 s{sT0}, s{sT0}, s{sT2}")
        a(f"s_lshl_b32 s{sT0}, s{sT0}, 12")
        pf_loop("L_pf_loop", 16)
vm.drained()
stamp("idle: prefetch done")
W2i = Stager(srdW2, vD2, sW2R, sW2B, sW2E, W2_KS, 14, True, fl(args.w2fl), "w2i", args.ns2)
W2i.start()
if args.pfmode == "xcd2":
    a(f"s_lshr_b32 s{sT0}, s{sB}, 5")
    a(f"s_cmp_lg_u32 s{sT0}, 7")
    a("s_cbranch_scc1 L_pfx_done")
    a(f"s_bfe_u32 s{sT2}, s{sB}, 0x20003")
    a(f"s_mul_i32 s{sT0}, s{sT2}, 14")
    a(f"s_cmp_eq_u32 s{sT2}, 3")
    a(f"s_cselect_b32 s{sT3}, 1, 0")
    a(f"s_sub_u32 s{sT0}, s{sT0}, s{sT3}")
    a(f"s_lshl_b32 s{sT0}, s{sT0}, 5")
    a(f"s_lshl_b32 s{sT1}, s{sWV}, 3")
    a(f"s_add_u32 s{sT0}, s{sT0}, s{sT1}")
    a(f"s_lshl_b32 s{sT0}, s{sT0}, 12")
    a(f"s_bfe_u32 s{sT1}, s{sB}, 0x20001")
    a(f"s_lshl_b32 s{sT1}, s{sT1}, 10")
    a(f"s_add_u32 s{sT0}, s{sT0}, s{sT1}")
    a(f"s_mov_b32 s{sT2}, {args.pfn}")
    if args.pfskip:
        a(f"s_add_u32 s{sT0}, s{sT0}, {args.pfskip0*32*4096}")
    vpf = vA
    if args.pfmask:
        vpf = 24
        a(f"v_lshrrev_b32 v25, 3, v{vLANE}")
        a(f"v_cmp_eq_u32 vcc, {args.stswap}, v25")
        a(f"v_mov_b32 v25, 0x10000000")
        a("s_nop 0")
        a(f"v_cndmask_b32 v24, v{vA}, v25, vcc")
    if args.pfown: W2i.fill(args.pfown)
    a("L_pfx_loop:")
    for r in range(8):
        a(f"buffer_load_dwordx4 v[20:23], v{vpf}, s[{srdW2}:{srdW2+3}], s{sT0} offen")
        a(f"s_add_u32 s{sT0}, s{sT0}, 4096")
    a(f"s_add_u32 s{sT0}, s{sT0}, {24*4096}")
    a(f"s_sub_u32 s{sT2}, s{sT2}, 1")
    a(f"s_cmp_lg_u32 s{sT2}, 0")
    a("s_cbranch_scc1 L_pfx_loop")
    a("L_pfx_done:")
W2i.advance_to(j_nd, j_nt)
if args.pfmode == "split":
    a(f"s_and_b32 s{sT2}, s{sIDX}, 3")
    a(f"s_mul_i32 s{sT0}, s{sT2}, 14")
    a(f"s_cmp_eq_u32 s{sT2}, 3")
    a(f"s_cselect_b32 s{sT3}, 1, 0")
    a(f"s_sub_u32 s{sT0}, s{sT0}, s{sT3}")
    a(f"s_add_u32 s{sT0}, s{sT0}, 5")
    a(f"s_lshl_b32 s{sT0}, s{sT0}, 17")
    a(f"s_lshr_b32 s{sT2}, s{sIDX}, 2")
    a(f"s_mul_i32 s{sT2}, s{sT2}, {29*1024}")
    a(f"s_add_u32 s{sT0}, s{sT0}, s{sT2}")
    pf_loop("L_pf_loop2", 29)
assert (W2i.nd, W2i.nt) == (W2.nd, W2.nt), ((W2i.nd, W2i.nt), (W2.nd, W2.nt))
g_poll_setup()
poll_issue(sGST)
a("s_waitcnt vmcnt(0)")
while nstamp[0] < i_join and args.stamps: stamp("idle")
if args.probe in ("poll_check", "LN_flags_seen", "main1_done", "G_stores_issued", "G_flag_stored", "w2_staged"):
    a("s_mov_b32 s89, s90")
a("L_gemm2:")
vm.ops = vm_join
poll_check("L_poll_g", sGST, args.deep2)
stamp("G flags seen")
bg.every = 0
main_prefill(2, 14, True)
if args.biasc:
    a(f"v_lshlrev_b32 v160, 16, v{vB2}")
    for k in (161, 162, 163): a(f"v_mov_b32 v{k}, v160")
main_loop(2, 14, True, W2)
stamp("main2 done")
epilogue2()
stamp("end")
write_stamps("L_st", STAMP)
if args.light:
    a("s_waitcnt vmcnt(0)")
    a("s_memrealtime s[92:93]")
    a("s_waitcnt lgkmcnt(0)")
    a(f"s_lshl_b32 s{sT0}, s{sB}, 2")
    a(f"s_add_u32 s{sT0}, s{sT0}, s{sWV}")
    a(f"s_lshl_b32 s{sT0}, s{sT0}, 3")
    a(f"s_add_u32 s{sT0}, s{sT0}, {STAMP}")
    a("v_mov_b32 v16, s90"); a("v_mov_b32 v17, s92"); a("v_mov_b32 v12, 0")
    a("s_mov_b64 exec, 1")
    a(f"buffer_store_dwordx2 v[16:17], v12, s[{srdWS}:{srdWS+3}], s{sT0} offen")
if args.probe.startswith("late"):
    lo, hi = int(args.probe[4]), int(args.probe[5])
    a(f"s_sub_u32 s89, s90, s{sNON}")
    a("s_ashr_i32 s88, s89, 31"); a("s_andn2_b32 s89, s89, s88")
    a(f"s_and_b32 s88, s{sB}, 7")
    a(f"s_cmp_ge_u32 s88, {lo}"); a("s_cselect_b32 s89, s89, 0")
    a(f"s_cmp_le_u32 s88, {hi}"); a("s_cselect_b32 s89, s89, 0")
    a("s_add_u32 s89, s89, s90")
if args.probe:
    a("s_waitcnt vmcnt(0)")
    a("s_sub_u32 s89, s89, s90")
    a("s_lshl_b32 s89, s89, 2")
    a("s_add_u32 s89, s89, 3000")
    a("L_probe:")
    a("s_memrealtime s[86:87]")
    a("s_waitcnt lgkmcnt(0)")
    a("s_sub_u32 s86, s86, s90")
    a("s_cmp_lt_u32 s86, s89")
    a("s_cbranch_scc1 L_probe")
if args.padto:
    a("s_waitcnt vmcnt(0)")
    a("L_pad:")
    a("s_memrealtime s[88:89]")
    a("s_waitcnt lgkmcnt(0)")
    a("s_sub_u32 s88, s88, s90")
    a(f"s_cmp_lt_u32 s88, {args.padto}")
    a("s_cbranch_scc1 L_pad")
a("L_end:")
a("s_endpgm")
a("L_code_end:")
kernel_desc(a, MAIN, 512, 102, 256)
print(a.text())
```

```python
import sys, argparse, struct
sys.path.insert(0, "tools")
from asmlib import *

ap = argparse.ArgumentParser()
ap.add_argument("--stamps", type=int, default=0)
ap.add_argument("--mstamps", type=int, default=0)
ap.add_argument("--cyc", type=int, default=0)
ap.add_argument("--light", type=int, default=0)
ap.add_argument("--padto", type=int, default=0)
ap.add_argument("--probe", default="")
ap.add_argument("--exact", type=int, default=1)
ap.add_argument("--na", type=int, default=4)
ap.add_argument("--pfwait", type=int, default=0)
ap.add_argument("--npre", type=int, default=0)
ap.add_argument("--nln", type=int, default=0)
ap.add_argument("--w2pf", type=int, default=1)
ap.add_argument("--lnevery", type=int, default=10)
ap.add_argument("--kpre", type=int, default=3)
ap.add_argument("--n2pre", type=int, default=6)
ap.add_argument("--epevery", type=int, default=12)
ap.add_argument("--pf1", type=int, default=0)
ap.add_argument("--pf1rot", default="qd:8")
ap.add_argument("--npost", type=int, default=2)
ap.add_argument("--pre1", default="11:2")
ap.add_argument("--pre1b", default="12:3")
ap.add_argument("--join2", default="14:5")
ap.add_argument("--pfmode", default="mall")
ap.add_argument("--pollat", type=int, default=13)
ap.add_argument("--pollat2", type=int, default=12)
ap.add_argument("--eptr", type=int, default=3)
ap.add_argument("--tailpieces", type=int, default=1)
ap.add_argument("--ep3", type=int, default=3)
ap.add_argument("--lntr", type=int, default=2)
ap.add_argument("--addrevery", type=int, default=3)
ap.add_argument("--n2fill", type=int, default=2)
ap.add_argument("--k2pre", type=int, default=2)
ap.add_argument("--sleep", type=int, default=1)
ap.add_argument("--rot1", default="qd:8")
ap.add_argument("--rot2", default="none:2")
ap.add_argument("--xfl", default="none")
ap.add_argument("--w1fl", default="none")
ap.add_argument("--w2fl", default="none")
ap.add_argument("--ofl", default="none")
ap.add_argument("--pre2", default="")
ap.add_argument("--bglate", type=int, default=0)
ap.add_argument("--wsame", type=int, default=0)
ap.add_argument("--nomfma", type=int, default=0)
ap.add_argument("--align", type=int, default=0)
ap.add_argument("--shift", type=int, default=0)
ap.add_argument("--deep1", type=int, default=0)
ap.add_argument("--deep2", type=int, default=0)
ap.add_argument("--epseq", default="")
ap.add_argument("--pfn", type=int, default=14)
ap.add_argument("--pfmask", type=int, default=1)
ap.add_argument("--pfown", type=int, default=0)
ap.add_argument("--pfskip", type=int, default=0)
ap.add_argument("--pfskip0", type=int, default=0)
ap.add_argument("--estamps", type=int, default=0)
ap.add_argument("--nlast", type=int, default=0)
ap.add_argument("--biasc", type=int, default=0)
ap.add_argument("--flsh", type=int, default=6)
ap.add_argument("--gflsh", type=int, default=6)
ap.add_argument("--spf", type=int, default=0)
ap.add_argument("--spf0", type=int, default=0)
ap.add_argument("--spfd", type=int, default=2)
ap.add_argument("--earlytag", type=int, default=0)
ap.add_argument("--ns2", type=int, default=6)
ap.add_argument("--etr", type=int, default=3)
ap.add_argument("--ep", type=int, default=3)
ap.add_argument("--wsp", type=int, default=1)
ap.add_argument("--wskew", type=int, default=0)
ap.add_argument("--pfsleep", type=int, default=0)
ap.add_argument("--trspread", type=int, default=0)
ap.add_argument("--trearly", type=int, default=0)
ap.add_argument("--stswap", type=int, default=3)
ap.add_argument("--map1", default="2d")
ap.add_argument("--astride", type=int, default=5120)
ap.add_argument("--asc", default="sc1")
ap.add_argument("--touch", type=int, default=0)
args = ap.parse_args()

def fl(s): return "" if s == "none" else " " + s.replace("+", " ")
def f32hex(x): return "0x%08x" % struct.unpack("<I", struct.pack("<f", x))[0]

S, D, F = 2048, 640, 1728
H_OFF   = 0
G_OFF   = 0x280000
FL_LN   = 0x500000
FL_G    = 0x510000
STAMP   = 0x8000000
W1_ROW, W2_ROW = 3456, 4096
W1_KS, W2_KS = 32 * W1_ROW, 32 * W2_ROW
RING = 36864
NSLOT = 9
T_OFF = 147456
LDS_BYTES = 163840
SPIN_MAX = 200000
SC = " sc1"
OOB = 0x10000000

sB, sWV = 2, 3
sDT, sFT, sST, sROLE = 4, 5, 6, 7
srdX, srdW1, srdW2, srdB1, srdB2, srdOUT, srdDBG, srdWS = 8, 12, 16, 20, 24, 28, 32, 36
sNON = 40
sT0, sT1, sT2, sT3 = 42, 43, 44, 45
sRING, sOFF = 46, 47
sKARG = 48
sSTAMP = 64
sDT1 = 94
sW2B, sW2R = 95, 99
sWOFF, sAOFF, sSPIN = 96, 97, 98
sEXEC = 100
sWBASE, sWEND, sABASE, sAEND, sROT, sW2E, sGST, sOST = 48, 49, 50, 51, 52, 53, 54, 55
sIDX = 56
sKX = 57

vTID, vLANE, vA, vA2 = 0, 1, 2, 3
vD, vT = 4, 8
vB1 = 14
ABUF, NA = 16, args.na
assert NA <= 5
vD2 = 128
vB2 = 132
vGO, vGL = 133, 134
vOO, vOL = 135, 136
vRW = 137
vRR = 141
vC = 144
ACC = 176
def acc(c, mi): return ACC + (c * 5 + mi) * 4
def abuf(slot, mi): return ABUF + slot * 20 + mi * 4
P = lambda r: f"v[{r}:{r+1}]"

a = Asm()

class VM:
    def __init__(self): self.ops = []
    def issue(self, tag, optional=False): self.ops.append((tag, optional))
    def has(self, tag): return any(t == tag for t, o in self.ops)
    def wait(self, tag):
        idx = max(i for i, (t, o) in enumerate(self.ops) if t == tag)
        n = sum(1 for t, o in self.ops[idx+1:] if not o)
        assert n <= 63, (tag, n)
        a(f"s_waitcnt vmcnt({n})")
        self.ops = self.ops[idx+1:]
    def drained(self): self.ops = []
vm = VM()

class BG:
    def __init__(self): self.q = []; self.cnt = 0; self.every = 0
    def add(self, fn): self.q.append(fn)
    def step(self):
        if self.q: self.q.pop(0)()
    def flush(self):
        while self.q: self.step()
    def tick(self, n=1):
        self.cnt += n
        while self.every and self.cnt >= self.every and self.q:
            self.cnt -= self.every; self.step()
bg = BG()
def fg(s):
    a(s); bg.tick()
def queue_lines(fn):
    save = a.lines; a.lines = []
    ops_before = len(vm.ops)
    fn()
    lines = a.lines; a.lines = save
    vmops = vm.ops[ops_before:]; del vm.ops[ops_before:]
    groups = []
    for l in lines:
        op = l.split()[0] if l.split() else ""
        if groups and op in ("s_cselect_b32", "s_addc_u32", "s_cbranch_scc0", "s_cbranch_scc1"): groups[-1].append(l)
        else: groups.append([l])
    def emit(g):
        for l in g:
            a(l)
            if l.startswith("buffer_"): vm.issue(*vmops.pop(0))
    for g in groups: bg.add(lambda g=g: emit(g))

nstamp = [0]
NSTAMPS = 28
stamp_names = {}
def stamp(name):
    if args.light:
        if name == "start": a("s_memrealtime s[90:91]")
        return
    if args.probe:
        if name == "start":
            a("s_memrealtime s[90:91]")
        elif name == args.probe.replace("_", " "):
            a("s_memrealtime s[92:93]"); a("s_waitcnt lgkmcnt(0)"); a("s_mov_b32 s89, s92")
        return
    if not args.stamps: return
    i = nstamp[0]; nstamp[0] += 1
    assert i < NSTAMPS
    stamp_names.setdefault(i, name)
    a(("s_memtime" if args.cyc else "s_memrealtime") + " s[92:93]")
    a("s_waitcnt lgkmcnt(0)")
    a(f"s_mov_b32 s{sSTAMP+i}, s92")

def write_stamps(label, base):
    if not args.stamps: return
    a(f"s_cmp_lg_u32 s{sWV}, {args.stamps - 1}")
    a(f"s_cbranch_scc1 {label}_nostamp")
    a(f"s_mul_i32 s{sT0}, s{sB}, 128")
    a(f"s_add_u32 s{sT0}, s{sT0}, {base}")
    a("v_mov_b32 v12, 0")
    a("s_mov_b64 exec, 1")
    for i in range(0, NSTAMPS, 4):
        for k in range(4):
            if i + k < nstamp[0]: a(f"v_mov_b32 v{16+k}, s{sSTAMP + i + k}")
            else:                 a(f"v_mov_b32 v{16+k}, 0")
        a(f"buffer_store_dwordx4 v[16:19], v12, s[{srdWS}:{srdWS+3}], s{sT0} offen offset:{i*4}")
        a("s_nop 2")
    a(f"{label}_nostamp:")
    for i in sorted(stamp_names): a(f"; STAMPNAME {i} {stamp_names[i]}")

def mk_srd(d, p, nbytes):
    a(f"s_mov_b32 s{d}, s{p}")
    a(f"s_and_b32 s{d+1}, s{p+1}, 0xffff")
    a(f"s_mov_b32 s{d+2}, {nbytes}")
    a(f"s_mov_b32 s{d+3}, 0x00020000")

def prologue(name, endlabel):
    kernel_begin(a, name)
    stamp("start")
    for _ in range(args.shift): a("s_nop 0")
    if args.padto: a("s_memrealtime s[90:91]")
    a(f"s_cmp_ge_u32 s{sB}, 256")
    a(f"s_cbranch_scc1 {endlabel}")
    a(f"s_load_dwordx16 s[{sKARG}:{sKARG+15}], s[0:1], 0")
    a(f"v_and_b32 v{vLANE}, 63, v{vTID}")
    a(f"v_lshrrev_b32 v12, 6, v{vTID}")
    a(f"v_lshlrev_b32 v{vA}, 4, v{vLANE}")
    a(f"v_readfirstlane_b32 s{sWV}, v12")
    a(f"v_add_u32 v{vA2}, 0x1000, v{vA}")
    a(f"s_getpc_b64 s[{sT0}:{sT0+1}]")
    a("L_pf_base:")
    a("s_nop 2")
    a(f"s_lshr_b32 s{sT2}, s{sB}, 3")
    a(f"s_and_b32 s{sT2}, s{sT2}, 7")
    a(f"s_lshl_b32 s{sT2}, s{sT2}, 2")
    a(f"s_add_u32 s{sT2}, s{sT2}, s{sWV}")
    a(f"s_min_u32 s{sT2}, s{sT2}, (L_code_end - L_pf_base) / 1024 - 1")
    a(f"s_lshl_b32 s{sT2}, s{sT2}, 10")
    a(f"s_add_u32 s{sT0}, s{sT0}, s{sT2}")
    a(f"s_addc_u32 s{sT1}, s{sT1}, 0")
    a(f"global_load_dwordx4 v[124:127], v{vA}, s[{sT0}:{sT0+1}]")
    a(f"s_and_b32 s{sT0}, s{sB}, 1")
    a(f"s_lshl_b32 s{sT0}, s{sT0}, 2")
    a(f"s_bfe_u32 s{sT2}, s{sB}, 0x20003")
    a(f"s_add_u32 s{sDT}, s{sT0}, s{sT2}")
    a(f"s_lshr_b32 s{sT1}, s{sB}, 5")
    a(f"s_bfe_u32 s{sT3}, s{sB}, 0x20001")
    a(f"s_lshl_b32 s{sT2}, s{sT3}, 3")
    if args.stswap >= 0:
        a(f"s_cmp_eq_u32 s{sT1}, 7")
        a(f"s_cselect_b32 s{sT0}, {args.stswap}, s{sT1}")
        a(f"s_cmp_eq_u32 s{sT1}, {args.stswap}")
        a(f"s_cselect_b32 s{sT0}, 7, s{sT0}")
        a(f"s_add_u32 s{sST}, s{sT2}, s{sT0}")
    else:
        a(f"s_add_u32 s{sST}, s{sT2}, s{sT1}")
    if args.map1 == "2d":
        a(f"s_mov_b32 s{sDT1}, s{sDT}")
        a(f"s_mul_i32 s{sT2}, s{sT3}, 7")
        a(f"s_add_u32 s{sFT}, s{sT2}, s{sT1}")
        a(f"s_cmp_eq_u32 s{sT3}, 3")
        a(f"s_cselect_b32 s{sT2}, 6, 7")
        a(f"s_cmp_lt_u32 s{sT1}, s{sT2}")
        a(f"s_cselect_b32 s{sROLE}, 1, 0")
    else:
        a(f"s_bfe_u32 s{sDT1}, s{sB}, 0x30003")
        a(f"s_lshr_b32 s{sT0}, s{sB}, 6")
        a(f"s_lshl_b32 s{sT0}, s{sT0}, 3")
        a(f"s_and_b32 s{sT2}, s{sB}, 7")
        a(f"s_add_u32 s{sFT}, s{sT0}, s{sT2}")
        a(f"s_cmp_lt_u32 s{sFT}, 27")
        a(f"s_cselect_b32 s{sROLE}, 1, 0")
    a(f"s_mul_i32 s{sRING}, s{sWV}, {RING}")
    a(f"v_lshrrev_b32 v12, 5, v{vLANE}")
    a(f"v_mul_u32_u24 v12, 1280, v12")
    a(f"v_and_b32 v13, 31, v{vLANE}")
    a(f"v_lshl_add_u32 v14, v13, 4, v12")
    a(f"v_lshl_add_u32 v15, v13, 3, v12")
    dma_offsets(vD, W1_ROW)
    a(f"s_lshl_b32 s{sT0}, s{sB}, 3")
    a(f"s_lshl_b32 s{sT1}, s{sWV}, 1")
    a(f"s_add_u32 s{sT0}, s{sT0}, s{sT1}")
    a(f"s_mul_i32 s{sOFF}, s{sT0}, 1280")
    a("s_waitcnt lgkmcnt(0)")
    mk_srd(srdX, sKARG+0, S*D*2)
    a(f"buffer_load_dwordx4 v[{XR}:{XR+3}], v14, s[{srdX}:{srdX+3}], s{sOFF} offen{fl(args.xfl)}")
    a(f"buffer_load_dwordx4 v[{XR+4}:{XR+7}], v14, s[{srdX}:{srdX+3}], s{sOFF} offen offset:512{fl(args.xfl)}")
    a(f"buffer_load_dwordx2 v[{XR+8}:{XR+9}], v15, s[{srdX}:{srdX+3}], s{sOFF} offen offset:1024{fl(args.xfl)}")
    for _ in range(3): vm.issue("x")
    mk_srd(srdW1,  sKARG+2,  S*F*2)
    mk_srd(srdB1,  sKARG+4,  F*2)
    mk_srd(srdW2,  sKARG+6,  F*S*2)
    mk_srd(srdDBG, sKARG+12, 256)
    mk_srd(srdWS,  sKARG+14, 268435456)
    mk_srd(srdB2,  sKARG+8,  S*2)
    mk_srd(srdOUT, sKARG+10, S*D*2)

def dma_offsets(dst, row):
    a(f"v_lshrrev_b32 v12, 3, v{vLANE}")
    a(f"v_and_b32 v13, 2, v12")
    a(f"v_mul_u32_u24 v12, {row}, v12")
    a(f"v_and_b32 v{dst+2}, 7, v{vLANE}")
    a(f"v_xor_b32 v13, v13, v{dst+2}")
    a(f"v_lshl_add_u32 v{dst}, v13, 4, v12")
    a(f"v_xor_b32 v13, 4, v13")
    a(f"v_lshl_add_u32 v{dst+1}, v13, 4, v12")
    a(f"v_add_u32 v{dst+1}, {8*row}, v{dst+1}")
    a(f"v_add_u32 v{dst+2}, {16*row}, v{dst}")
    a(f"v_add_u32 v{dst+3}, {16*row}, v{dst+1}")

def tr_addresses():
    t0, t1, t2, t3 = 112, 113, 114, 115
    fg(f"v_lshrrev_b32 v{t0}, 4, v{vLANE}")
    fg(f"v_bfe_u32 v{t1}, v{vLANE}, 2, 2")
    fg(f"v_lshl_add_u32 v{t2}, v{t0}, 3, v{t1}")
    fg(f"v_lshlrev_b32 v{t2}, 7, v{t2}")
    fg(f"v_and_b32 v{t3}, 1, v{vLANE}")
    fg(f"v_lshl_add_u32 v{t2}, v{t3}, 3, v{t2}")
    fg(f"v_add_u32 v{t2}, s{sRING}, v{t2}")
    fg(f"v_and_b32 v{t0}, 1, v{t0}")
    fg(f"v_lshlrev_b32 v{t0}, 2, v{t0}")
    fg(f"v_and_b32 v{t1}, 2, v{t1}")
    fg(f"v_or_b32 v{t0}, v{t0}, v{t1}")
    fg(f"v_bfe_u32 v{t1}, v{vLANE}, 1, 1")
    fg(f"v_xor_b32 v{t0}, v{t0}, v{t1}")
    for c in range(4):
        a(f"s_add_u32 s{sT0}, s{sWV}, {c}")
        a(f"s_and_b32 s{sT0}, s{sT0}, 3")
        a(f"s_lshl_b32 s{sT0}, s{sT0}, 1")
        fg(f"v_xor_b32 v{t1}, s{sT0}, v{t0}")
        fg(f"v_lshl_add_u32 v{vT+c}, v{t1}, 4, v{t2}")

def m0_gap():
    if a.lines[-1].startswith("s_add_u32 m0"): a("s_nop 0")

class Stager:
    def __init__(self, srd, dreg, run, base, end, kstride, nks, optional_last, flags, tag, nslot=NSLOT):
        self.nslot = nslot
        self.srd, self.dreg, self.run, self.base, self.end = srd, dreg, run, base, end
        self.kstride, self.nks, self.opt, self.flags, self.tag = kstride, nks, optional_last, flags, tag
        self.nd = 0; self.nt = 0; self.uid = 0; self.started = False
    def lds(self, pos, q): return (pos % self.nslot)*4096 + q*1024
    def start(self):
        a(f"s_add_u32 m0, s{sRING}, {self.lds(0, 0)}")
        a("s_nop 0")
        self.started = True
    def piece(self, pos, q, burst):
        assert self.started
        opt = self.is_opt(pos)
        off = self.run
        if opt:
            off = sOFF
            if q == 0: a(f"s_add_u32 s{sOFF}, s{self.base}, {pos*self.kstride}")
        m0_gap()
        a(f"buffer_load_dwordx4 v{self.dreg+q}, s[{self.srd}:{self.srd+3}], s{off} offen{self.flags} lds")
        vm.issue((self.tag, pos), opt)
        npos, nq = (pos, q+1) if q < 3 else (pos+1, 0)
        last = npos >= self.nks
        if not last: a(f"s_add_u32 m0, s{sRING}, {self.lds(npos, nq)}")
        if q == 3 and not opt:
            a(f"s_add_u32 s{self.run}, s{self.run}, {self.kstride}")
            a(f"s_cmp_eq_u32 s{self.run}, s{self.end}")
            a(f"s_cselect_b32 s{self.run}, s{self.base}, s{self.run}")
        elif burst and not last:
            a("s_nop 0")
    def is_opt(self, pos): return self.opt and pos == self.nks - 1
    def dma(self):
        pos = self.nd; self.nd += 1
        body = lambda: [self.piece(pos, q, True) for q in range(4)]
        if self.is_opt(pos): guarded(f"L_{self.tag}_d{self.uid}", body); self.uid += 1
        else: body()
    def dma_bg(self, n):
        for _ in range(n):
            pos = self.nd; self.nd += 1
            assert not self.is_opt(pos)
            for q in range(4): bg.add(lambda pos=pos, q=q: self.piece(pos, q, False))
    def tr_body(self, pos):
        if vm.has((self.tag, pos)): vm.wait((self.tag, pos))
        for c in range(4):
            for t in range(2):
                r = 16*pos + 4*c + 2*t
                a(f"ds_read_b64_tr_b16 a[{r}:{r+1}], v{vT+c} offset:{(pos % self.nslot)*4096 + t*512}")
    def tr_items(self):
        pos = self.nt; self.nt += 1
        assert not self.is_opt(pos)
        items = []
        for c in range(4):
            for t in range(2):
                def f(c=c, t=t, first=(c == 0 and t == 0)):
                    if first and vm.has((self.tag, pos)): vm.wait((self.tag, pos))
                    r = 16*pos + 4*c + 2*t
                    a(f"ds_read_b64_tr_b16 a[{r}:{r+1}], v{vT+c} offset:{(pos % self.nslot)*4096 + t*512}")
                items.append(f)
        return items
    def tr(self):
        pos = self.nt; self.nt += 1
        if self.is_opt(pos): guarded(f"L_{self.tag}_t{self.uid}", lambda: self.tr_body(pos)); self.uid += 1
        else: self.tr_body(pos)
    def tr_bg(self, n):
        for _ in range(n):
            pos = self.nt; self.nt += 1
            assert not self.is_opt(pos)
            bg.add(lambda pos=pos: self.tr_body(pos))
    def refill(self, settled=False):
        waited = settled
        lim = self.nt if settled else self.nt - 1
        while self.nd < self.nks and self.nd - self.nslot < lim:
            if self.nd >= self.nslot and not waited: a("s_waitcnt lgkmcnt(8)"); waited = True
            self.dma()
    def step(self):
        self.refill()
        if self.nt < self.nks: self.tr()
        self.refill()
    def fill(self, limit=None):
        limit = self.nslot if limit is None else limit
        while self.nd < min(limit, self.nks): self.dma()
    def advance_to(self, nd, nt):
        assert nd - self.nslot <= nt
        while self.nd < nd or self.nt < nt:
            if self.nd < nd and self.nd < self.nslot: self.dma()
            elif self.nd < nd and self.nd - self.nslot < self.nt - 1:
                a("s_waitcnt lgkmcnt(8)"); self.dma()
            elif self.nt < nt: self.tr()
            else:
                a("s_waitcnt lgkmcnt(0)"); self.dma()
    def request_all(self):
        while self.nd < self.nks: self.step()
    def finish(self):
        while self.nt < self.nks or self.nd < self.nks: self.step()
        a("s_waitcnt lgkmcnt(0)")

def guarded(label, fn):
    a(f"s_cmp_ge_u32 s{sWV}, 2")
    a(f"s_cbranch_scc1 {label}")
    fn()
    a(f"{label}:")

def set_rot(n, spec, dreg):
    mode, g = spec.split(":"); g = int(g)
    if mode == "none":
        a(f"s_mov_b32 s{sROT}, 0"); return
    if mode == "d": a(f"s_mov_b32 s{sT0}, s{dreg}")
    else:
        a(f"s_lshr_b32 s{sT0}, s{sB}, 5")
        if mode == "qd": a(f"s_add_u32 s{sT0}, s{sT0}, s{dreg}")
    a(f"s_and_b32 s{sT0}, s{sT0}, {g-1}")
    a(f"s_mul_i32 s{sT0}, s{sT0}, {n}")
    a(f"s_lshr_b32 s{sROT}, s{sT0}, {g.bit_length()-1}")
def set_run(run, base, end, n, stride):
    a(f"s_add_u32 s{end}, s{base}, {n*stride}")
    a(f"s_mul_i32 s{run}, s{sROT}, {stride}")
    a(f"s_add_u32 s{run}, s{run}, s{base}")
def set_w1_base():
    set_rot(16, args.rot1, sDT1)
    a(f"s_lshl_b32 s{sT0}, s{sWV}, 4")
    a(f"s_mul_i32 s{sWBASE}, s{sT0}, {W1_KS}")
    a(f"s_lshl_b32 s{sT0}, s{sFT}, 7")
    if args.wsame & 1: a(f"s_mov_b32 s{sT0}, 0")
    a(f"s_add_u32 s{sWBASE}, s{sWBASE}, s{sT0}")
    a(f"s_cmp_eq_u32 s{sROLE}, 0")
    a(f"s_cselect_b32 s{sWBASE}, {OOB}, s{sWBASE}")
    set_run(sWOFF, sWBASE, sWEND, 16, W1_KS)
def set_h_base():
    set_rot(16, args.rot1, sDT1)
    a(f"s_lshl_b32 s{sT0}, s{sDT1}, 6")
    a(f"s_lshl_b32 s{sT1}, s{sWV}, 4")
    a(f"s_add_u32 s{sT0}, s{sT0}, s{sT1}")
    a(f"s_mul_i32 s{sABASE}, s{sT0}, 5120")
    if H_OFF: a(f"s_add_u32 s{sABASE}, s{sABASE}, {H_OFF}")
    set_run(sAOFF, sABASE, sAEND, 16, 5120)
def k2_start(dst):
    a(f"s_mul_i32 s{dst}, s{sWV}, 14")
    a(f"s_cmp_eq_u32 s{sWV}, 3")
    a(f"s_cselect_b32 s{sT3}, 1, 0")
    a(f"s_sub_u32 s{dst}, s{dst}, s{sT3}")
def set_w2_base():
    set_rot(13, args.rot2, sDT)
    k2_start(sT0)
    a(f"s_mul_i32 s{sW2B}, s{sT0}, {W2_KS}")
    a(f"s_lshl_b32 s{sT0}, s{sST}, 7")
    if args.wsame & 2: a(f"s_mov_b32 s{sT0}, 0")
    a(f"s_add_u32 s{sW2B}, s{sW2B}, s{sT0}")
    set_run(sW2R, sW2B, sW2E, 13, W2_KS)
def set_g_base():
    set_rot(13, args.rot2, sDT)
    k2_start(sT0)
    a(f"s_mul_i32 s{sT1}, s{sDT}, 54")
    a(f"s_add_u32 s{sT0}, s{sT0}, s{sT1}")
    a(f"s_mul_i32 s{sABASE}, s{sT0}, 5120")
    a(f"s_add_u32 s{sABASE}, s{sABASE}, {G_OFF}")
    set_run(sAOFF, sABASE, sAEND, 13, 5120)

XR = 16
FV = 28
DV = 48
HP = 68
WA = 80
GA = 92
TV = 100
def ln_addresses():
    fg(f"v_and_b32 v{TV}, 31, v{vLANE}")
    fg(f"v_lshrrev_b32 v{TV+1}, 5, v{vLANE}")
    fg(f"v_lshlrev_b32 v{TV+1}, 1, v{TV+1}")
    a(f"s_lshl_b32 s{sT0}, s{sWV}, 2")
    a(f"s_add_u32 s{sT0}, s{sT0}, {T_OFF}")
    fg(f"v_and_b32 v{TV+2}, 7, v{TV}")
    fg(f"v_xor_b32 v{TV+2}, v{TV+2}, v{TV+1}")
    fg(f"v_lshlrev_b32 v{TV+3}, 7, v{TV}")
    a(f"v_add_u32 v{TV+3}, s{sT0}, v{TV+3}")
    a(f"v_lshrrev_b32 v{TV+7}, 1, v{TV}")
    a(f"v_lshlrev_b32 v{TV+8}, 7, v{TV+7}")
    fg(f"v_add_u32 v{TV+8}, s{sT0}, v{TV+8}")
    for k in range(4):
        base = 4096 if k >= 2 else 0
        e = 4 if (k & 1) else 0
        for o in range(2):
            fg(f"v_xor_b32 v{TV+4}, {e + o}, v{TV+2}")
            fg(f"v_lshl_add_u32 v{WA + 2*k + o}, v{TV+4}, 4, v{TV+3}")
            if base: fg(f"v_add_u32 v{WA + 2*k + o}, {base}, v{WA + 2*k + o}")
    fg(f"v_and_b32 v{TV+5}, 1, v{TV}")
    fg(f"v_lshl_add_u32 v{TV+5}, v{TV+5}, 2, v{TV+1}")
    fg(f"v_and_b32 v{TV+6}, 7, v{TV+7}")
    fg(f"v_xor_b32 v{TV+5}, v{TV+5}, v{TV+6}")
    fg(f"v_add_u32 v{TV+8}, 8192, v{TV+8}")
    fg(f"v_lshl_add_u32 v{WA+8}, v{TV+5}, 4, v{TV+8}")
    fg(f"v_xor_b32 v{TV+5}, 1, v{TV+5}")
    fg(f"v_lshl_add_u32 v{WA+9}, v{TV+5}, 4, v{TV+8}")
    for i in range(3):
        fg(f"v_add_u32 v{TV}, {256*i}, v{vTID}")
        fg(f"v_lshrrev_b32 v{TV+1}, 3, v{TV}")
        fg(f"v_xor_b32 v{TV+1}, v{TV+1}, v{TV}")
        fg(f"v_and_b32 v{TV+1}, 7, v{TV+1}")
        fg(f"v_and_b32 v{TV+2}, 0x3f8, v{TV}")
        fg(f"v_or_b32 v{TV+1}, v{TV+1}, v{TV+2}")
        fg(f"v_lshrrev_b32 v{TV+2}, 4, v{TV+1}")
        fg(f"v_mul_u32_u24 v{TV+3}, 205, v{TV+2}")
        fg(f"v_lshrrev_b32 v{TV+3}, 10, v{TV+3}")
        fg(f"v_mul_u32_u24 v{TV+3}, 315, v{TV+3}")
        fg(f"v_add_u32 v{TV+3}, v{TV+3}, v{TV+2}")
        fg(f"v_lshlrev_b32 v{TV+3}, 10, v{TV+3}")
        fg(f"v_and_b32 v{TV+1}, 15, v{TV+1}")
        fg(f"v_lshl_add_u32 v{GA+i}, v{TV+1}, 4, v{TV+3}")
    fg(f"v_lshlrev_b32 v95, 4, v{vTID}")
    fg(f"v_add_u32 v95, {T_OFF}, v95")
    a(f"s_lshr_b32 s{sT0}, s{sB}, 2")
    a(f"s_mul_i32 s{sT0}, s{sT0}, 5120")
    a(f"s_and_b32 s{sT1}, s{sB}, 3")
    a(f"s_lshl_b32 s{sT1}, s{sT1}, 8")
    a(f"s_add_u32 s{sGST}, s{sT0}, s{sT1}")
    if H_OFF: a(f"s_add_u32 s{sGST}, s{sGST}, {H_OFF}")

def reduce32(r, t):
    for dpp in ("quad_perm:[1,0,3,2]", "quad_perm:[2,3,0,1]", "row_half_mirror", "row_mirror"):
        a("s_nop 1")
        a(f"v_add_f32_dpp v{r}, v{r}, v{r} {dpp} row_mask:0xf bank_mask:0xf")
    a(f"v_mov_b32 v{t}, v{r}")
    a("s_nop 1")
    a(f"v_permlane16_swap_b32 v{r}, v{t}")
    a("s_nop 1")
    fg(f"v_add_f32 v{r}, v{r}, v{t}")

def rne_bf16(dst, src):
    a(f"v_cvt_pk_bf16_f32 v{dst}, v{src}, v{src}")
    a(f"v_and_b32 v{dst}, 0xffff0000, v{dst}")

def ln_compute():
    for m in range(10):
        fg(f"v_lshlrev_b32 v{FV+2*m}, 16, v{XR+m}")
        fg(f"v_and_b32 v{FV+2*m+1}, 0xffff0000, v{XR+m}")
    s0, s1 = TV, TV+2
    fg(f"v_pk_add_f32 {P(s0)}, {P(FV)}, {P(FV+2)}")
    fg(f"v_pk_add_f32 {P(s1)}, {P(FV+4)}, {P(FV+6)}")
    for m in range(4, 10):
        s = s0 if m % 2 == 0 else s1
        fg(f"v_pk_add_f32 {P(s)}, {P(s)}, {P(FV+2*m)}")
    fg(f"v_pk_add_f32 {P(s0)}, {P(s0)}, {P(s1)}")
    mean = TV+4
    fg(f"v_add_f32 v{mean}, v{s0}, v{s0+1}")
    reduce32(mean, TV+6)
    fg(f"v_mul_f32 v{mean}, {f32hex(1.0/640)}, v{mean}")
    fg(f"v_mov_b32 v{mean+1}, v{mean}")
    for m in range(10):
        fg(f"v_pk_add_f32 {P(DV+2*m)}, {P(FV+2*m)}, {P(mean)} neg_lo:[0,1] neg_hi:[0,1]")
    fg(f"v_pk_mul_f32 {P(s0)}, {P(DV)}, {P(DV)}")
    fg(f"v_pk_mul_f32 {P(s1)}, {P(DV+2)}, {P(DV+2)}")
    for m in range(2, 10):
        s = s0 if m % 2 == 0 else s1
        fg(f"v_pk_fma_f32 {P(s)}, {P(DV+2*m)}, {P(DV+2*m)}, {P(s)}")
    fg(f"v_pk_add_f32 {P(s0)}, {P(s0)}, {P(s1)}")
    var = TV+8
    fg(f"v_add_f32 v{var}, v{s0}, v{s0+1}")
    reduce32(var, TV+6)
    fg(f"v_mul_f32 v{var}, {f32hex(1.0/640)}, v{var}")
    rs = TV+10
    if args.exact:
        rne_bf16(var, var)
        a(f"v_add_f32 v{var}, {f32hex(1e-5)}, v{var}")
        rne_bf16(var, var)
        a(f"v_sqrt_f32 v{var}, v{var}")
        a("s_nop 0")
        rne_bf16(var, var)
        a(f"v_rcp_f32 v{rs}, v{var}")
        rne_bf16(mean, mean)
        a(f"v_mov_b32 v{mean+1}, v{mean}")
        fg(f"v_mov_b32 v{rs+1}, v{rs}")
        for m in range(10):
            fg(f"v_pk_add_f32 {P(DV+2*m)}, {P(FV+2*m)}, {P(mean)} neg_lo:[0,1] neg_hi:[0,1]")
        for m in range(10):
            fg(f"v_cvt_pk_bf16_f32 v{HP+m}, v{DV+2*m}, v{DV+2*m+1}")
        for m in range(10):
            fg(f"v_lshlrev_b32 v{DV+2*m}, 16, v{HP+m}")
            fg(f"v_and_b32 v{DV+2*m+1}, 0xffff0000, v{HP+m}")
    else:
        a(f"v_add_f32 v{var}, {f32hex(1e-5)}, v{var}")
        a(f"v_rsq_f32 v{rs}, v{var}")
        a("s_nop 0")
        fg(f"v_mov_b32 v{rs+1}, v{rs}")
    for m in range(10):
        fg(f"v_pk_mul_f32 {P(DV+2*m)}, {P(DV+2*m)}, {P(rs)}")
    for m in range(10):
        fg(f"v_cvt_pk_bf16_f32 v{HP+m}, v{DV+2*m}, v{DV+2*m+1}")
    a(f"s_mov_b32 s{sT0}, 0x05040100")
    a(f"s_mov_b32 s{sT1}, 0x07060302")
    for k in range(5):
        a(f"v_permlane32_swap_b32 v{HP+2*k}, v{HP+2*k+1}")
    a("s_nop 1")
    for k in range(5):
        a(f"v_perm_b32 v{DV+2*k}, v{HP+2*k+1}, v{HP+2*k}, s{sT0}")
        a(f"v_perm_b32 v{DV+2*k+1}, v{HP+2*k+1}, v{HP+2*k}, s{sT1}")
    for k in range(10):
        a(f"ds_write_b32 v{WA+k}, v{DV+k}")

def ln_store():
    a("s_waitcnt lgkmcnt(0)")
    a("s_barrier")
    a(f"ds_read_b128 v[{FV}:{FV+3}], v95")
    a(f"ds_read_b128 v[{FV+4}:{FV+7}], v95 offset:4096")
    a(f"s_cmp_ge_u32 s{sWV}, 2")
    a("s_cbranch_scc1 L_ln_two")
    a(f"ds_read_b128 v[{FV+8}:{FV+11}], v95 offset:8192")
    a("s_waitcnt lgkmcnt(0)")
    a(f"buffer_store_dwordx4 v[{FV+8}:{FV+11}], v{GA+2}, s[{srdWS}:{srdWS+3}], s{sGST} offen{SC}")
    vm.issue("hst3", True)
    a("L_ln_two:")
    a("s_waitcnt lgkmcnt(0)")
    a(f"buffer_store_dwordx4 v[{FV}:{FV+3}], v{GA}, s[{srdWS}:{srdWS+3}], s{sGST} offen{SC}")
    a(f"buffer_store_dwordx4 v[{FV+4}:{FV+7}], v{GA+1}, s[{srdWS}:{srdWS+3}], s{sGST} offen{SC}")
    vm.issue("hst"); vm.issue("hst")

def publish_nonce():
    a(f"s_or_b32 s{sT0}, s{sB}, s{sWV}")
    a(f"s_cmp_lg_u32 s{sT0}, 0")
    a("s_cbranch_scc1 L_no_nonce")
    a(f"s_memrealtime s[{sT0}:{sT0+1}]")
    a("s_waitcnt lgkmcnt(0)")
    a(f"s_or_b32 s{sT1}, s{sT1}, 0x40000000")
    a(f"v_mov_b32 v12, s{sT0}")
    a(f"v_mov_b32 v13, s{sT1}")
    a("v_mov_b32 v112, 0")
    a(f"buffer_store_dwordx2 v[12:13], v112, s[{srdDBG}:{srdDBG+3}], 0 offen sc1")
    a("L_no_nonce:")
    vm.issue("noncest", True)

vNON = 116
def nonce_issue():
    a(f"v_mov_b32 v{vNON+2}, 0")
    a(f"buffer_load_dwordx2 v[{vNON}:{vNON+1}], v{vNON+2}, s[{srdDBG}:{srdDBG+3}], 0 offen sc1")
    vm.issue("nonce")

def nonce_finish(label):
    a(f"s_mov_b32 s{sSPIN}, {SPIN_MAX}")
    a(f"{label}:")
    a(f"v_readfirstlane_b32 s{sNON}, v{vNON}")
    a(f"v_readfirstlane_b32 s{sNON+1}, v{vNON+1}")
    a("s_nop 3")
    a(f"s_sub_u32 s{sSPIN}, s{sSPIN}, 1")
    a(f"s_cselect_b32 s{sT0}, 1, s{sNON+1}")
    a(f"s_cmp_lg_u32 s{sT0}, 0")
    a(f"s_cbranch_scc1 {label}_ok")
    a(f"buffer_load_dwordx2 v[{vNON}:{vNON+1}], v{vNON+2}, s[{srdDBG}:{srdDBG+3}], 0 offen sc1")
    a("s_waitcnt vmcnt(0)")
    a(f"s_branch {label}")
    a(f"{label}_ok:")

def store_flag(label, off_sreg):
    a(f"s_cmp_lg_u32 s{sWV}, 0")
    a(f"s_cbranch_scc1 {label}")
    a(f"v_mov_b32 v16, s{sNON}")
    a(f"v_mov_b32 v17, s{sNON+1}")
    a("v_mov_b32 v18, 0")
    a(f"s_mov_b64 s[{sEXEC}:{sEXEC+1}], exec")
    a("s_mov_b64 exec, 1")
    a(f"buffer_store_dwordx2 v[16:17], v18, s[{srdWS}:{srdWS+3}], s{off_sreg} offen sc1")
    a(f"s_mov_b64 exec, s[{sEXEC}:{sEXEC+1}]")
    a("s_nop 1")
    a(f"{label}:")
    vm.issue("flag", True)

vPOLL = 120
def poll_issue(off_sreg):
    a(f"buffer_load_dwordx2 v[{vPOLL}:{vPOLL+1}], v{vPOLL+2}, s[{srdWS}:{srdWS+3}], s{off_sreg} offen sc1")
    vm.issue("poll")
def poll_check(label, off_sreg, deep=0):
    vm.wait("poll")
    def check(r, ok):
        a(f"v_cmp_ne_u32 vcc, s{sNON}, v{r}")
        a(f"v_cmp_ne_u32 s[{sT0}:{sT0+1}], s{sNON+1}, v{r+1}")
        a("s_nop 3")
        a(f"s_or_b64 vcc, vcc, s[{sT0}:{sT0+1}]")
        a(f"s_cbranch_vccz {ok}")
    def load(r):
        a(f"buffer_load_dwordx2 v[{r}:{r+1}], v{vPOLL+2}, s[{srdWS}:{srdWS+3}], s{off_sreg} offen sc1")
    a(f"s_mov_b32 s{sSPIN}, {SPIN_MAX}")
    if not deep:
        a(f"{label}:")
        check(vPOLL, f"{label}_ok")
        if args.sleep: a(f"s_sleep {args.sleep}")
        load(vPOLL)
        a("s_waitcnt vmcnt(0)")
        a(f"s_sub_u32 s{sSPIN}, s{sSPIN}, 1")
        a(f"s_cbranch_scc0 {label}")
        a(f"{label}_ok:")
        return
    R = (vPOLL, 116, 118)
    check(vPOLL, f"{label}_ok")
    for r in R:
        load(r)
        a(f"s_sleep {deep}")
    a(f"{label}:")
    for r in R:
        a("s_waitcnt vmcnt(2)")
        check(r, f"{label}_ok")
        load(r)
        a(f"s_sleep {deep}")
    a(f"s_sub_u32 s{sSPIN}, s{sSPIN}, 1")
    a(f"s_cbranch_scc0 {label}")
    a(f"{label}_ok:")

def a_load(slot, mi, ks, fixed=False):
    r = abuf(slot, mi)
    off = sAOFF
    if fixed:
        off = sOFF
        if mi == 0: a(f"s_add_u32 s{sOFF}, s{sABASE}, {ks*5120}")
    if mi < 4:
        a(f"buffer_load_dwordx4 v[{r}:{r+3}], v{vA}, s[{srdWS}:{srdWS+3}], s{off} offen offset:{mi*1024}{fl(args.asc)}")
    else:
        a(f"buffer_load_dwordx4 v[{r}:{r+3}], v{vA2}, s[{srdWS}:{srdWS+3}], s{off} offen{fl(args.asc)}")
        if not fixed:
            a(f"s_add_u32 s{sAOFF}, s{sAOFF}, {args.astride}")
            a(f"s_cmp_eq_u32 s{sAOFF}, s{sAEND}")
            a(f"s_cselect_b32 s{sAOFF}, s{sABASE}, s{sAOFF}")
    vm.issue(("A", ks), fixed)

def mfma(first, ks, slot, c, mi, gemm):
    if args.nomfma and not first: return
    d = acc(c, mi); wr = 16*ks + 4*c; ar = abuf(slot, mi)
    cin = "0" if first else f"v[{d}:{d+3}]"
    if first and c == 0 and args.biasc: cin = "v[160:163]"
    if gemm == 1: a(f"v_mfma_f32_16x16x32_bf16 v[{d}:{d+3}], a[{wr}:{wr+3}], v[{ar}:{ar+3}], {cin}")
    else:         a(f"v_mfma_f32_16x16x32_bf16 v[{d}:{d+3}], v[{ar}:{ar+3}], a[{wr}:{wr+3}], {cin}")

def main_prefill(gemm, nks, optional_last):
    for ks in range(min(NA, nks)):
        for mi in range(5): a_load(ks % NA, mi, ks, optional_last and ks == nks - 1)

def red_write(c, mi):
    blk = (c-1)*5 + mi
    r = acc(c, mi)
    if blk < 12: a(f"ds_write_b128 v{vRW+c-1}, v[{r}:{r+3}] offset:{blk*1024}")
    else:        a(f"ds_write_b128 v{vRW+3}, v[{r}:{r+3}] offset:{(blk-12)*1024}")

def main_loop(gemm, nks, optional_last, W, tail=None, hook=None):
    depth = min(NA, nks)
    nreal = nks - 1 if optional_last else nks
    nplain = nreal - args.nlast
    def loads(ks):
        for mi in range(5): a_load(ks % NA, mi, ks, optional_last and ks == nks - 1)
    while W.nt < 2: W.tr()
    pending_tr = True
    last_plain = nks if not args.nlast else nplain
    for ks in range(last_plain):
        opt = optional_last and ks == nks - 1
        def body():
            nonlocal pending_tr
            vm.wait(("A", ks))
            if pending_tr: a("s_waitcnt lgkmcnt(0)"); pending_tr = False
            if args.mstamps and ks in (0, 4, 8, 12): stamp(f"g{gemm} step {ks} data")
            settled = W.nt
            pieces = []
            if W.nd < W.nks and W.nd - W.nslot < settled and not W.is_opt(W.nd):
                pos = W.nd; W.nd += 1
                pieces = [lambda q=q, pos=pos: W.piece(pos, q, False) for q in range(4)]
            nxt = ks + depth
            reads = []
            if args.trspread and W.nt <= ks + 1 and W.nt < W.nks and not W.is_opt(W.nt):
                reads = W.tr_items(); pending_tr = True
            if args.trspread == 1 and args.nlast and args.trearly and ks == nplain - 1:
                if W.nt < W.nks and not W.is_opt(W.nt) and W.nd > W.nt: reads += W.tr_items()
            for mi in range(5):
                if args.align == 2 or (args.align == 1 and mi == 0): a(".p2align 3")
                for c in range(4):
                    mfma(ks == 0, ks, ks % NA, c, mi, gemm)
                    if reads and (mi*4 + c) % args.trspread == 0: reads.pop(0)()
                    elif nxt < nreal: bg.tick()
                    if c == 1 and pieces: pieces.pop(0)()
                if not args.trspread and mi == 0 and W.nt <= ks + 1 and W.nt < W.nks and not W.is_opt(W.nt):
                    W.tr(); pending_tr = True
                if nxt < nreal: a_load(nxt % NA, mi, nxt)
                elif tail is not None: tail()
            assert not reads
            if hook is not None: hook(ks)
        if opt: guarded(f"L_g{gemm}_mm", body)
        else: body()
        nxt = ks + depth
        if optional_last and nxt == nks - 1:
            guarded(f"L_g{gemm}_ld", lambda: loads(nxt))
        if W.nd < W.nks and W.is_opt(W.nd) and W.nd - W.nslot < W.nt - 1:
            a("s_waitcnt lgkmcnt(0)"); W.dma()
        if W.nt < W.nks and W.is_opt(W.nt) and W.nt <= ks + 1 and W.nd > W.nt:
            W.tr(); pending_tr = True
        if nxt == nreal - 1: bg.flush()
    if args.nlast:
        assert W.nd == W.nks
        while W.nt < W.nks: W.tr()
        steps = list(range(nplain, nreal))
        assert steps[0] + depth >= nreal
        assert not optional_last or steps[0] + depth > nks - 1
        vm.wait(("A", nreal - 1))
        if optional_last: guarded(f"L_g{gemm}_ow", lambda: a("s_waitcnt vmcnt(0)") if tail is None else None)
        a("s_waitcnt lgkmcnt(0)")
        a("s_barrier")
        if args.wskew:
            for w_ in (1, 2, 3):
                a(f"s_cmp_ge_u32 s{sWV}, {w_}")
                a(f"s_cbranch_scc0 L_g{gemm}_skew")
                a(f"s_nop {args.wskew // 4 - 3}" if args.wskew >= 12 else "s_nop 0")
            a(f"L_g{gemm}_skew:")
        order = (1, 2, 3, 0)
        n = 0
        pend = []
        last_w = -99
        def maybe_write():
            nonlocal last_w
            if pend and pend[0][0] <= n and n - last_w >= args.wsp:
                _, c_, mi_ = pend.pop(0); red_write(c_, mi_); last_w = n
        for gi, c in enumerate(order):
            if optional_last:
                ko = nks - 1
                guarded(f"L_g{gemm}_o{c}", lambda: [mfma(False, ko, ko % NA, c, mi, gemm) for mi in range(5)])
            for si, ks in enumerate(steps):
                for mi in range(5):
                    mfma(False, ks, ks % NA, c, mi, gemm)
                    n += 1
                    if si == len(steps) - 1 and c != 0: pend.append((n + 8, c, mi))
                    maybe_write()
                    if tail is not None and n % 4 == 0: tail()
        if pend:
            a("s_nop 7")
            for _, c_, mi_ in pend: red_write(c_, mi_)
    assert W.nd == W.nks and W.nt == W.nks

RT = 16
PK = 80
def epilogue_addresses():
    for c in range(1, 4):
        a(f"s_add_u32 s{sT0}, s{sWV}, {c}")
        a(f"s_and_b32 s{sT0}, s{sT0}, 3")
        a(f"s_mul_i32 s{sT1}, s{sT0}, {RING}")
        a(f"s_add_u32 s{sT1}, s{sT1}, {6*4096}")
        a(f"v_add_u32 v{vRW+c-1}, s{sT1}, v{vA}")
        if c == 3:
            a(f"s_mul_i32 s{sT1}, s{sT0}, 3072")
            a(f"s_add_u32 s{sT1}, s{sT1}, {T_OFF}")
            a(f"v_add_u32 v{vRW+3}, s{sT1}, v{vA}")
    a(f"s_add_u32 s{sT1}, s{sRING}, {6*4096}")
    a(f"v_add_u32 v{vRR}, s{sT1}, v{vA}")
    a(f"s_mul_i32 s{sT1}, s{sWV}, 3072")
    a(f"s_add_u32 s{sT1}, s{sT1}, {T_OFF}")
    a(f"v_add_u32 v{vRR+1}, s{sT1}, v{vA}")
    a(f"v_lshrrev_b32 v12, 4, v{vLANE}")
    a("v_and_b32 v13, 1, v12")
    a(f"v_lshlrev_b32 v{vGO}, 10, v13")
    a(f"v_lshlrev_b32 v{vOO}, 5, v13")
    a("v_lshrrev_b32 v12, 1, v12")
    a(f"v_lshl_add_u32 v{vGL}, v12, 8, 0")
    a(f"v_lshlrev_b32 v{vOL}, 4, v12")
    a(f"v_and_b32 v12, 15, v{vLANE}")
    a(f"v_lshl_add_u32 v{vGL}, v12, 4, v{vGL}")
    a(f"v_add_u32 v{vGO}, v{vGO}, v{vGL}")
    a("v_mul_u32_u24 v12, 1280, v12")
    a(f"v_add_u32 v{vOL}, v{vOL}, v12")
    a(f"v_add_u32 v{vOO}, v{vOO}, v{vOL}")
    a(f"s_mul_i32 s{sT0}, s{sDT1}, 54")
    a(f"s_lshl_b32 s{sT1}, s{sFT}, 1")
    a(f"s_add_u32 s{sT0}, s{sT0}, s{sT1}")
    a(f"s_lshr_b32 s{sT1}, s{sWV}, 1")
    a(f"s_add_u32 s{sT0}, s{sT0}, s{sT1}")
    a(f"s_mul_i32 s{sT0}, s{sT0}, 5120")
    a(f"s_and_b32 s{sT1}, s{sWV}, 1")
    a(f"s_lshl_b32 s{sT1}, s{sT1}, 9")
    a(f"s_add_u32 s{sT0}, s{sT0}, s{sT1}")
    a(f"s_add_u32 s{sGST}, s{sT0}, {G_OFF}")
    a(f"s_lshl_b32 s{sT0}, s{sST}, 2")
    a(f"s_add_u32 s{sT0}, s{sT0}, s{sWV}")
    a(f"s_mul_i32 s{sT0}, s{sT0}, {16*1280}")
    a(f"s_mul_i32 s{sT1}, s{sDT}, 160")
    a(f"s_add_u32 s{sOST}, s{sT0}, s{sT1}")
    c1 = -2.0 * 0.7978845608028654 * 1.4426950408889634
    a(f"v_mov_b32 v{vC}, {f32hex(c1)}"); a(f"v_mov_b32 v{vC+1}, {f32hex(c1)}")
    a(f"v_mov_b32 v{vC+2}, {f32hex(c1*0.044715)}"); a(f"v_mov_b32 v{vC+3}, {f32hex(c1*0.044715)}")
    a(f"v_mov_b32 v{vC+4}, 1.0"); a(f"v_mov_b32 v{vC+5}, 1.0")
    dma_offsets(vD2, W2_ROW)
    set_w2_base()
    a(f"s_lshl_b32 s{sT0}, s{sST}, 7")
    a(f"s_lshl_b32 s{sT1}, s{sWV}, 5")
    a(f"s_add_u32 s{sT0}, s{sT0}, s{sT1}")
    a(f"v_and_b32 v12, 15, v{vLANE}")
    a("v_lshlrev_b32 v12, 1, v12")
    a(f"buffer_load_ushort v{vB2}, v12, s[{srdB2}:{srdB2+3}], s{sT0} offen")
    vm.issue("b2")

def reduce_write(before_wait=None, after_barrier=None):
    if not args.nlast:
        a("s_nop 6")
        a("s_barrier")
        if args.estamps: stamp("red: barrier 1")
        for c in range(1, 4):
            for mi in range(5):
                red_write(c, mi)
                bg.tick(3)
    if before_wait is not None: before_wait()
    a("s_waitcnt lgkmcnt(0)")
    if args.estamps: stamp("red: writes done")
    a("s_barrier")
    if args.estamps: stamp("red: barrier 2")
    if after_barrier is not None: after_barrier()
    for mi in range(5):
        for c in range(1, 4):
            blk = (c-1)*5 + mi
            r = RT + 4*blk
            if blk < 12: a(f"ds_read_b128 v[{r}:{r+3}], v{vRR} offset:{blk*1024}")
            else:        a(f"ds_read_b128 v[{r}:{r+3}], v{vRR+1} offset:{(blk-12)*1024}")
        bg.tick(6)

def reduce_sum(mi, counted=True):
    if counted: a(f"s_waitcnt lgkmcnt({12 - 3*mi})")
    for c in range(1, 4):
        for h in range(2):
            d = acc(0, mi) + 2*h; s = RT + 4*((c-1)*5 + mi) + 2*h
            fg(f"v_pk_add_f32 {P(d)}, {P(d)}, {P(s)}")

def pack_swap():
    for mi in range(5):
        d = acc(0, mi); r = PK + 2*mi
        a(f"v_cvt_pk_bf16_f32 v{r}, v{d}, v{d+1}")
        a(f"v_cvt_pk_bf16_f32 v{r+1}, v{d+2}, v{d+3}")
    a(f"v_mov_b32 v{PK+10}, v{PK+8}")
    a(f"v_mov_b32 v{PK+11}, v{PK+9}")
    a("s_nop 1")
    for p in range(3):
        b = PK + 4*p
        a(f"v_permlane16_swap_b32 v{b}, v{b+2}")
        a(f"v_permlane16_swap_b32 v{b+1}, v{b+3}")

def epilogue1(after_reduce, before_wait=None, after_barrier=None):
    reduce_write(before_wait, after_barrier)
    if not args.biasc:
        a(f"v_lshlrev_b32 v96, 16, v{vB1}");   a(f"v_and_b32 v97, 0xffff0000, v{vB1}")
        a(f"v_lshlrev_b32 v98, 16, v{vB1+1}"); a(f"v_and_b32 v99, 0xffff0000, v{vB1+1}")
    T = 100
    for mi in range(5):
        d = acc(0, mi)
        reduce_sum(mi)
        if args.estamps and mi in (0, 4): stamp(f"red: sum {mi}")
        if mi == 4: after_reduce()
        if not args.biasc:
            for h in range(2):
                fg(f"v_pk_add_f32 {P(d+2*h)}, {P(d+2*h)}, {P(96+2*h)}")
        t = T + 4*(mi % 2)
        for h in range(2):
            u = d + 2*h
            fg(f"v_pk_mul_f32 {P(t+2*h)}, {P(u)}, {P(u)}")
        for h in range(2):
            fg(f"v_pk_fma_f32 {P(t+2*h)}, {P(t+2*h)}, {P(vC+2)}, {P(vC)}")
        for h in range(2):
            u = d + 2*h
            fg(f"v_pk_mul_f32 {P(t+2*h)}, {P(t+2*h)}, {P(u)}")
        for k in range(4): a(f"v_exp_f32 v{t+k}, v{t+k}")
        bg.tick(8)
        for h in range(2): a(f"v_pk_add_f32 {P(t+2*h)}, {P(t+2*h)}, {P(vC+4)}")
        for k in range(4): a(f"v_rcp_f32 v{t+k}, v{t+k}")
        a("s_nop 0")
        bg.tick(10)
        for h in range(2): fg(f"v_pk_mul_f32 {P(d+2*h)}, {P(d+2*h)}, {P(t+2*h)}")
        r = PK + 2*mi
        a(f"v_cvt_pk_bf16_f32 v{r}, v{d}, v{d+1}")
        a(f"v_cvt_pk_bf16_f32 v{r+1}, v{d+2}, v{d+3}")
        if mi in (1, 3):
            p = mi // 2; b = PK + 4*p
            a("s_nop 1")
            a(f"v_permlane16_swap_b32 v{b}, v{b+2}")
            a(f"v_permlane16_swap_b32 v{b+1}, v{b+3}")
            if not args.bglate:
                a(f"buffer_store_dwordx4 v[{b}:{b+3}], v{vGO}, s[{srdWS}:{srdWS+3}], s{sGST} offen offset:{2048*p}{SC}")
                vm.issue("gst")
    bg.flush()
    a(f"v_mov_b32 v{PK+10}, v{PK+8}")
    a(f"v_mov_b32 v{PK+11}, v{PK+9}")
    a(f"s_add_u32 s{sT1}, s{sGST}, 4096")
    a("s_nop 0")
    a(f"v_permlane16_swap_b32 v{PK+8}, v{PK+10}")
    a(f"v_permlane16_swap_b32 v{PK+9}, v{PK+11}")
    if args.bglate:
        for p in range(2):
            b = PK + 4*p
            a(f"buffer_store_dwordx4 v[{b}:{b+3}], v{vGO}, s[{srdWS}:{srdWS+3}], s{sGST} offen offset:{2048*p}{SC}")
            vm.issue("gst")
    a(f"buffer_store_dwordx4 v[{PK+8}:{PK+11}], v{vGL}, s[{srdWS}:{srdWS+3}], s{sT1} offen{SC}")
    vm.issue("gst")

def epilogue2():
    reduce_write()
    if not args.biasc:
        a(f"v_lshlrev_b32 v96, 16, v{vB2}")
        a("v_mov_b32 v97, v96")
    o = fl(args.ofl)
    for mi in range(5):
        d = acc(0, mi)
        reduce_sum(mi)
        if not args.biasc:
            for h in range(2):
                a(f"v_pk_add_f32 {P(d+2*h)}, {P(d+2*h)}, {P(96)}")
        r = PK + 2*mi
        a(f"v_cvt_pk_bf16_f32 v{r}, v{d}, v{d+1}")
        a(f"v_cvt_pk_bf16_f32 v{r+1}, v{d+2}, v{d+3}")
        if mi in (1, 3):
            p = mi // 2; b = PK + 4*p
            a("s_nop 1")
            a(f"v_permlane16_swap_b32 v{b}, v{b+2}")
            a(f"v_permlane16_swap_b32 v{b+1}, v{b+3}")
            a(f"buffer_store_dwordx4 v[{b}:{b+3}], v{vOO}, s[{srdOUT}:{srdOUT+3}], s{sOST} offen offset:{64*p}{o}")
    a(f"v_mov_b32 v{PK+10}, v{PK+8}")
    a(f"v_mov_b32 v{PK+11}, v{PK+9}")
    a("s_nop 1")
    a(f"v_permlane16_swap_b32 v{PK+8}, v{PK+10}")
    a(f"v_permlane16_swap_b32 v{PK+9}, v{PK+11}")
    a(f"buffer_store_dwordx4 v[{PK+8}:{PK+11}], v{vOL}, s[{srdOUT}:{srdOUT+3}], s{sOST} offen offset:128{o}")

pair = lambda s: tuple(int(x) for x in s.split(":"))
file_begin(a, [(MAIN, 256, 256, LDS_BYTES)])
for l in """
; MLP-Mixer token mixing, out = (gelu(LN(x)^T w1 + b1) w2 + b2)^T, as ONE launch of 256 workgroups (one per CU, 4 waves).
;
; Phases of a workgroup b (k = b&7 -> i = k&1, j = k>>1; n = b>>3 -> n&3, q = n>>2):
;   LayerNorm  rows 8b..8b+7; the result goes to d_ws as MFMA fragments H[dt][kstep][mi][lane][8]  (k index = token)
;   GEMM1      tile dt = 4i + (n&3) (80 channels) x ft = 7j + q (64 hidden units), 216 tiles; K split over the 4 waves,
;              partial sums reduced through LDS, gelu(tanh form), G[dt][kstep][mi][lane][8] to d_ws  (k index = hidden unit)
;   GEMM2      tile dt x st (64 tokens), K split over the 4 waves, reduced through LDS, + b2, stored to d_out
; Weights travel memory -> LDS (LDS-DMA, xor-swizzled) -> accumulation registers (transposed LDS reads) ahead of the
; activations they multiply; activations are loaded straight into MFMA operand registers.
; Hand-offs between workgroups (H, G): write-through stores, drained, then a flag word in d_ws; consumers poll the flags and
; read with device-scope loads.  A flag counts only if it equals this launch's tag, which workgroup 0 publishes in d_debug.
; d_ws layout: H at 0, G at 0x280000, LayerNorm flags at 0x500000, G flags at 0x510000.
""".strip().split("\n"): a(l)
prologue(MAIN, "L_end")
stamp("kernarg")
set_w1_base()
W1 = Stager(srdW1, vD, sWOFF, sWBASE, sWEND, W1_KS, 16, False, fl(args.w1fl), "w1")
W1.start()
publish_nonce()
if args.pf1:
    set_rot(16, args.pf1rot, sDT1)
    a(f"s_mul_i32 s{sT2}, s{sROT}, {W1_KS}")
    a(f"s_add_u32 s{sW2E}, s{sT2}, s{sWBASE}")
    def pf_piece(i, q):
        a(f"buffer_load_dwordx4 v[{128+4*((4*i+q)%8)}:{131+4*((4*i+q)%8)}], v{vD+q}, s[{srdW1}:{srdW1+3}], s{sW2E} offen{fl(args.w1fl)}")
        vm.issue("pf1")
        if q == 3:
            a(f"s_add_u32 s{sW2E}, s{sW2E}, {W1_KS}")
            a(f"s_cmp_eq_u32 s{sW2E}, s{sWEND}")
            a(f"s_cselect_b32 s{sW2E}, s{sWBASE}, s{sW2E}")
    for i in range(args.pf1):
        for q in range(4): bg.add(lambda i=i, q=q: pf_piece(i, q))
if args.npre: W1.dma_bg(args.npre)
bg.every = 6
ln_addresses()
tr_addresses()
bg.flush()
vm.wait("x")
stamp("x landed")
if args.earlytag: nonce_issue()
if args.nln: W1.dma_bg(args.nln)
bg.every = args.lnevery; bg.cnt = 0
ln_compute()
bg.flush()
ln_store()
if not args.earlytag: nonce_issue()
stamp("h stores issued")
W1.fill(W1.nd + args.npost)
a(f"s_lshl_b32 s{sT0}, s{sFT}, 7")
a(f"s_lshl_b32 s{sT1}, s{sWV}, 5")
a(f"s_add_u32 s{sT0}, s{sT0}, s{sT1}")
a(f"v_lshrrev_b32 v12, 4, v{vLANE}")
a("v_lshlrev_b32 v12, 3, v12")
a(f"buffer_load_dwordx2 v[{vB1}:{vB1+1}], v12, s[{srdB1}:{srdB1+3}], s{sT0} offen")
vm.issue("b1")
vm.wait("hst" if args.earlytag else "nonce")
nonce_finish("L_nonce")
a("s_barrier")
a(f"s_lshl_b32 s{sT2}, s{sB}, {args.flsh}")
a(f"s_add_u32 s{sT2}, s{sT2}, {FL_LN}")
store_flag("L_flag_ln", sT2)
stamp("LN flag stored")
a(f"s_cmp_eq_u32 s{sROLE}, 0")
a("s_cbranch_scc1 L_idle")
i_branch = nstamp[0]
set_h_base()
a(f"s_lshl_b32 s{sT2}, s{sWV}, {args.flsh + 6}")
a(f"s_add_u32 s{sGST}, s{sT2}, {FL_LN}")
a(f"v_lshlrev_b32 v{vPOLL+2}, {args.flsh}, v{vLANE}")
W1.advance_to(*pair(args.pre1))
poll_issue(sGST)
W1.advance_to(*pair(args.pre1b))
stamp("poll check")
poll_check("L_poll_ln", sGST, args.deep1)
stamp("LN flags seen")
main_prefill(1, 16, False)
vSPF, sSPF = 118, 57
if args.spf:
    per = 128 // args.spf
    a(f"v_lshrrev_b32 v12, 3, v{vLANE}")
    a(f"v_lshlrev_b32 v12, 12, v12")
    a(f"v_and_b32 v13, 7, v{vLANE}")
    a(f"v_lshl_add_u32 v{vSPF}, v13, 7, v12")
    if per < 64:
        a(f"v_mov_b32 v12, 0x10000000")
        a(f"v_cmp_gt_u32 vcc, {per}, v{vLANE}")
        a("s_nop 1")
        a(f"v_cndmask_b32 v{vSPF}, v12, v{vSPF}, vcc")
    a(f"s_lshr_b32 s{sT0}, s{sB}, 3")
    a(f"s_lshl_b32 s{sT0}, s{sT0}, 2")
    a(f"s_add_u32 s{sT0}, s{sT0}, s{sWV}")
    a(f"s_lshl_b32 s{sT0}, s{sT0}, 16")
    a(f"s_bfe_u32 s{sT1}, s{sB}, 0x20001")
    a(f"s_lshl_b32 s{sT1}, s{sT1}, 10")
    a(f"s_add_u32 s{sSPF}, s{sT0}, s{sT1}")
spf_left = [args.spf]
def spf_hook(ks):
    if spf_left[0] and ks >= args.spf0 and (ks - args.spf0) % args.spfd == 0:
        a(f"buffer_load_dword v119, v{vSPF}, s[{srdW2}:{srdW2+3}], s{sSPF} offen")
        vm.issue("spf")
        a(f"s_add_u32 s{sSPF}, s{sSPF}, {(128 // args.spf // 8) * 4096}")
        spf_left[0] -= 1
if args.biasc:
    a(f"v_lshlrev_b32 v160, 16, v{vB1}");   a(f"v_and_b32 v161, 0xffff0000, v{vB1}")
    a(f"v_lshlrev_b32 v162, 16, v{vB1+1}"); a(f"v_and_b32 v163, 0xffff0000, v{vB1+1}")
W2 = Stager(srdW2, vD2, sW2R, sW2B, sW2E, W2_KS, 14, True, fl(args.w2fl), "w2", args.ns2)
queue_lines(epilogue_addresses)
bg.every = args.addrevery; bg.cnt = 0
tailq = []
def tail():
    assert W1.nd == W1.nks
    if not W2.started: W2.start()
    if tailq: tailq.pop(0)()
ntail = 5 if args.tailpieces else 0
for pos in range(ntail):
    for q in range(4): tailq.append(lambda pos=pos, q=q: W2.piece(pos, q, False))
W2.nd = ntail
main_loop(1, 16, False, W1, tail if ntail else None, spf_hook)
assert not tailq
if not W2.started: W2.start()
stamp("main1 done")
W2.dma_bg(args.n2pre - W2.nd)
bg.every = args.epevery; bg.cnt = 0
def after_reduce():
    if not args.epseq:
        W2.dma_bg(args.ep3)
        W2.tr_bg(args.eptr)
        return
    for ch in args.epseq:
        if ch == "T": W2.tr_bg(1)
        else:
            if W2.nd >= NSLOT:
                assert W2.nd - NSLOT < W2.nt
                bg.add(lambda: a("s_waitcnt lgkmcnt(0)"))
            W2.dma_bg(1)
def ep_before_wait():
    bg.flush()
    for _ in range(args.etr): W2.tr()
def ep_after_barrier():
    W2.dma_bg(args.ep)
epilogue1(after_reduce, ep_before_wait, ep_after_barrier)
stamp("G stores issued")
a("s_waitcnt lgkmcnt(0)")
def g_poll_setup():
    set_g_base()
    a(f"s_mul_i32 s{sT2}, s{sWV}, 7")
    a(f"s_cmp_eq_u32 s{sWV}, 3")
    a(f"s_cselect_b32 s{sT3}, 1, 0")
    a(f"s_sub_u32 s{sT2}, s{sT2}, s{sT3}")
    a(f"s_lshl_b32 s{sT3}, s{sDT}, 5")
    a(f"s_add_u32 s{sT2}, s{sT2}, s{sT3}")
    a(f"s_lshl_b32 s{sT2}, s{sT2}, {args.gflsh}")
    a(f"s_add_u32 s{sGST}, s{sT2}, {FL_G}")
    a(f"v_min_u32 v{vPOLL+2}, 6, v{vLANE}")
    a(f"v_lshlrev_b32 v{vPOLL+2}, {args.gflsh}, v{vPOLL+2}")
g_poll_setup()
if args.pre2:
    W2.advance_to(*pair(args.pre2))
else:
    assert W2.nd + args.n2fill - NSLOT <= W2.nt
    W2.fill(W2.nd + args.n2fill)
    for _ in range(args.k2pre): W2.tr()
vm.wait("gst")
a("s_barrier")
a(f"s_lshl_b32 s{sT2}, s{sDT1}, 5")
a(f"s_add_u32 s{sT2}, s{sT2}, s{sFT}")
a(f"s_lshl_b32 s{sT2}, s{sT2}, {args.gflsh}")
a(f"s_add_u32 s{sT2}, s{sT2}, {FL_G}")
store_flag("L_flag_g", sT2)
stamp("G flag stored")
j_nd, j_nt = pair(args.join2)
poll_issue(sGST)
W2.advance_to(j_nd, j_nt)
stamp("w2 staged")
vm_join = list(vm.ops)
i_join = nstamp[0]
a("s_branch L_gemm2")
a("L_idle:")
nstamp[0] = i_branch
a("s_waitcnt vmcnt(0)")
vm.drained()
epilogue_addresses()
if args.pfmode in ("mall", "split"):
    a(f"s_lshl_b32 s{sT2}, s{sWV}, {args.flsh + 6}")
    a(f"s_add_u32 s{sGST}, s{sT2}, {FL_LN}")
    a(f"v_lshlrev_b32 v{vPOLL+2}, {args.flsh}, v{vLANE}")
    if args.pfwait:
        poll_issue(sGST)
        poll_check("L_poll_idle", sGST)
    a(f"s_and_b32 s{sT0}, s{sB}, 7")
    a(f"s_and_b32 s{sT1}, s{sB}, 1")
    a(f"s_add_u32 s{sT1}, s{sT1}, 8")
    a(f"s_lshr_b32 s{sT2}, s{sB}, 5")
    a(f"s_cmp_eq_u32 s{sT2}, 7")
    a(f"s_cselect_b32 s{sT0}, s{sT0}, s{sT1}")
    a(f"s_lshl_b32 s{sT0}, s{sT0}, 2")
    a(f"s_bfe_u32 s{sT1}, s{sB}, 0x20003")
    a(f"s_add_u32 s{sT0}, s{sT0}, s{sT1}")
    a(f"s_lshl_b32 s{sT0}, s{sT0}, 2")
    a(f"s_add_u32 s{sIDX}, s{sT0}, s{sWV}")
    def pf_loop(label, n):
        a(f"s_mov_b32 s{sT1}, {n}")
        a(f"{label}:")
        a(f"buffer_load_dwordx4 v[20:23], v{vA}, s[{srdW2}:{srdW2+3}], s{sT0} offen")
        a(f"s_add_u32 s{sT0}, s{sT0}, 1024")
        a(f"s_sub_u32 s{sT1}, s{sT1}, 1")
        a(f"s_cmp_lg_u32 s{sT1}, 0")
        a(f"s_cbranch_scc1 {label}")
    if args.pfmode == "mall":
        for _ in range(args.pfsleep): a("s_sleep 16")
        a(f"s_mul_i32 s{sT0}, s{sIDX}, {44*1024}")
        pf_loop("L_pf_loop", 44)
        a("s_waitcnt vmcnt(0)")
    else:
        a(f"s_and_b32 s{sT2}, s{sIDX}, 3")
        a(f"s_mul_i32 s{sT0}, s{sT2}, 14")
        a(f"s_cmp_eq_u32 s{sT2}, 3")
        a(f"s_cselect_b32 s{sT3}, 1, 0")
        a(f"s_sub_u32 s{sT0}, s{sT0}, s{sT3}")
        a(f"s_lshl_b32 s{sT0}, s{sT0}, 5")
        a(f"s_lshr_b32 s{sT2}, s{sIDX}, 2")
        a(f"s_lshl_b32 s{sT2}, s{sT2}, 2")
        a(f"s_add_u32 s{sT0}, s{sT0}, s{sT2}")
        a(f"s_lshl_b32 s{sT0}, s{sT0}, 12")
        pf_loop("L_pf_loop", 16)
vm.drained()
stamp("idle: prefetch done")
W2i = Stager(srdW2, vD2, sW2R, sW2B, sW2E, W2_KS, 14, True, fl(args.w2fl), "w2i", args.ns2)
W2i.start()
if args.pfmode == "xcd2":
    a(f"s_lshr_b32 s{sT0}, s{sB}, 5")
    a(f"s_cmp_lg_u32 s{sT0}, 7")
    a("s_cbranch_scc1 L_pfx_done")
    a(f"s_bfe_u32 s{sT2}, s{sB}, 0x20003")
    a(f"s_mul_i32 s{sT0}, s{sT2}, 14")
    a(f"s_cmp_eq_u32 s{sT2}, 3")
    a(f"s_cselect_b32 s{sT3}, 1, 0")
    a(f"s_sub_u32 s{sT0}, s{sT0}, s{sT3}")
    a(f"s_lshl_b32 s{sT0}, s{sT0}, 5")
    a(f"s_lshl_b32 s{sT1}, s{sWV}, 3")
    a(f"s_add_u32 s{sT0}, s{sT0}, s{sT1}")
    a(f"s_lshl_b32 s{sT0}, s{sT0}, 12")
    a(f"s_bfe_u32 s{sT1}, s{sB}, 0x20001")
    a(f"s_lshl_b32 s{sT1}, s{sT1}, 10")
    a(f"s_add_u32 s{sT0}, s{sT0}, s{sT1}")
    a(f"s_mov_b32 s{sT2}, {args.pfn}")
    if args.pfskip:
        a(f"s_add_u32 s{sT0}, s{sT0}, {args.pfskip0*32*4096}")
    vpf = vA
    if args.pfmask:
        vpf = 24
        a(f"v_lshrrev_b32 v25, 3, v{vLANE}")
        a(f"v_cmp_eq_u32 vcc, {args.stswap}, v25")
        a(f"v_mov_b32 v25, 0x10000000")
        a("s_nop 0")
        a(f"v_cndmask_b32 v24, v{vA}, v25, vcc")
    if args.pfown: W2i.fill(args.pfown)
    a("L_pfx_loop:")
    for r in range(8):
        a(f"buffer_load_dwordx4 v[20:23], v{vpf}, s[{srdW2}:{srdW2+3}], s{sT0} offen")
        a(f"s_add_u32 s{sT0}, s{sT0}, 4096")
    a(f"s_add_u32 s{sT0}, s{sT0}, {24*4096}")
    a(f"s_sub_u32 s{sT2}, s{sT2}, 1")
    a(f"s_cmp_lg_u32 s{sT2}, 0")
    a("s_cbranch_scc1 L_pfx_loop")
    a("L_pfx_done:")
W2i.advance_to(j_nd, j_nt)
if args.pfmode == "split":
    a(f"s_and_b32 s{sT2}, s{sIDX}, 3")
    a(f"s_mul_i32 s{sT0}, s{sT2}, 14")
    a(f"s_cmp_eq_u32 s{sT2}, 3")
    a(f"s_cselect_b32 s{sT3}, 1, 0")
    a(f"s_sub_u32 s{sT0}, s{sT0}, s{sT3}")
    a(f"s_add_u32 s{sT0}, s{sT0}, 5")
    a(f"s_lshl_b32 s{sT0}, s{sT0}, 17")
    a(f"s_lshr_b32 s{sT2}, s{sIDX}, 2")
    a(f"s_mul_i32 s{sT2}, s{sT2}, {29*1024}")
    a(f"s_add_u32 s{sT0}, s{sT0}, s{sT2}")
    pf_loop("L_pf_loop2", 29)
assert (W2i.nd, W2i.nt) == (W2.nd, W2.nt), ((W2i.nd, W2i.nt), (W2.nd, W2.nt))
g_poll_setup()
poll_issue(sGST)
a("s_waitcnt vmcnt(0)")
while nstamp[0] < i_join and args.stamps: stamp("idle")
if args.probe in ("poll_check", "LN_flags_seen", "main1_done", "G_stores_issued", "G_flag_stored", "w2_staged"):
    a("s_mov_b32 s89, s90")
a("L_gemm2:")
vm.ops = vm_join
poll_check("L_poll_g", sGST, args.deep2)
stamp("G flags seen")
bg.every = 0
main_prefill(2, 14, True)
if args.biasc:
    a(f"v_lshlrev_b32 v160, 16, v{vB2}")
    for k in (161, 162, 163): a(f"v_mov_b32 v{k}, v160")
main_loop(2, 14, True, W2)
stamp("main2 done")
epilogue2()
stamp("end")
write_stamps("L_st", STAMP)
if args.light:
    a("s_waitcnt vmcnt(0)")
    a("s_memrealtime s[92:93]")
    a("s_waitcnt lgkmcnt(0)")
    a(f"s_lshl_b32 s{sT0}, s{sB}, 2")
    a(f"s_add_u32 s{sT0}, s{sT0}, s{sWV}")
    a(f"s_lshl_b32 s{sT0}, s{sT0}, 3")
    a(f"s_add_u32 s{sT0}, s{sT0}, {STAMP}")
    a("v_mov_b32 v16, s90"); a("v_mov_b32 v17, s92"); a("v_mov_b32 v12, 0")
    a("s_mov_b64 exec, 1")
    a(f"buffer_store_dwordx2 v[16:17], v12, s[{srdWS}:{srdWS+3}], s{sT0} offen")
if args.probe.startswith("late"):
    lo, hi = int(args.probe[4]), int(args.probe[5])
    a(f"s_sub_u32 s89, s90, s{sNON}")
    a("s_ashr_i32 s88, s89, 31"); a("s_andn2_b32 s89, s89, s88")
    a(f"s_and_b32 s88, s{sB}, 7")
    a(f"s_cmp_ge_u32 s88, {lo}"); a("s_cselect_b32 s89, s89, 0")
    a(f"s_cmp_le_u32 s88, {hi}"); a("s_cselect_b32 s89, s89, 0")
    a("s_add_u32 s89, s89, s90")
if args.probe:
    a("s_waitcnt vmcnt(0)")
    a("s_sub_u32 s89, s89, s90")
    a("s_lshl_b32 s89, s89, 2")
    a("s_add_u32 s89, s89, 3000")
    a("L_probe:")
    a("s_memrealtime s[86:87]")
    a("s_waitcnt lgkmcnt(0)")
    a("s_sub_u32 s86, s86, s90")
    a("s_cmp_lt_u32 s86, s89")
    a("s_cbranch_scc1 L_probe")
if args.padto:
    a("s_waitcnt vmcnt(0)")
    a("L_pad:")
    a("s_memrealtime s[88:89]")
    a("s_waitcnt lgkmcnt(0)")
    a("s_sub_u32 s88, s88, s90")
    a(f"s_cmp_lt_u32 s88, {args.padto}")
    a("s_cbranch_scc1 L_pad")
a("L_end:")
a("s_endpgm")
a("L_code_end:")
kernel_desc(a, MAIN, 512, 102, 256)
print(a.text())
```
